```python
import torch

def _softmax(x, axis=-1):
    return torch.softmax(x, dim=axis)
def _gelu(x):
    return torch.nn.functional.gelu(x, approximate="tanh")
def _silu(x):
    return torch.nn.functional.silu(x)
def _sigmoid(x):
    return torch.sigmoid(x)
def _layernorm(x, axis=-1, eps=1e-5):
    m = x.mean(dim=axis, keepdim=True)
    v = x.var(dim=axis, keepdim=True, unbiased=False)
    return (x - m) / torch.sqrt(v + eps)
def _scatter_add(tgt, idx, src, axis=0):
    return tgt.clone().index_add_(axis, idx, src)
def _segment_sum(src, seg, n):
    out = torch.zeros((n,) + src.shape[1:], dtype=src.dtype)
    return out.index_add_(0, seg, src)
def _pad(x, pw):
    flat = tuple(v for pair in reversed(pw) for v in pair)
    return torch.nn.functional.pad(x, flat)

kernel_name = 'concat_heads__sliding_local_dilated__linear_kernel_hedgehog__prompt'

def setup_inputs():

    _w = (lambda a: (lambda t: t.to(torch.bfloat16) if t.is_floating_point() else t)(torch.as_tensor(a)))
    def _A_setup():
        B, S, D = 1, 2048, 640
        return {
            "x": _w((lambda *s: torch.randn(*s, dtype=torch.bfloat16) * 0.2)(B, S, D)),
            "wqkv": _w((lambda *s: torch.randn(*s, dtype=torch.bfloat16) * 0.2)(D, 3 * D)),
            "wo": _w((lambda *s: torch.randn(*s, dtype=torch.bfloat16) * 0.05)(D, D)),
        }
    _A_in = _A_setup()

    def _B_setup():
        B, S, D, H = 1, 2048, 640, 32
        Dh = D // H
        return {
            "x": _w((lambda *s: torch.randn(*s, dtype=torch.bfloat16) * 0.2)(B, S, D)),
            "wqkv": _w((lambda *s: torch.randn(*s, dtype=torch.bfloat16) * 0.8)(D, 3 * D)),
            "w_phi": _w((lambda *s: torch.randn(*s, dtype=torch.bfloat16) * 0.8)(H, Dh, Dh) * (Dh ** -0.5)),
            "wo": _w((lambda *s: torch.randn(*s, dtype=torch.bfloat16) * 0.2)(D, D)),
        }
    _B_in = _B_setup()

    return {
        "A_x": _A_in["x"],
        "A_wqkv": _A_in["wqkv"],
        "A_wo": _A_in["wo"],
        "B_x": _B_in["x"],
        "B_wqkv": _B_in["wqkv"],
        "B_w_phi": _B_in["w_phi"],
        "B_wo": _B_in["wo"],
    }

def reference(A_x, A_wqkv, A_wo, B_x, B_wqkv, B_w_phi, B_wo):
    def _A_ref(x, wqkv, wo):
        B, S, D = x.shape
        H = 32; Dh = D // H
        W, dil = 8, 2
        qkv = (lambda x, *d: x.permute(*d))((x @ wqkv).reshape(B, S, 3, H, Dh), 2, 0, 3, 1, 4)
        q, k, v = qkv[0], qkv[1], qkv[2]
        scale = Dh ** -0.5
        pos = torch.arange(S)
        off = torch.arange(W) * dil
        idx = pos[:, None] - off[None, :]
        mask = idx >= 0
        idx_c = torch.where(mask, idx, 0).reshape(-1)
        kg = k[:, :, idx_c, :].reshape(B, H, S, W, Dh)
        vg = v[:, :, idx_c, :].reshape(B, H, S, W, Dh)
        logits = torch.einsum("bhsd,bhswd->bhsw", q, kg) * scale
        logits = torch.where(mask[None, None, :, :], logits, -1e9)
        attn = _softmax(logits, axis=-1)
        o = torch.einsum("bhsw,bhswd->bhsd", attn, vg)
        return (lambda x, *d: x.permute(*d))(o, 0, 2, 1, 3).reshape(B, S, D) @ wo

    def _B_ref(x, wqkv, w_phi, wo):
        B, S, D = x.shape
        H = 32; Dh = D // H
        qkv = (lambda x, *d: x.permute(*d))((x @ wqkv).reshape(B, S, 3, H, Dh), 2, 0, 3, 1, 4)
        q, k, v = qkv[0], qkv[1], qkv[2]
        pq = torch.einsum("bhsd,hdf->bhsf", q, w_phi)
        pk = torch.einsum("bhsd,hdf->bhsf", k, w_phi)
        phi_q = torch.concatenate([_softmax(pq, axis=-1), _softmax(-pq, axis=-1)], axis=-1)
        phi_k = torch.concatenate([_softmax(pk, axis=-1), _softmax(-pk, axis=-1)], axis=-1)
        kv = torch.einsum("bhsf,bhsd->bhfd", phi_k, v)
        z  = torch.einsum("bhsf->bhf", phi_k)
        num = torch.einsum("bhqf,bhfd->bhqd", phi_q, kv)
        den = torch.einsum("bhqf,bhf->bhq", phi_q, z)[..., None] + 1e-6
        o = num / den
        return (lambda x, *d: x.permute(*d))(o, 0, 2, 1, 3).reshape(B, S, D) @ wo

    a = _A_ref(A_x, A_wqkv, A_wo)
    b = _B_ref(B_x, B_wqkv, B_w_phi, B_wo)
    return torch.concatenate([a, b], axis=-1)
```

```python
import re

TRANS = ("v_exp_f32", "v_log_f32", "v_rcp_f32", "v_rsq_f32", "v_sqrt_f32", "v_sin_f32", "v_cos_f32")

def regs_of(tok):
    tok = tok.strip()
    neg = tok.startswith("-")
    if neg: tok = tok[1:]
    if tok.startswith("abs("): tok = tok[4:-1]
    if tok.startswith("|"): tok = tok.strip("|")
    m = re.fullmatch(r"([vsa])(\d+)", tok)
    if m: return [(m.group(1), int(m.group(2)))]
    m = re.fullmatch(r"([vsa])\[(\d+):(\d+)\]", tok)
    if m: return [(m.group(1), i) for i in range(int(m.group(2)), int(m.group(3)) + 1)]
    if tok == "vcc": return [("s", 106), ("s", 107)]
    if tok == "exec": return [("s", 126), ("s", 127)]
    if tok == "m0": return [("s", 124)]
    return []

class Ins:
    def __init__(self, text):
        self.text = text
        t = text.split(";")[0].strip()
        self.op = t.split()[0] if t else ""
        rest = t[len(self.op):].strip()
        ops = []
        depth = 0; cur = ""
        for ch in rest:
            if ch in "[(": depth += 1
            if ch in "])": depth -= 1
            if ch == "," and depth == 0:
                ops.append(cur.strip()); cur = ""
            else: cur += ch
        if cur.strip(): ops.append(cur.strip())
        mods = ""
        if ops:
            parts = ops[-1].split(None, 1)
            ops[-1] = parts[0]
            if len(parts) > 1: mods = parts[1]
        op = self.op
        self.wr = []; self.rd = []; self.kind = "other"; self.passes = 0; self.srcc = []; self.srcab = []; self.states = 1
        self.lds = False; self.data = []
        R = lambda i: regs_of(ops[i]) if i < len(ops) else []
        if op == "s_nop":
            self.kind = "nop"; self.states = int(ops[0], 0) + 1
        elif op.startswith("v_mfma"):
            self.kind = "mfma"
            self.passes = 8 if "32x32" in op else (2 if "4x4" in op else 4)
            self.wr = R(0); self.srcab = R(1) + R(2); self.srcc = R(3); self.rd = self.srcab + self.srcc
        elif op.startswith("v_cmp"):
            self.kind = "valu"; self.wr = R(0); self.rd = R(1) + R(2)
        elif op.startswith("v_readfirstlane") or op.startswith("v_readlane"):
            self.kind = "valu"; self.wr = R(0); self.rd = R(1) + R(2)
        elif op.startswith("v_permlane"):
            self.kind = "valu"; self.wr = R(0) + R(1); self.rd = R(0) + R(1)
        elif op.startswith("v_"):
            self.kind = "valu"
            self.wr = R(0)
            k = 1
            if op.startswith(("v_add_co", "v_sub_co", "v_addc_co", "v_subb_co")):
                self.wr += R(1); k = 2
            for i in range(k, len(ops)): self.rd += R(i)
            if op.startswith(("v_fmac", "v_dot2c", "v_mac")): self.rd += R(0)
            if op.startswith("v_cndmask") and len(ops) == 3: self.rd += regs_of("vcc")
        elif op.startswith("ds_read"):
            self.kind = "ds"; self.wr = R(0); self.rd = R(1)
        elif op.startswith("ds_write") or op.startswith("ds_add"):
            self.kind = "ds"
            for i in range(len(ops)): self.rd += R(i)
        elif op.startswith("buffer_load") or op.startswith("global_load"):
            self.kind = "vmem"
            isl = " lds" in (" " + mods) or "_lds_" in op
            if isl:
                self.lds = True
                for i in range(len(ops)): self.rd += R(i)
                self.rd += regs_of("m0")
            else:
                self.wr = R(0)
                for i in range(1, len(ops)): self.rd += R(i)
        elif op.startswith("buffer_store") or op.startswith("buffer_atomic"):
            self.kind = "vmem"
            for i in range(len(ops)): self.rd += R(i)
            self.data = R(0)
            if op.startswith("buffer_atomic") and "sc0" in mods: self.wr = R(0)
        elif op.startswith("global_store") or op.startswith("global_atomic"):
            self.kind = "vmem"
            for i in range(len(ops)): self.rd += R(i)
            self.data = R(1)
        elif op.startswith("s_load") or op.startswith("s_memtime") or op.startswith("s_memrealtime"):
            self.kind = "smem"; self.wr = R(0); self.rd = R(1)
        elif op.startswith("s_cmp") or op.startswith("s_bitcmp") or op.startswith("s_cbranch") or op in ("s_branch", "s_barrier", "s_waitcnt", "s_endpgm", "s_sleep", "s_setprio"):
            self.kind = "salu"
            for i in range(len(ops)): self.rd += R(i)
        elif op.startswith("s_"):
            self.kind = "salu"; self.wr = R(0)
            for i in range(1, len(ops)): self.rd += R(i)
            if "saveexec" in op: self.wr += regs_of("exec")
        self.dpp = "dpp" in op or "row_" in mods
        self.sdwa = "sdwa" in op


def need(prev, cur):
    n = 0
    pw = set(prev.wr); cr = set(cur.rd); cw = set(cur.wr)
    pwv = {r for r in pw if r[0] in "va"}; pws = {r for r in pw if r[0] == "s"}
    if prev.kind == "valu":
        if cur.kind == "mfma" and pwv & cr: n = max(n, 2)
        if cur.op.startswith("v_permlane") and pwv & cr: n = max(n, 2)
        if cur.dpp and pwv & cr: n = max(n, 2)
        if cur.op.startswith(("v_readfirstlane", "v_readlane")) and pwv & cr: n = max(n, 1)
        if prev.op.startswith(TRANS) and cur.kind == "valu" and pwv & cr: n = max(n, 1)
        if prev.sdwa and cur.kind == "valu" and pwv & (cr | cw): n = max(n, 1)
        if pws:
            if cur.kind == "valu" and pws & cr: n = max(n, 4 if cur.op.startswith(("v_readlane", "v_writelane")) else 2)
            if cur.kind == "vmem" and pws & cr: n = max(n, 5)
            if cur.kind in ("salu", "smem") and pws & cr: n = max(n, 1)
            if ("s", 126) in pws:
                if cur.kind == "mfma": n = max(n, 4)
                if cur.dpp: n = max(n, 5)
    if prev.kind == "mfma":
        p = prev.passes
        big = {2: 5, 4: 8, 8: 12, 16: 20}[p]
        if cur.kind in ("valu",) and pw & (cr | cw): n = max(n, big)
        if cur.kind in ("vmem", "ds") and pw & (cr | cw): n = max(n, big)
        if cur.kind == "mfma":
            if pw & set(cur.srcab): n = max(n, big)
            if pw & set(cur.srcc):
                if list(prev.wr) == list(cur.srcc) and cur.op == prev.op and '16x16x16' not in cur.op: n = max(n, 2 if p == 2 else 0)
                else: n = max(n, {2: 4, 4: 6, 8: 10, 16: 18}[p])
            elif pw & cw:
                n = max(n, big)
        if cur.kind == "valu" and set(prev.srcc) & cw: n = max(n, {2: 1, 4: 3, 8: 7, 16: 15}[p])
    if prev.kind == "salu" and ("s", 124) in pw and cur.kind == "vmem" and cur.lds: n = max(n, 1)
    if prev.kind == "vmem" and len(prev.data) >= 3 and set(prev.data) & cw:
        n = max(n, 2 if cur.kind == "valu" else 1)
    return n

class Asm:
    def __init__(self):
        self.items = []
    def raw(self, s): self.items.append(s)
    def label(self, s): self.items.append(s + ":")
    def __call__(self, s):
        for line in s.split("\n"):
            line = line.strip()
            if not line or line.startswith(";"): continue
            if line.endswith(":") or line.startswith("."): self.items.append(line)
            else: self.items.append(Ins(line))
    def finish(self, window=24):
        out = []; hist = []
        nins = 0
        for it in self.items:
            if isinstance(it, str):
                out.append(it); continue
            dist = 0; req = 0
            for p in reversed(hist[-window:]):
                nd = need(p, it)
                if nd > dist: req = max(req, nd - dist)
                dist += p.states
                if dist >= 20: break
            while req > 0:
                k = min(req, 16)
                nop = Ins("s_nop %d" % (k - 1)); out.append(nop); hist.append(nop); req -= k; nins += 1
            out.append(it); hist.append(it)
            if it.op in ("s_branch", "s_endpgm"): hist = []
        self.out = out
        self.check_backedges()
        return "\n".join((x if isinstance(x, str) else "  " + x.text) for x in out) + "\n"
    def check_backedges(self):
        out = self.out
        labels = {x[:-1]: i for i, x in enumerate(out) if isinstance(x, str) and x.endswith(":")}
        for i, x in enumerate(out):
            if isinstance(x, Ins) and (x.op.startswith("s_cbranch") or x.op == "s_branch"):
                tgt = x.text.split()[1]
                j = labels.get(tgt)
                if j is None: continue
                pre = [y for y in out[max(0, i - 30):i + 1] if isinstance(y, Ins)]
                post = [y for y in out[j:j + 40] if isinstance(y, Ins)][:24]
                hist = list(pre)
                for c in post:
                    dist = 0
                    for p in reversed(hist):
                        nd = need(p, c)
                        if nd > dist and p in pre:
                            raise RuntimeError("hazard across branch %s: %s -> %s (need %d have %d)" % (x.text, p.text, c.text, nd, dist))
                        dist += p.states
                        if dist >= 20: break
                    hist.append(c)
                    if c.op in ("s_branch", "s_endpgm"): break

class LgkmQ:
    def __init__(self, maxn): self.q = []; self.maxn = maxn
    def push(self, tag): self.q.append(tag)
    def count_after(self, tag):
        if tag not in self.q: return None
        idx = len(self.q) - 1 - self.q[::-1].index(tag)
        return len(self.q) - 1 - idx
    def wait(self, tag):
        n = self.count_after(tag)
        if n is None: return None
        n = min(n, self.maxn)
        self.q = self.q[len(self.q) - n:] if n else []
        return n
    def clear(self): self.q = []
```

```python
import sys
from asmlib import Asm, LgkmQ

NAME = "concat_heads__sliding_local_dilated__linear_kernel_hedgehog__prompt"
STAMP = "--stamp" in sys.argv
ROT = "--norot" not in sys.argv

SLOT = 49152; XB = 18432
STAT = 3 * SLOT
WPHI = STAT; ZERO = STAT + 4096; KVI = STAT + 6144
PHI = 0; VIM = 45056; PHI_RS = 352; V_RS = 224
EXCH = 0
O_OFF = 0; O_BR = 128 * 20 * 1024
KVSUM = 8 << 20
STAMP_OFF = 16 << 20
WS_BYTES = 268435456

a = Asm()
hdr = open("cdna_kernels/%s.s.ref" % NAME).read().split("; Override launch")[0]
a.raw(hdr.rstrip())
a.raw("; @launch kernel=k1_kernel grid=(256,1,1) block=(512,1,1) lds=163840")
a.raw("; @launch kernel=k2_kernel grid=(256,1,1) block=(512,1,1) lds=102400")
a.raw('.amdgcn_target "amdgcn-amd-amdhsa--gfx950"')
a.raw(".text")

def srd(n, lo, nbytes):
    a("s_mov_b32 s%d, s%d\ns_mov_b32 s%d, s%d\ns_mov_b32 s%d, %d\ns_mov_b32 s%d, 0x20000" % (n, lo, n + 1, lo + 1, n + 2, nbytes, n + 3))

stamp_n = [0]
def stamp(i):
    if STAMP: a("s_memtime s[%d:%d]" % (80 + 2 * i, 81 + 2 * i))

def stamp_store(kern, lbl):
    if not STAMP: return
    a("s_waitcnt lgkmcnt(0)")
    for i in range(1, 10):
        a("s_sub_u32 s%d, s%d, s80" % (80 + 2 * i, 80 + 2 * i))
    a("s_mov_b64 exec, 1")
    for i in range(10): a("v_mov_b32 v%d, s%d" % (100 + i, 80 + 2 * i))
    a("v_mov_b32 v110, 0\nv_mov_b32 v111, 0")
    a("s_lshl_b32 s61, s2, 3\ns_add_u32 s61, s61, s8\ns_lshl_b32 s61, s61, 6\ns_add_u32 s61, s61, %d" % (STAMP_OFF + kern * (1 << 18)))
    a("v_mov_b32 v112, 0")
    a("buffer_store_dwordx4 v[100:103], v112, s[44:47], s61 offen")
    a("buffer_store_dwordx4 v[104:107], v112, s[44:47], s61 offen offset:16")
    a("buffer_store_dwordx4 v[108:111], v112, s[44:47], s61 offen offset:32")

def prologue(kname):
    a.raw(".globl %s\n.p2align 8\n.type %s,@function" % (kname, kname))
    a.label(kname)
    a("s_cmp_ge_u32 s2, 256")
    a("s_cbranch_scc1 %s_end" % kname)
    if STAMP:
        for i in range(10): a("s_mov_b64 s[%d:%d], 0" % (80 + 2 * i, 81 + 2 * i))
    stamp(0)
    a("""
    s_load_dwordx16 s[16:31], s[0:1], 0
    s_load_dwordx4 s[32:35], s[0:1], 64
    s_and_b32 s3, s2, 7
    s_lshr_b32 s4, s2, 3
    s_lshr_b32 s5, s3, 2
    s_and_b32 s6, s3, 1
    s_lshl_b32 s6, s6, 3
    s_and_b32 s9, s4, 7
    s_add_u32 s6, s6, s9
    s_bfe_u32 s7, s3, 0x10001
    s_lshl_b32 s7, s7, 2
    s_lshr_b32 s9, s4, 3
    s_add_u32 s7, s7, s9
    v_lshrrev_b32 v1, 6, v0
    v_readfirstlane_b32 s8, v1
    v_and_b32 v1, 63, v0
    v_lshrrev_b32 v2, 4, v1
    v_and_b32 v3, 15, v1
    """)

prologue("k1_kernel")
a("""
s_waitcnt lgkmcnt(0)
s_cmp_eq_u32 s5, 0
s_cselect_b32 s36, s16, s22
s_cselect_b32 s37, s17, s23
s_mov_b32 s38, 2621440
s_mov_b32 s39, 0x20000
s_cselect_b32 s40, s18, s24
s_cselect_b32 s41, s19, s25
s_mov_b32 s42, 2457600
s_mov_b32 s43, 0x20000
""")
srd(44, 34, WS_BYTES)
srd(48, 32, 256)
srd(52, 26, 25600)
a("""
s_cmp_ge_u32 s8, 4
s_cbranch_scc1 k1_helper
""")
def lane_parts():
    a("""
    v_bfe_u32 v8, v1, 2, 2
    v_and_b32 v9, 3, v1
    v_lshrrev_b32 v10, 1, v2
    v_lshlrev_b32 v10, 4, v10
    v_and_b32 v11, 1, v2
    v_lshl_add_u32 v10, v11, 2, v10
    v_add_u32 v10, v10, v8
    """)
def w_addrs():
    a("""
    v_mul_u32_u24 v11, 480, v10
    v_mad_u32_u24 v4, v9, 40, v11
    v_lshl_add_u32 v5, v9, 3, v11
    """)
def x_addrs(rowbase_sreg):
    a("""
    v_lshrrev_b32 v11, 1, v3
    v_xor_b32 v11, v11, v2
    v_lshlrev_b32 v11, 4, v11
    v_add_u32 v12, %s, v3
    v_lshl_add_u32 v6, v12, 7, v11
    v_xor_b32 v7, 64, v6
    """ % rowbase_sreg)

lane_parts(); w_addrs()
a("s_lshl_b32 s9, s8, 5\ns_add_u32 s9, s9, 16")
x_addrs("s9")
ACC = 128
def acc(j, t): return ACC + j * 8 + t * 4
for r in range(ACC, ACC + 120): a("v_mov_b32 v%d, 0" % r)
RING = 16; XF = 56
def q4(r): return "v[%d:%d]" % (r, r + 3)
def q2(r): return "v[%d:%d]" % (r, r + 1)

def wread(br, kap, j, dst):
    sec, t = divmod(j, 5)
    if br == 'B': reg, toff = 4, 8 * t
    else: reg, toff = (5, 40 * t) if t < 4 else (4, 32)
    for hf in range(2):
        off = XB + (32 * kap + 8 * hf) * 480 + 160 * sec + toff
        a("ds_read_b64_tr_b16 %s, v%d offset:%d" % (q2(dst + 2 * hf), reg, off))

def slot_advance(regs):
    a("""
    s_add_u32 s59, s59, 1
    s_cmp_eq_u32 s59, 3
    s_cselect_b32 s59, 0, s59
    s_cselect_b32 s60, %d, s57
    """ % (-2 * SLOT,))
    for r in regs: a("v_add_u32 v%d, s60, v%d" % (r, r))

def main_loop(br, tiles, ntau, xf_flip, lbl, ring=RING, D=6, MB=None, accf=None, xk1_at=2):
    n = len(tiles); items = [(kap, j) for kap in range(2) for j in tiles]; N = len(items)
    RN = 10 if N % 10 == 0 else n
    assert N % RN == 0
    if MB is None: MB = N - D + 1
    Q = LgkmQ(15)
    def xread(kap):
        for t in range(ntau):
            a("ds_read_b128 %s, v%d offset:%d" % (q4(XF + kap * 8 + t * 4), 6 + kap, t * 2048)); Q.push(("x", kap, t))
    def iread(m):
        kap, j = items[m]
        wread(br, kap, j, ring + (m % RN) * 4); Q.push(("w", m, 0)); Q.push(("w", m, 1))
    a("s_mov_b32 s59, 0\ns_mov_b32 s58, 0\ns_mov_b32 s57, %d" % SLOT)
    a("s_barrier")
    stamp(1)
    xread(0)
    for m in range(D): iread(m)
    a.raw(".p2align 3")
    a.label(lbl)
    nxt = 0
    for m in range(N):
        kap, j = items[m]
        if m + D < N: iread(m + D)
        if m == xk1_at: xread(1)
        if m > MB:
            iread(nxt); nxt += 1
        need = [("w", m, 1)] + [("x", kap, ntau - 1)]
        if m <= MB:
            w = None
            for tg in need:
                c = Q.count_after(tg)
                if c is not None: w = c if w is None else min(w, c)
            if w is not None:
                tg = [t for t in need if Q.count_after(t) == w][0]
                a("s_waitcnt lgkmcnt(%d)" % Q.wait(tg))
        wf = ring + (m % RN) * 4
        for t in range(ntau):
            xf = XF + kap * 8 + t * 4
            d = accf(j, t)
            if xf_flip(j): a("v_mfma_f32_16x16x32_bf16 %s, %s, %s, %s" % (q4(d), q4(xf), q4(wf), q4(d)))
            else: a("v_mfma_f32_16x16x32_bf16 %s, %s, %s, %s" % (q4(d), q4(wf), q4(xf), q4(d)))
        if m == MB:
            a("s_waitcnt lgkmcnt(0)"); Q.clear()
            a("s_barrier")
            slot_advance([4, 5, 6, 7] if br == 'A' else [4, 6, 7])
            xread(0)
            while nxt < D - (N - 1 - MB):
                iread(nxt); nxt += 1
    assert nxt == D, (nxt, D)
    a("s_add_u32 s58, s58, 1\ns_cmp_lt_u32 s58, 10\ns_cbranch_scc1 %s" % lbl)
    a("s_waitcnt lgkmcnt(0)")

a("s_cmp_eq_u32 s5, 0\ns_cbranch_scc0 k1_B")
main_loop('A', list(range(15)), 2, lambda j: j >= 10, "k1_A_loop", accf=acc)
stamp(2)
QOP = 16; KOP = 48; VOP = 96; SS = 128; EE = 192; POP = 208
def cvt(d, s): a("v_cvt_pk_bf16_f32 v%d, v%d, v%d" % (d, s, s + 1))
def packK(src_of_tile, dst):
    for h in range(4):
        cvt(dst + 4 * h, src_of_tile(h)); cvt(dst + 4 * h + 1, src_of_tile(h) + 2)
        cvt(dst + 4 * h + 2, src_of_tile(4)); cvt(dst + 4 * h + 3, src_of_tile(4) + 2)
a("""
v_lshlrev_b32 v8, 4, v1
v_lshlrev_b32 v9, 3, v1
s_lshl_b32 s9, s8, 13
v_add_u32 v10, s9, v8
v_add_u32 v11, s9, v9
v_add_u32 v4, 8192, v10
v_add_u32 v5, 8192, v11
""")
packK(lambda t: acc(5 + t, 1), KOP + 32)
for t in range(5):
    cvt(VOP + 6 * t + 4, acc(10 + t, 1)); cvt(VOP + 6 * t + 5, acc(10 + t, 1) + 2)
for h in range(4): a("ds_write_b128 v4, %s offset:%d" % (q4(KOP + 32 + 4 * h), EXCH + h * 1024))
for t in range(5): a("ds_write_b64 v5, %s offset:%d" % (q2(VOP + 6 * t + 4), EXCH + 4096 + t * 512))
packK(lambda t: acc(5 + t, 0), KOP + 16)
for t in range(5):
    cvt(VOP + 6 * t + 2, acc(10 + t, 0)); cvt(VOP + 6 * t + 3, acc(10 + t, 0) + 2)
a("""
s_mov_b32 s66, 0xffff
s_mov_b32 s67, 0
s_mov_b32 s68, 0xffff0000
s_mov_b32 s69, 0
s_mov_b32 s70, 0
s_mov_b32 s71, 0xffff
s_mov_b32 s72, 0
s_mov_b32 s73, 0xffff0000
v_and_b32 v12, 1, v3
v_cmp_eq_u32 s[74:75], 1, v12
v_lshl_add_u32 v13, v2, 2, v12
v_cmp_ge_u32 s[76:77], v3, v13
v_add_u32 v13, 2, v13
v_cmp_ge_u32 s[78:79], v3, v13
""")
for tau in range(2):
    cvt(6, acc(4, tau)); cvt(7, acc(4, tau) + 2)
    for h in range(4):
        d = QOP + tau * 16 + 4 * h
        cvt(d, acc(h, tau)); cvt(d + 1, acc(h, tau) + 2)
        a("v_cndmask_b32 v%d, 0, v6, s[%d:%d]" % (d + 2, 66 + 2 * h, 67 + 2 * h))
        a("v_cndmask_b32 v%d, 0, v7, s[%d:%d]" % (d + 3, 66 + 2 * h, 67 + 2 * h))
a("""
v_mov_b32 v12, 0x0c0c0100
v_mov_b32 v13, 0x01000c0c
v_cndmask_b32 v12, v12, v13, s[74:75]
v_mov_b32 v13, 0x0c0c0302
v_mov_b32 v14, 0x03020c0c
v_cndmask_b32 v13, v13, v14, s[74:75]
v_mov_b32 v14, 0x0c0c0c0c
v_cndmask_b32 v248, v12, v14, s[76:77]
v_cndmask_b32 v249, v13, v14, s[78:79]
v_cndmask_b32 v250, v14, v12, s[76:77]
v_cndmask_b32 v251, v14, v13, s[78:79]
s_or_b32 s9, s6, s8
s_cmp_eq_u32 s9, 0
s_cselect_b32 s9, 0xf149f2ca, 0
v_mov_b32 v252, s9
v_mov_b32 v253, s9
v_mov_b32 v254, s9
v_mov_b32 v255, s9
""")
def S(tau, h, p): return SS + ((tau * 4 + h) * 2 + p) * 4
def smf(d, A, B, C): a("v_mfma_f32_16x16x32_bf16 %s, %s, %s, %s" % (q4(d), q4(A), q4(B), C))
for h in range(4):
    smf(S(1, h, 1), KOP + 32 + 4 * h, QOP + 16 + 4 * h, "0")
    smf(S(1, h, 0), KOP + 16 + 4 * h, QOP + 16 + 4 * h, "0")
for h in range(4):
    smf(S(0, h, 1), KOP + 16 + 4 * h, QOP + 4 * h, "0")
a("s_waitcnt lgkmcnt(0)\ns_barrier")
for h in range(4): a("ds_read_b128 %s, v10 offset:%d" % (q4(KOP + 4 * h), EXCH + h * 1024))
for t in range(5): a("ds_read_b64 %s, v11 offset:%d" % (q2(VOP + 6 * t), EXCH + 4096 + t * 512))
a("""
s_lshl_b32 s9, s6, 3
s_lshl_b32 s10, s8, 1
s_add_u32 s9, s9, s10
s_mul_i32 s9, s9, 20480
s_lshr_b32 s10, s7, 1
s_mul_i32 s10, s10, 5120
s_add_u32 s9, s9, s10
s_mul_i32 s10, s5, %d
s_add_u32 s9, s9, s10
s_and_b32 s10, s7, 1
s_lshl_b32 s11, s10, 11
s_add_u32 s12, s9, s11
s_lshl_b32 s11, s10, 3
s_add_u32 s13, s9, s11
s_add_u32 s13, s13, 4096
s_add_u32 s14, s12, 20480
s_add_u32 s15, s13, 20480
""" % O_BR)
CSC = 0.22360679774997896 * 1.4426950408889634
import struct
def f2u(x): return struct.unpack("<I", struct.pack("<f", x))[0]
a("s_mov_b32 s64, 0x%08x" % f2u(CSC))

def attn_tau(tau):
    E = EE + tau * 8
    for h in range(4):
        for i in range(2):
            cur = S(tau, h, 1) + 2 * i; prv = S(tau, h, 0) + 2 * i
            a("v_cndmask_b32 v6, v%d, v%d, s[74:75]" % (cur, cur + 1))
            a("v_cndmask_b32 v7, v%d, v%d, s[74:75]" % (prv, prv + 1))
            a("v_cndmask_b32 v%d, v7, v6, s[%d:%d]" % (E + i * 4 + h, 76 + 2 * i, 77 + 2 * i))
    def tr4(b):
        a("v_permlane32_swap_b32 v%d, v%d" % (b, b + 2)); a("v_permlane32_swap_b32 v%d, v%d" % (b + 1, b + 3))
        a("v_permlane16_swap_b32 v%d, v%d" % (b, b + 1)); a("v_permlane16_swap_b32 v%d, v%d" % (b + 2, b + 3))
    tr4(E); tr4(E + 4)
    a("v_max3_f32 v6, v%d, v%d, v%d" % (E, E + 1, E + 2))
    a("v_max3_f32 v7, v%d, v%d, v%d" % (E + 3, E + 4, E + 5))
    a("v_max3_f32 v6, v6, v%d, v%d" % (E + 6, E + 7))
    a("v_max_f32 v6, v6, v7")
    a("v_mul_f32 v6, s64, v6")
    for i in range(8): a("v_fma_f32 v%d, v%d, s64, -v6" % (E + i, E + i))
    for i in range(8): a("v_exp_f32 v%d, v%d" % (E + i, E + i))
    a("v_add_f32 v6, v%d, v%d" % (E, E + 1)); a("v_add_f32 v7, v%d, v%d" % (E + 2, E + 3))
    a("v_add_f32 v12, v%d, v%d" % (E + 4, E + 5)); a("v_add_f32 v13, v%d, v%d" % (E + 6, E + 7))
    a("v_add_f32 v6, v6, v7\nv_add_f32 v12, v12, v13\nv_add_f32 v6, v6, v12\nv_rcp_f32 v6, v6")
    for i in range(8): a("v_mul_f32 v%d, v%d, v6" % (E + i, E + i))
    for j in range(4): a("v_cvt_pk_bf16_f32 v%d, v%d, v%d" % (E + j, E + j, E + 4 + j))
    tr4(E)
    P = POP + tau * 16
    for h in range(4):
        for j in range(4): a("v_perm_b32 v%d, v%d, v%d, v%d" % (P + 4 * h + j, E + h, E + h, 248 + j))
    for h in range(4):
        smf(S(tau, h, 0), VOP + 6 * h + 2 * tau, P + 4 * h, "0")
        smf(S(tau, h, 1), VOP + 24 + 2 * tau, P + 4 * h, "0")
def attn_out(tau):
    OP = POP + tau * 16
    for h in range(4):
        cvt(OP + 2 * h, S(tau, h, 0)); cvt(OP + 2 * h + 1, S(tau, h, 0) + 2)
    for h in range(4):
        a("s_mov_b64 exec, s[%d:%d]" % (66 + 2 * h, 67 + 2 * h))
        cvt(OP + 8, S(tau, h, 1)); cvt(OP + 9, S(tau, h, 1) + 2)
    a("s_mov_b64 exec, -1")
    a("buffer_store_dwordx4 %s, v8, s[44:47], s%d offen" % (q4(OP), 12 + 2 * tau))
    a("buffer_store_dwordx4 %s, v8, s[44:47], s%d offen offset:1024" % (q4(OP + 4), 12 + 2 * tau))
    a("buffer_store_dwordx2 %s, v8, s[44:47], s%d offen" % (q2(OP + 8), 13 + 2 * tau))
attn_tau(1)
a("s_waitcnt lgkmcnt(0)")
for h in range(4): smf(S(0, h, 0), KOP + 4 * h, QOP + 4 * h, "v[252:255]")
attn_out(1)
attn_tau(0)
attn_out(0)
stamp(3)
stamp_store(0, "A")
a("s_endpgm")

a.label("k1_B")
main_loop('B', list(range(15)), 2, lambda j: False, "k1_B_loop", accf=acc)
stamp(2)
WP = 16
PK = 66
VT = 86
PH = 98
a("""
v_bfe_u32 v8, v1, 2, 2
v_and_b32 v9, 3, v1
v_mul_u32_u24 v10, 800, v2
v_mad_u32_u24 v10, v8, 40, v10
v_add_u32 v10, %d, v10
v_mov_b32 v11, %d
v_cmp_eq_u32 vcc, v9, v2
v_cndmask_b32 v4, v11, v10, vcc
""" % (WPHI, ZERO))
for t in range(5):
    for c in range(3):
        for hf in range(2 if c < 2 else 1):
            a("ds_read_b64_tr_b16 %s, v4 offset:%d" % (q2(WP + 10 * t + 4 * c + 2 * hf), c * 320 + hf * 160 + t * 8))
a("""
s_lshl_b32 s9, s8, 5
v_add_u32 v12, s9, v3
v_mul_u32_u24 v5, %d, v12
v_mul_u32_u24 v13, 80, v2
v_add_u32 v5, v13, v5
v_mul_u32_u24 v6, %d, v12
v_mad_u32_u24 v6, v2, 48, v6
v_add_u32 v6, %d, v6
v_mov_b32 v%d, 0x3f803f80
v_mov_b32 v%d, 0x3f803f80
s_mov_b32 s64, 0x%08x
s_mov_b32 s65, 0x%08x
""" % (PHI_RS, V_RS, VIM, VT + 10, VT + 11, f2u(1.4426950408889634), f2u(1.4426950408889634)))
def pack20(sec, tau, dst):
    for t in range(5):
        cvt(dst + 2 * t, acc(5 * sec + t, tau)); cvt(dst + 2 * t + 1, acc(5 * sec + t, tau) + 2)
def pmf(sec, srcs):
    for tau in range(2):
        for t in range(5):
            d = acc(5 * sec + t, tau)
            a("v_mfma_f32_16x16x16_bf16 %s, %s, %s, 0" % (q4(d), q2(WP + 10 * t + 8), q2(srcs + 10 * tau + 8)))
    for tau in range(2):
        for t in range(5):
            d = acc(5 * sec + t, tau)
            smf(d, WP + 10 * t, srcs + 10 * tau, q4(d))
            smf(d, WP + 10 * t + 4, srcs + 10 * tau + 4, q4(d))
def softmax2(sec, tau, dst, tmp):
    p = [acc(5 * sec + t, tau) + r for t in range(5) for r in range(4)]
    a("v_max3_f32 v8, v%d, v%d, v%d" % (p[0], p[1], p[2])); a("v_min3_f32 v9, v%d, v%d, v%d" % (p[0], p[1], p[2]))
    for i in range(3, 19, 2):
        a("v_max3_f32 v8, v8, v%d, v%d" % (p[i], p[i + 1])); a("v_min3_f32 v9, v9, v%d, v%d" % (p[i], p[i + 1]))
    a("v_max_f32 v8, v8, v%d\nv_min_f32 v9, v9, v%d" % (p[19], p[19]))
    a("v_mul_f32 v8, s64, v8\nv_mul_f32 v10, s64, v9")
    for i in range(0, 20, 2):
        a("v_pk_fma_f32 %s, %s, s[64:65], v[10:11] op_sel_hi:[1,1,0] neg_lo:[1,0,0] neg_hi:[1,0,0]" % (q2(tmp + i), q2(p[i])))
        a("v_pk_fma_f32 %s, %s, s[64:65], v[8:9] op_sel_hi:[1,1,0] neg_lo:[0,0,1] neg_hi:[0,0,1]" % (q2(p[i]), q2(p[i])))
    for i in range(20):
        a("v_exp_f32 v%d, v%d" % (p[i], p[i])); a("v_exp_f32 v%d, v%d" % (tmp + i, tmp + i))
    a("v_pk_add_f32 v[8:9], %s, %s" % (q2(p[0]), q2(p[2]))); a("v_pk_add_f32 v[10:11], %s, %s" % (q2(tmp), q2(tmp + 2)))
    for i in range(4, 20, 2):
        a("v_pk_add_f32 v[8:9], v[8:9], %s" % q2(p[i])); a("v_pk_add_f32 v[10:11], v[10:11], %s" % q2(tmp + i))
    a("v_add_f32 v8, v8, v9\nv_add_f32 v10, v10, v11\nv_rcp_f32 v8, v8\nv_rcp_f32 v10, v10")
    for i in range(0, 20, 2):
        a("v_pk_mul_f32 %s, %s, v[8:9] op_sel_hi:[1,0]" % (q2(p[i]), q2(p[i])))
        a("v_pk_mul_f32 %s, %s, v[10:11] op_sel_hi:[1,0]" % (q2(tmp + i), q2(tmp + i)))
    for i in range(0, 20, 2):
        cvt(dst + i // 2, p[i]); cvt(dst + 10 + i // 2, tmp + i)
for tau in range(2): pack20(1, tau, PK + 10 * tau)
a("v_mov_b32 v%d, 0x3f803f80\nv_mov_b32 v%d, 0x3f803f80" % (PH + 10, PH + 11))
for tau in range(2):
    vt = VT if tau == 0 else PH
    pack20(2, tau, vt)
    for m in range(3): a("ds_write_b128 v6, %s offset:%d" % (q4(vt + 4 * m), tau * 16 * V_RS + 16 * m))
a("s_waitcnt lgkmcnt(6)")
pmf(1, PK)
TMPM = acc(10, 0)
for tau in range(2): pack20(0, tau, PK + 10 * tau)
DBG = "--dbg" in sys.argv
def dump(regs, slot):
    if not DBG: return
    a("v_lshlrev_b32 v14, 2, v1\ns_lshl_b32 s9, s2, 2\ns_add_u32 s9, s9, s8\ns_lshl_b32 s9, s9, 3\ns_add_u32 s9, s9, %d\ns_lshl_b32 s9, s9, 13\ns_add_u32 s9, s9, %d" % (slot, 32 << 20))
    for i, r in enumerate(regs):
        a("buffer_store_dword v%d, v14, s[44:47], s9 offen" % r)
        a("s_add_u32 s9, s9, 256")
    a("s_waitcnt vmcnt(0)")
for tau in range(2):
    dump([acc(5 + t, tau) + r for t in range(5) for r in range(4)], tau)
dump(list(range(WP, WP + 30)), 4)
for tau in range(2):
    softmax2(1, tau, PH, TMPM)
    dump(list(range(PH, PH + 20)), 2 + tau)
    for m in range(5): a("ds_write_b128 v5, %s offset:%d" % (q4(PH + 4 * m), tau * 16 * PHI_RS + 16 * m))
    if tau == 0: pmf(0, PK)
a("s_waitcnt lgkmcnt(0)\ns_barrier")
stamp(3)
softmax2(0, 0, PH, TMPM)
softmax2(0, 1, PK, TMPM)
stamp(4)
a("""
v_lshrrev_b32 v8, 2, v3
v_and_b32 v9, 3, v3
v_mul_u32_u24 v10, 1680, v2
v_add_u32 v10, %d, v10
v_mul_u32_u24 v11, 80, v9
v_add_u32 v11, v11, v10
v_add_u32 v10, 1600, v10
v_mov_b32 v12, %d
v_cmp_eq_u32 vcc, v8, v2
v_cndmask_b32 v4, v12, v11, vcc
v_cndmask_b32 v5, v12, v10, vcc
v_lshlrev_b32 v8, 4, v1
s_lshl_b32 s9, s6, 3
s_lshl_b32 s10, s8, 1
s_add_u32 s9, s9, s10
s_mul_i32 s9, s9, 20480
s_lshr_b32 s10, s7, 1
s_mul_i32 s10, s10, 5120
s_add_u32 s9, s9, s10
s_add_u32 s9, s9, %d
s_and_b32 s10, s7, 1
s_lshl_b32 s11, s10, 11
s_add_u32 s12, s9, s11
s_lshl_b32 s11, s10, 3
s_add_u32 s13, s9, s11
s_add_u32 s13, s13, 4096
s_add_u32 s14, s12, 20480
s_add_u32 s15, s13, 20480
s_barrier
""" % (KVI, ZERO, O_BR))
stamp(5)
PHQ = [PH, PK]
def oacc(t, tau): return ACC + (t * 2 + tau) * 4
FR = 16
Q = LgkmQ(15)
its = [(t, c) for t in (5, 0, 1, 2, 3, 4) for c in range(5)]
def kread(m):
    t, c = its[m]
    if t < 5: a("ds_read_b128 %s, v4 offset:%d" % (q4(FR + (m % 12) * 4), t * 320 + c * 16))
    else: a("ds_read_b128 %s, v5 offset:%d" % (q4(FR + (m % 12) * 4), c * 16))
    Q.push(m)
for m in range(10): kread(m)
for m in range(30):
    t, c = its[m]
    if m + 10 < 30: kread(m + 10)
    a("s_waitcnt lgkmcnt(%d)" % Q.wait(m))
    for tau in range(2):
        d = oacc(t, tau)
        smf(d, FR + (m % 12) * 4, PHQ[tau] + 4 * c, "0" if c == 0 else q4(d))
for tau in range(2):
    a("v_add_f32 v%d, 0x%08x, v%d" % (10 + 2 * tau, f2u(1e-6), oacc(5, tau)))
    a("v_rcp_f32 v%d, v%d" % (10 + 2 * tau, 10 + 2 * tau))
for tau in range(2):
    OP = 64 + tau * 12
    for t in range(5):
        for i in range(2):
            r = oacc(t, tau) + 2 * i
            a("v_pk_mul_f32 %s, %s, %s op_sel_hi:[1,0]" % (q2(r), q2(r), q2(10 + 2 * tau)))
            cvt(OP + 2 * t + i, r)
    a("buffer_store_dwordx4 %s, v8, s[44:47], s%d offen" % (q4(OP), 12 + 2 * tau))
    a("buffer_store_dwordx4 %s, v8, s[44:47], s%d offen offset:1024" % (q4(OP + 4), 12 + 2 * tau))
    a("buffer_store_dwordx2 %s, v8, s[44:47], s%d offen" % (q2(OP + 8), 13 + 2 * tau))
stamp(6)
stamp_store(0, "B")
a("s_endpgm")

a.label("k1_helper")
a("s_cmp_ge_u32 s8, 6\ns_cbranch_scc1 k1_h67")
a("""
v_lshrrev_b32 v8, 3, v1
v_mul_u32_u24 v8, 1280, v8
v_and_b32 v9, 7, v1
v_xor_b32 v9, v9, v2
v_lshl_add_u32 v4, v9, 4, v8
v_xor_b32 v5, 64, v4
v_cmp_le_u32 vcc, 30, v1
v_cndmask_b32 v8, 0, 1, vcc
v_mul_u32_u24 v9, 30, v8
v_sub_u32 v9, v1, v9
v_mul_u32_u24 v10, 26, v9
v_lshrrev_b32 v10, 8, v10
v_mul_u32_u24 v11, 10, v10
v_sub_u32 v11, v9, v11
v_mul_u32_u24 v8, 3840, v8
v_mul_u32_u24 v10, 1280, v10
v_lshlrev_b32 v11, 4, v11
v_add3_u32 v6, v8, v10, v11
s_mul_i32 s9, s7, 160
v_add_u32 v6, s9, v6
s_mul_i32 s57, s6, 163840
s_sub_u32 s56, s57, 20480
s_cmp_eq_u32 s6, 0
s_cselect_b32 s56, 0, s56
s_mov_b32 s66, -1
s_mov_b32 s67, 0x0fffffff
""")
if ROT:
    a("""
    s_and_b32 s62, s6, 7
    s_and_b32 s9, s7, 3
    s_lshl_b32 s9, s9, 1
    s_add_u32 s62, s62, s9
    s_cmp_ge_u32 s62, 10
    s_cselect_b32 s9, 10, 0
    s_sub_u32 s62, s62, s9
    """)
else:
    a("s_mov_b32 s62, 0")
def swap23(x): return (x & ~12) | ((x & 4) << 1) | ((x & 8) >> 1)
def issue_stage(xs, ws_):
    a("s_lshl_b32 s63, s62, 7\ns_mul_i32 s64, s62, %d" % (64 * 3840))
    for i in xs:
        base, k = ("s56", i) if i < 2 else ("s57", i - 2)
        a("s_add_u32 s61, %s, s63" % base)
        if k: a("s_add_u32 s61, s61, %d" % (k * 10240))
        a("s_add_u32 m0, s59, %d" % (i * 1024))
        a("buffer_load_dwordx4 v%d, s[36:39], s61 offen lds" % (4 + (i & 1)))
    a("s_mov_b64 exec, s[66:67]")
    for i in ws_:
        a("s_add_u32 s61, s64, %d" % (swap23(2 * i) * 3840))
        a("s_add_u32 m0, s59, %d" % (XB + i * 960))
        a("buffer_load_dwordx4 v6, s[40:43], s61 offen lds")
    a("s_mov_b64 exec, -1")
    a("""
    s_add_u32 s62, s62, 1
    s_cmp_eq_u32 s62, 10
    s_cselect_b32 s62, 0, s62
    s_add_u32 s59, s59, %d
    s_cmp_eq_u32 s59, %d
    s_cselect_b32 s59, 0, s59
    """ % (SLOT, 3 * SLOT))
def loader(lbl, xs, ws_, pre=None):
    n = len(xs) + len(ws_)
    a("s_mov_b32 s59, 0\ns_mov_b32 s58, 0")
    a.label(lbl + "_p")
    issue_stage(xs, ws_)
    if pre: pre()
    a("s_add_u32 s58, s58, 1\ns_cmp_lt_u32 s58, 3\ns_cbranch_scc1 %s_p" % lbl)
    a("s_waitcnt vmcnt(%d)\ns_barrier" % (2 * n))
    stamp(1)
    a("s_waitcnt vmcnt(%d)\ns_barrier" % n)
    a("s_mov_b32 s58, 3")
    a.label(lbl + "_l")
    issue_stage(xs, ws_)
    a("s_waitcnt vmcnt(%d)\ns_barrier" % n)
    a("s_add_u32 s58, s58, 1\ns_cmp_lt_u32 s58, 10\ns_cbranch_scc1 %s_l" % lbl)
    a("s_waitcnt vmcnt(0)\ns_barrier")
    stamp(2)
    a("s_barrier")
a("s_cmp_eq_u32 s8, 4\ns_cbranch_scc0 k1_l5")
a("s_cmp_eq_u32 s5, 0\ns_cbranch_scc0 k1_l4B")
loader("k1_l4A", list(range(18)), list(range(8)))
stamp_store(0, "l4A")
a("s_endpgm")
a.label("k1_l4B")
loader("k1_l4Bx", list(range(2, 18)), list(range(8)))
a("s_branch k1_kv")
a.label("k1_l5")
loader("k1_l5x", [], list(range(8, 32)))
a("s_cmp_eq_u32 s5, 0\ns_cbranch_scc0 k1_kv")
stamp_store(0, "l5")
a("s_endpgm")

a.label("k1_h67")
a("s_cmp_eq_u32 s5, 0\ns_cbranch_scc0 k1_h67B")
lane_parts(); w_addrs(); x_addrs("0")
for r in range(ACC, ACC + 20): a("v_mov_b32 v%d, 0" % r)
hacc = lambda j, t: ACC + (j % 5) * 4
a("s_cmp_eq_u32 s8, 6\ns_cbranch_scc0 k1_h7A")
main_loop('A', list(range(5, 10)), 1, lambda j: False, "k1_h6_loop", D=4, MB=7, accf=hacc, xk1_at=1)
a("v_lshlrev_b32 v8, 4, v1")
packK(lambda t: hacc(t, 0), 64)
for h in range(4): a("ds_write_b128 v8, %s offset:%d" % (q4(64 + 4 * h), EXCH + h * 1024))
a("s_waitcnt lgkmcnt(0)\ns_barrier\ns_endpgm")
a.label("k1_h7A")
main_loop('A', list(range(10, 15)), 1, lambda j: True, "k1_h7_loop", D=4, MB=7, accf=hacc, xk1_at=1)
a("v_lshlrev_b32 v8, 3, v1")
for t in range(5):
    cvt(64 + 2 * t, hacc(t, 0)); cvt(65 + 2 * t, hacc(t, 0) + 2)
for t in range(5): a("ds_write_b64 v8, %s offset:%d" % (q2(64 + 2 * t), EXCH + 4096 + t * 512))
a("s_waitcnt lgkmcnt(0)\ns_barrier\ns_endpgm")

a.label("k1_h67B")
a("""
v_lshlrev_b32 v8, 4, v1
v_mov_b32 v16, 0
v_mov_b32 v17, 0
v_mov_b32 v18, 0
v_mov_b32 v19, 0
s_cmp_eq_u32 s8, 6
s_cbranch_scc0 k1_h7B
s_mul_i32 s61, s7, 3200
""")
for i in range(4):
    a("s_mov_b32 m0, %d" % (WPHI + i * 1024))
    a("buffer_load_dwordx4 v8, s[52:55], s61 offen lds")
    if i < 3: a("s_add_u32 s61, s61, 1024")
a("s_branch k1_h67Bz")
a.label("k1_h7B")
a("v_add_u32 v9, %d, v8\nds_write_b128 v9, v[16:19]\nds_write_b128 v9, v[16:19] offset:1024" % ZERO)
a.label("k1_h67Bz")
a("""
s_lshl_b32 s9, s7, 2
s_add_u32 s9, s9, 128
v_mov_b32 v9, s9
s_cmp_eq_u32 s6, 0
s_cbranch_scc0 k1_h67Bn
s_mul_i32 s61, s7, 24576
s_sub_u32 s9, s8, 6
s_mul_i32 s9, s9, 12288
s_add_u32 s61, s61, s9
s_add_u32 s61, s61, %d
""" % KVSUM)
for i in range(12):
    a("buffer_store_dwordx4 v[16:19], v8, s[44:47], s61 offen sc1")
    if i < 11: a("s_add_u32 s61, s61, 1024")
a("""
s_waitcnt vmcnt(0)
v_mov_b32 v10, 1
s_mov_b64 exec, 1
buffer_atomic_add v10, v9, s[48:51], 0 offen sc1
s_mov_b64 exec, -1
""")
a.label("k1_h67Bn")
a("s_waitcnt vmcnt(0) lgkmcnt(0)")
for i in range(10): a("s_barrier")
a("s_mov_b32 s10, 0")
a.label("k1_zpoll")
a("""
buffer_load_dword v10, v9, s[48:51], 0 offen sc1
s_waitcnt vmcnt(0)
v_readfirstlane_b32 s9, v10
s_cmp_ge_u32 s9, 2
s_cbranch_scc1 k1_zok
s_sleep 4
s_add_u32 s10, s10, 1
s_cmp_lt_u32 s10, 0x40000
s_cbranch_scc1 k1_zpoll
""")
a.label("k1_zok")
a("s_barrier")
a.label("k1_kv")
lane_parts()
a("""
s_sub_u32 s10, s8, 4
s_mul_i32 s9, s10, 80
v_mul_u32_u24 v4, %d, v10
v_lshl_add_u32 v4, v9, 3, v4
v_add_u32 v4, s9, v4
s_mul_i32 s9, s10, 48
s_add_u32 s9, s9, %d
v_mul_u32_u24 v5, %d, v10
v_lshl_add_u32 v5, v9, 3, v5
v_add_u32 v5, s9, v5
v_lshlrev_b32 v6, 2, v1
s_lshl_b32 s11, s7, 2
s_add_u32 s11, s11, s10
s_mul_i32 s61, s11, 6144
s_add_u32 s61, s61, %d
s_add_u32 s62, s61, 4096
s_lshl_b32 s11, s11, 2
v_mov_b32 v7, s11
s_mul_i32 s9, s10, 1680
s_add_u32 s9, s9, %d
v_mul_u32_u24 v12, 80, v3
v_lshl_add_u32 v12, v2, 3, v12
v_add_u32 v12, s9, v12
s_mov_b32 s66, 0x001f001f
s_mov_b32 s67, 0x001f001f
s_mov_b32 s68, -1
s_mov_b32 s69, 0
s_mov_b32 s70, 0x001f001f
s_mov_b32 s71, 0
s_barrier
""" % (PHI_RS, VIM, V_RS, KVSUM, KVI))
stamp(3)
KA = 128
for kap in range(4):
    base = 16 + (kap % 2) * 20
    for ft in range(3):
        for hf in range(2): a("ds_read_b64_tr_b16 %s, v4 offset:%d" % (q2(base + 4 * ft + 2 * hf), (32 * kap + 8 * hf) * PHI_RS + ft * 32))
    for dt in range(2):
        for hf in range(2): a("ds_read_b64_tr_b16 %s, v5 offset:%d" % (q2(base + 12 + 4 * dt + 2 * hf), (32 * kap + 8 * hf) * V_RS + dt * 32))
    if kap >= 1:
        pb = 16 + ((kap - 1) % 2) * 20
        a("s_waitcnt lgkmcnt(10)")
        for ft in range(3):
            for dt in range(2):
                d = KA + (ft * 2 + dt) * 4
                smf(d, pb + 4 * ft, pb + 12 + 4 * dt, "0" if kap == 1 else q4(d))
a("s_waitcnt lgkmcnt(0)")
for ft in range(3):
    for dt in range(2):
        d = KA + (ft * 2 + dt) * 4
        smf(d, 36 + 4 * ft, 36 + 12 + 4 * dt, q4(d))
def tile_mask(ft, dt):
    if ft < 2: return "-1" if dt == 0 else "s[66:67]"
    return "s[68:69]" if dt == 0 else "s[70:71]"
def kv_off(i): return ("s61", i * 256) if i < 16 else ("s62", (i - 16) * 256)
for ft in range(3):
    for dt in range(2):
        a("s_mov_b64 exec, %s" % tile_mask(ft, dt))
        for r in range(4):
            i = (ft * 2 + dt) * 4 + r
            so, off = kv_off(i)
            a("buffer_atomic_add_f32 v%d, v6, s[44:47], %s offen offset:%d sc0 sc1" % (KA + i, so, off))
a("""
s_mov_b64 exec, 1
v_mov_b32 v10, 1
s_waitcnt vmcnt(0)
""")
stamp(4)
a("""
buffer_atomic_add v10, v7, s[48:51], 0 offen sc1
""")
a("s_mov_b32 s10, 0")
a.label("k1_kpoll")
a("""
buffer_load_dword v10, v7, s[48:51], 0 offen sc1
s_waitcnt vmcnt(0)
v_readfirstlane_b32 s9, v10
s_cmp_ge_u32 s9, 16
s_cbranch_scc1 k1_kok
s_sleep 2
s_add_u32 s10, s10, 1
s_cmp_lt_u32 s10, 0x40000
s_cbranch_scc1 k1_kpoll
""")
a.label("k1_kok")
stamp(5)
a("s_mov_b64 exec, -1")
for i in range(24):
    so, off = kv_off(i)
    a("buffer_load_dword v%d, v6, s[44:47], %s offen offset:%d sc1" % (KA + i, so, off))
a("s_waitcnt vmcnt(0)")
for i in range(0, 24, 2): cvt(16 + i // 2, KA + i)
for ft in range(3):
    for dt in range(2):
        a("s_mov_b64 exec, %s" % tile_mask(ft, dt))
        a("ds_write_b64 v12, %s offset:%d" % (q2(16 + (ft * 2 + dt) * 2), dt * 1280 + ft * 32))
a("s_mov_b64 exec, -1\ns_waitcnt lgkmcnt(0)\ns_barrier")
stamp(6)
stamp_store(0, "kv")
a.label("k1_kernel_end")
a("s_endpgm")

prologue("k2_kernel")
a("""
s_waitcnt lgkmcnt(0)
s_cmp_eq_u32 s5, 0
s_cselect_b32 s40, s20, s28
s_cselect_b32 s41, s21, s29
s_mov_b32 s42, 819200
s_mov_b32 s43, 0x20000
""")
srd(44, 34, WS_BYTES)
srd(36, 30, 2048 * 2560)
a("s_cmp_ge_u32 s8, 4\ns_cbranch_scc1 k2_loader")
OF = 88; A2 = 8; R2 = 48
a("""
v_lshlrev_b32 v4, 4, v1
s_lshl_b32 s9, s6, 3
s_lshl_b32 s10, s8, 1
s_add_u32 s9, s9, s10
s_mul_i32 s9, s9, 20480
s_mul_i32 s10, s5, %d
s_add_u32 s12, s9, s10
""" % O_BR)
VQ = LgkmQ(63)
def oload(P):
    for c in range(5):
        for tau in range(2):
            ch = 5 * P + c
            a("s_add_u32 s13, s12, %d" % (tau * 20480 + ch * 1024))
            a("buffer_load_dwordx4 %s, v4, s[44:47], s13 offen" % q4(OF + (ch * 2 + tau) * 4)); VQ.push((ch, tau))
oload(0); oload(1)
a("""
v_bfe_u32 v5, v1, 2, 2
v_and_b32 v6, 3, v1
v_mad_u32_u24 v7, v2, 20, v5
v_mul_u32_u24 v7, 160, v7
v_lshl_add_u32 v252, v6, 3, v7
v_lshl_add_u32 v7, v2, 2, v5
v_mul_u32_u24 v7, 160, v7
v_lshl_add_u32 v253, v6, 3, v7
s_cmp_eq_u32 s5, 0
s_cselect_b64 vcc, -1, 0
s_mov_b32 s14, %d
s_cselect_b32 s14, %d, s14
s_mov_b32 s15, %d
s_cselect_b32 s15, %d, s15
v_cndmask_b32 v248, v252, v253, vcc
v_add_u32 v249, s15, v248
v_add_u32 v250, s14, v248
v_add_u32 v251, s14, v249
""" % (8 * 160, 40 * 160, 4 * 160, 20 * 160))
for r in range(A2, A2 + 40): a("v_mov_b32 v%d, 0" % r)
def acc2(t, tau): return A2 + (t * 2 + tau) * 4
Q = LgkmQ(15)
its = [(P, c, t) for P in range(4) for c in range(5) for t in range(5)]
def w2read(m):
    P, c, t = its[m]
    for hf in range(2):
        if c < 4:
            G, p = divmod(c, 2)
            reg = 248 + p * 2 + hf; off = G * 80 * 160 + 32 * t
        else:
            reg = 252; off = (80 * hf + 16) * 160 + 32 * t
        a("ds_read_b64_tr_b16 %s, v%d offset:%d" % (q2(R2 + (m % 10) * 4 + 2 * hf), reg, off)); Q.push((m, hf))
D2 = 6
for P in range(4):
    a("s_barrier")
    if P == 0: stamp(1)
    if P > 0:
        for r in range(248, 253): a("v_add_u32 v%d, 25600, v%d" % (r, r))
    if P + 2 < 4: oload(P + 2)
    for m in range(25 * P, 25 * P + D2): w2read(m)
    for m in range(25 * P, 25 * P + 25):
        _, c, t = its[m]
        if m + D2 < 25 * P + 25: w2read(m + D2)
        if t == 0:
            w = VQ.wait((5 * P + c, 1))
            if w is not None: a("s_waitcnt vmcnt(%d)" % w)
        a("s_waitcnt lgkmcnt(%d)" % Q.wait((m, 1)))
        for tau in range(2):
            d = acc2(t, tau)
            smf(d, R2 + (m % 10) * 4, OF + ((5 * P + c) * 2 + tau) * 4, q4(d))
stamp(2)
a("""
s_lshl_b32 s9, s6, 7
s_lshl_b32 s10, s8, 5
s_add_u32 s9, s9, s10
v_add_u32 v4, s9, v3
v_mul_u32_u24 v4, 2560, v4
s_mul_i32 s9, s5, 1280
s_mul_i32 s10, s7, 160
s_add_u32 s12, s9, s10
s_add_u32 s13, s12, 40960
v_and_b32 v5, 1, v2
v_lshlrev_b32 v5, 5, v5
v_lshrrev_b32 v6, 1, v2
v_lshl_add_u32 v5, v6, 4, v5
v_add_u32 v5, v5, v4
v_lshl_add_u32 v6, v2, 3, v4
""")
for tau in range(2):
    OP = R2 + tau * 12
    for t in range(5):
        cvt(OP + 2 * t, acc2(t, tau)); cvt(OP + 2 * t + 1, acc2(t, tau) + 2)
    for p in range(2):
        a("v_permlane16_swap_b32 v%d, v%d" % (OP + 4 * p, OP + 4 * p + 2))
        a("v_permlane16_swap_b32 v%d, v%d" % (OP + 4 * p + 1, OP + 4 * p + 3))
    for p in range(2):
        a("buffer_store_dwordx4 %s, v5, s[36:39], s%d offen offset:%d" % (q4(OP + 4 * p), 12 + tau, 64 * p))
    a("buffer_store_dwordx2 %s, v6, s[36:39], s%d offen offset:128" % (q2(OP + 8), 12 + tau))
stamp(3)
stamp_store(1, "k2")
a("s_endpgm")
a.label("k2_loader")
a("s_mul_i32 s9, s7, 160\ns_mov_b32 s10, 0x1999999a")
for e in range(5):
    a("""
    v_add_u32 v4, %d, v1
    v_mul_hi_u32 v5, v4, s10
    v_mul_u32_u24 v6, 10, v5
    v_sub_u32 v6, v4, v6
    v_mul_u32_u24 v5, 1280, v5
    v_lshl_add_u32 v5, v6, 4, v5
    v_add_u32 v%d, s9, v5
    """ % (64 * e, 10 + e))
for lw in range(4):
    if lw < 3: a("s_cmp_eq_u32 s8, %d\ns_cbranch_scc0 k2_l%d" % (4 + lw, lw + 1))
    cnt = []
    for P in range(4):
        k = 0
        for q in range(25):
            if (q + P) % 4 != lw: continue
            b = 5 * P + q // 5; e = q % 5
            a("s_mov_b32 s13, %d\ns_mov_b32 m0, %d" % (b * 32 * 1280, b * 5120 + e * 1024))
            a("buffer_load_dwordx4 v%d, s[40:43], s13 offen lds" % (10 + e)); k += 1
        cnt.append(k)
    for P in range(4):
        a("s_waitcnt vmcnt(%d)\ns_barrier" % sum(cnt[P + 1:]))
    a("s_endpgm")
    if lw < 3: a.label("k2_l%d" % (lw + 1))
a.label("k2_kernel_end")
a("s_endpgm")

a.raw('.section .rodata,"a"')
for k in ("k1_kernel", "k2_kernel"):
    a.raw(""".p2align 6
.amdhsa_kernel %s
  .amdhsa_next_free_vgpr 256
  .amdhsa_next_free_sgpr 102
  .amdhsa_accum_offset 256
  .amdhsa_group_segment_fixed_size 0
  .amdhsa_kernarg_size 80
  .amdhsa_user_sgpr_count 2
  .amdhsa_user_sgpr_kernarg_segment_ptr 1
  .amdhsa_system_sgpr_workgroup_id_x 1
.end_amdhsa_kernel""" % k)
out = [x for x in sys.argv[1:] if not x.startswith("--")][0]
open(out, "w").write(a.finish())
```

```python
import sys, struct
from asmlib import Asm, LgkmQ, Ins

NAME = "concat_heads__sliding_local_dilated__linear_kernel_hedgehog__prompt"
KN = NAME + "_kernel"
OPT = lambda o: ("--" + o) in sys.argv
STAMP = OPT("stamp"); ROT = not OPT("norot"); NT = " nt" if OPT("nt") else ""
def f2u(x): return struct.unpack("<I", struct.pack("<f", x))[0]

FLG = 163584
F_FULL = FLG + 0
F_WO = FLG + 8
F_FREE = FLG + 16
F_XR = FLG + 48
F_KVR = FLG + 64
F_KVD = FLG + 72
F_ODONE = FLG + 80
F_ORDY = FLG + 96
A_SLOT = 49152; A_XB = 18432; SEC = 10240
A_EXCH = 49152
A_WO = [75776, 101376, 126976, 0]
B_S1 = 36864; B_XB = 16384
B_T = [36864, 63488, 10240]
IMG = 90112; IMG_RS = 544; IMG_V = 320
WPHI = 159744; ZERO = 162944
B_WO = [102624, 128224, 63488, 10240]
O_BR = 64 * 40960
KVSUM = 8 << 20
CNT = 9 << 20
STAMP_OFF = 16 << 20
WS_BYTES = 268435456
SPIN = 0x100000

a = Asm()
hdr = open("cdna_kernels/%s.s.ref" % NAME).read().split("; Override launch")[0]
a.raw(hdr.rstrip())
a.raw("; @launch grid=(256,1,1) block=(512,1,1) lds=163840")
a.raw('.amdgcn_target "amdgcn-amd-amdhsa--gfx950"')
a.raw(".text")
def q4(r): return "v[%d:%d]" % (r, r + 3)
def q2(r): return "v[%d:%d]" % (r, r + 1)
def srd(n, lo, nbytes):
    a("s_mov_b32 s%d, s%d\ns_mov_b32 s%d, s%d\ns_mov_b32 s%d, %d\ns_mov_b32 s%d, 0x20000" % (n, lo, n + 1, lo + 1, n + 2, nbytes, n + 3))
def stamp(i):
    if STAMP: a("s_memtime s[%d:%d]" % (80 + 2 * i, 81 + 2 * i))
def stamp_store():
    if not STAMP: return
    a("s_waitcnt lgkmcnt(0)")
    for i in range(1, 10): a("s_sub_u32 s%d, s%d, s80" % (80 + 2 * i, 80 + 2 * i))
    a("s_mov_b64 exec, 1")
    for i in range(10): a("v_mov_b32 v%d, s%d" % (100 + i, 80 + 2 * i))
    a("v_mov_b32 v110, 0\nv_mov_b32 v111, 0")
    a("s_lshl_b32 s9, s2, 3\ns_add_u32 s9, s9, s8\ns_lshl_b32 s9, s9, 6\ns_add_u32 s9, s9, %d" % STAMP_OFF)
    a("v_mov_b32 v112, 0")
    a("buffer_store_dwordx4 v[100:103], v112, s[44:47], s9 offen")
    a("buffer_store_dwordx4 v[104:107], v112, s[44:47], s9 offen offset:16")
    a("buffer_store_dwordx4 v[108:111], v112, s[44:47], s9 offen offset:32")
uid = [0]
def L(p):
    uid[0] += 1; return "%s_%d" % (p, uid[0])
def cvt(d, s, o=None): (o or a)("v_cvt_pk_bf16_f32 v%d, v%d, v%d" % (d, s, s + 1))
def smf(d, A, B, C, o=None): (o or a)("v_mfma_f32_16x16x32_bf16 %s, %s, %s, %s" % (q4(d), q4(A), q4(B), C))
def merge(streams):
    its = [list(s.items) for s in streams]
    while any(its):
        for it in its:
            if it: a.items.append(it.pop(0))

def lds_wait(off, nwords, thr, vt, vz="v0", sleep=1):
    top = L("lw"); ok = L("lwok")
    if vz == "v0": off -= FLG
    a("s_mov_b32 s14, 0")
    a.label(top)
    if nwords == 1: a("ds_read_b32 v%d, %s offset:%d" % (vt, vz, off))
    elif nwords == 2: a("ds_read_b64 %s, %s offset:%d" % (q2(vt), vz, off))
    elif nwords == 4: a("ds_read_b128 %s, %s offset:%d" % (q4(vt), vz, off))
    elif nwords == 6:
        a("ds_read_b128 %s, %s offset:%d" % (q4(vt), vz, off)); a("ds_read_b64 %s, %s offset:%d" % (q2(vt + 4), vz, off + 16))
    a("s_waitcnt lgkmcnt(0)")
    if nwords == 2: a("v_min_u32 v%d, v%d, v%d" % (vt, vt, vt + 1))
    if nwords >= 4:
        a("v_min3_u32 v%d, v%d, v%d, v%d" % (vt, vt, vt + 1, vt + 2)); a("v_min_u32 v%d, v%d, v%d" % (vt, vt, vt + 3))
    if nwords == 6: a("v_min3_u32 v%d, v%d, v%d, v%d" % (vt, vt, vt + 4, vt + 5))
    a("v_readfirstlane_b32 s9, v%d" % vt)
    a("s_cmp_ge_u32 s9, %s" % thr)
    a("s_cbranch_scc1 %s" % ok)
    a("s_sleep %d\ns_add_u32 s14, s14, 1\ns_cmp_lt_u32 s14, %d\ns_cbranch_scc1 %s" % (sleep, SPIN, top))
    a.label(ok)
def glb_wait(srdr, voff, soff, thr, vt, sleep=4):
    top = L("gw"); ok = L("gwok")
    a("s_mov_b32 s14, 0")
    a.label(top)
    a("buffer_load_dword v%d, %s, %s, %s offen sc1" % (vt, voff, srdr, soff))
    a("s_waitcnt vmcnt(0)\nv_readfirstlane_b32 s9, v%d\ns_cmp_ge_u32 s9, %s\ns_cbranch_scc1 %s" % (vt, thr, ok))
    a("s_sleep %d\ns_add_u32 s14, s14, 1\ns_cmp_lt_u32 s14, %d\ns_cbranch_scc1 %s" % (sleep, SPIN // 16, top))
    a.label(ok)

a.raw(".globl %s\n.p2align 8\n.type %s,@function" % (KN, KN))
a.label(KN)
a("s_cmp_ge_u32 s2, 256\ns_cbranch_scc1 k_end")
if STAMP:
    for i in range(10): a("s_mov_b64 s[%d:%d], 0" % (80 + 2 * i, 81 + 2 * i))
stamp(0)
a("""
s_load_dwordx16 s[16:31], s[0:1], 0
s_load_dwordx4 s[32:35], s[0:1], 64
s_and_b32 s3, s2, 7
s_lshr_b32 s4, s2, 3
s_lshr_b32 s5, s3, 2
s_and_b32 s6, s3, 1
s_lshl_b32 s6, s6, 3
s_and_b32 s9, s4, 7
s_add_u32 s6, s6, s9
s_bfe_u32 s7, s3, 0x10001
s_lshl_b32 s7, s7, 2
s_lshr_b32 s9, s4, 3
s_add_u32 s7, s7, s9
v_lshrrev_b32 v1, 6, v0
v_readfirstlane_b32 s8, v1
v_and_b32 v1, 63, v0
v_lshrrev_b32 v2, 4, v1
v_and_b32 v3, 15, v1
v_mov_b32 v15, 0
v_mov_b32 v0, %d
""" % FLG)
def srds():
    a("""
    s_waitcnt lgkmcnt(0)
    s_cmp_eq_u32 s5, 0
    s_cselect_b32 s36, s16, s22
    s_cselect_b32 s37, s17, s23
    s_mov_b32 s38, 2621440
    s_mov_b32 s39, 0x20000
    s_cselect_b32 s40, s18, s24
    s_cselect_b32 s41, s19, s25
    s_mov_b32 s42, 2457600
    s_mov_b32 s43, 0x20000
    s_cselect_b32 s56, s20, s28
    s_cselect_b32 s57, s21, s29
    s_mov_b32 s58, 819200
    s_mov_b32 s59, 0x20000
    """)
    srd(44, 34, WS_BYTES); srd(48, 32, 256); srd(52, 26, 25600); srd(60, 30, 2048 * 2560)
a("s_cmp_ge_u32 s8, 6\ns_cbranch_scc1 k_h67\ns_cmp_ge_u32 s8, 4\ns_cbranch_scc1 k_loader")

def lane_parts():
    a("""
    v_bfe_u32 v8, v1, 2, 2
    v_and_b32 v9, 3, v1
    v_lshrrev_b32 v10, 1, v2
    v_lshlrev_b32 v10, 4, v10
    v_and_b32 v11, 1, v2
    v_lshl_add_u32 v10, v11, 2, v10
    v_add_u32 v10, v10, v8
    """)
def w_addrs():
    a("""
    v_mul_u32_u24 v11, 160, v10
    v_mad_u32_u24 v4, v9, 40, v11
    v_lshl_add_u32 v5, v9, 3, v11
    """)
def x_addrs(rowbase):
    a("""
    v_lshrrev_b32 v11, 1, v3
    v_xor_b32 v11, v11, v2
    v_lshlrev_b32 v11, 4, v11
    v_add_u32 v12, %s, v3
    v_lshl_add_u32 v6, v12, 7, v11
    v_xor_b32 v7, 64, v6
    """ % rowbase)

ACC = 128
def acc(j, t): return ACC + j * 8 + t * 4
RING = 16; XF = 56

def gemm_loop(br, tiles, secbase, ntau, flip, accf, nst, first_stage, deltas, cap, D=5, areg=(4, 5, 6, 7), init=True):
    items = [(kap, tl) for kap in range(2) for tl in tiles]; N = len(items)
    RN = 10
    assert N % RN == 0
    Q = LgkmQ(15)
    def xread(kap, o):
        for t in range(ntau):
            o.append((Ins("ds_read_b128 %s, v%d offset:%d" % (q4(XF + kap * 8 + t * 4), 6 + kap, t * 2048)), ("x", kap, t)))
    def iread(m, o):
        kap, (sec, t, j) = items[m]
        if br == 'B': reg, toff = 4, 8 * t
        else: reg, toff = (5, 40 * t) if t < 4 else (4, 32)
        for hf in range(2):
            off = secbase + sec * SEC + (32 * kap + 8 * hf) * 160 + toff
            o.append((Ins("ds_read_b64_tr_b16 %s, v%d offset:%d" % (q2(RING + (m % RN) * 4 + 2 * hf), reg, off)), ("w", m, hf)))
    def emit(lst):
        for ins, tag in lst:
            a.items.append(ins)
            if tag is not None: Q.push(tag)
    lbl = L("gl")
    lds_wait(F_FULL, 2, str(first_stage + 1), 72)
    if first_stage == 0: stamp(1)
    a("s_mov_b32 s10, %d\ns_mov_b32 s11, 0\nv_mov_b32 v74, %d" % (first_stage, first_stage))
    a("s_mov_b32 s100, %d\ns_mov_b32 s101, %d" % (deltas[0], deltas[1]))
    pre = []; xread(0, pre)
    for m in range(D): iread(m, pre)
    emit(pre)
    a.raw(".p2align 3")
    a.label(lbl)
    slow = L("slow"); back = L("back")
    fill = [[] for _ in range(N)]
    for m in range(N):
        iread((m + D) % N, fill[m])
    xk1 = 1
    xl = []; xread(1, xl); fill[xk1] = xl + fill[xk1]
    sw = N - D
    xl = []; xread(0, xl); fill[sw] = xl + fill[sw]
    frd = max(0, sw - 5); chk = sw - 2
    fill[frd].append((Ins("ds_read_b64 v[72:73], v0 offset:%d" % (F_FULL - FLG)), ("f",)))
    hk = []
    hk.append([(Ins("s_add_u32 s12, s10, 2"), None), (Ins("s_min_u32 s12, s12, %d" % cap), None)])
    for m in range(N):
        kap, (sec, t, j) = items[m]
        if m % 2 == 0:
            needs = [("w", m + 1, 1), ("x", items[m + 1][0], ntau - 1)]
            if m == chk or m + 1 == chk: needs.append(("f",))
            cs = [(Q.count_after(tg), tg) for tg in needs if Q.count_after(tg) is not None]
            if cs:
                c, tg = min(cs)
                a("s_waitcnt lgkmcnt(%d)" % Q.wait(tg))
        fl = list(fill[m])
        if m == chk - 2 or (chk - 2 < 0 and m == 0): fl = hk[0] + fl
        if m == chk:
            fl = [(Ins("v_min_u32 v72, v72, v73"), None)] + fl + [(Ins("v_readfirstlane_b32 s9, v72"), None)]
        if m == chk + 1:
            fl = fl + [(Ins("s_add_u32 s11, s11, 1"), None), (Ins("s_cmp_eq_u32 s11, 2"), None), (Ins("s_cselect_b32 s13, s101, s100"), None),
                       (Ins("s_cmp_eq_u32 s11, 3"), None), (Ins("s_cselect_b32 s13, %d, s13" % deltas[2]), None), (Ins("s_cselect_b32 s11, 0, s11"), None)]
            fl += [(Ins("v_add_u32 v%d, s13, v%d" % (r, r)), None) for r in areg]
            fl += [(Ins("s_cmp_ge_u32 s9, s12"), None), (Ins("s_cbranch_scc0 %s" % slow), None), (back + ":", None)]
        if m == N - 1:
            fl = fl + [(Ins("v_add_u32 v74, 1, v74"), None), (Ins("s_add_u32 s10, s10, 1"), None), (Ins("s_cmp_lt_u32 s10, %d" % (first_stage + nst)), None)]
        if m == 1:
            fl = fl + [(Ins("ds_write_b32 v14, v74"), ("fw",))]
        per = (len(fl) + ntau - 1) // ntau
        wf = RING + (m % RN) * 4
        for t2 in range(ntau):
            xf = XF + kap * 8 + t2 * 4; d = accf(j, t2)
            if flip(j): smf(d, xf, wf, q4(d))
            else: smf(d, wf, xf, q4(d))
            emit(fl[t2 * per:(t2 + 1) * per])
    a("s_cbranch_scc1 %s" % lbl)
    a("s_waitcnt lgkmcnt(0)\nds_write_b32 v14, v74")
    done = L("gd")
    a("s_branch %s" % done)
    a.label(slow)
    lds_wait(F_FULL, 2, "s12", 72)
    a("s_branch %s" % back)
    a.label(done)

lane_parts(); w_addrs()
a("s_lshl_b32 s9, s8, 5\ns_cmp_eq_u32 s5, 0\ns_cselect_b32 s10, 16, 0\ns_add_u32 s9, s9, s10")
x_addrs("s9")
a("s_lshl_b32 s9, s8, 2\ns_add_u32 s9, s9, %d\nv_mov_b32 v14, s9" % F_FREE)
for r in range(ACC, ACC + 120): a("v_mov_b32 v%d, 0" % r)
srds()
a("s_barrier")
a("s_cmp_eq_u32 s5, 0\ns_cbranch_scc0 k_B")

def o_addr():
    a("""
    v_lshlrev_b32 v8, 4, v1
    s_lshl_b32 s9, s6, 2
    s_add_u32 s9, s9, s8
    s_mul_i32 s9, s9, 40960
    s_mul_i32 s10, s5, %d
    s_add_u32 s15, s9, s10
    s_mul_i32 s10, s7, 5120
    s_add_u32 s12, s15, s10
    s_add_u32 s13, s12, 4096
    """ % O_BR)

gemm_loop('A', [(j // 5, j % 5, j) for j in range(15)], A_XB, 2, lambda j: j >= 10, acc, 10, 0, (A_SLOT, A_SLOT, -2 * A_SLOT), 10)
stamp(2)
QOP = 16; KOP = 48; VOP = 96; SS = 128; EE = 192; POP = 208
def packK(src, dst, o=None):
    for h in range(4):
        cvt(dst + 4 * h, src(h), o); cvt(dst + 4 * h + 1, src(h) + 2, o)
        cvt(dst + 4 * h + 2, src(4), o); cvt(dst + 4 * h + 3, src(4) + 2, o)
a("""
v_lshlrev_b32 v8, 4, v1
v_lshlrev_b32 v9, 3, v1
s_mul_i32 s9, s8, 6656
s_add_u32 s9, s9, %d
v_add_u32 v10, s9, v8
v_add_u32 v11, s9, v9
""" % A_EXCH)
packK(lambda t: acc(5 + t, 1), KOP + 32)
for t in range(5):
    cvt(VOP + 6 * t + 4, acc(10 + t, 1)); cvt(VOP + 6 * t + 5, acc(10 + t, 1) + 2)
lds_wait(F_FREE, 6, "8", 126 - 6 + 0 if False else 248)
a("s_cmp_eq_u32 s8, 3\ns_cbranch_scc1 k_A_nw")
for h in range(4): a("ds_write_b128 v10, %s offset:%d" % (q4(KOP + 32 + 4 * h), 6656 + h * 1024))
for t in range(5): a("ds_write_b64 v11, %s offset:%d" % (q2(VOP + 6 * t + 4), 6656 + 4096 + t * 512))
a("v_mov_b32 v12, 2\nds_write_b32 v14, v12 offset:%d" % (F_XR + 4 - F_FREE))
a.label("k_A_nw")
packK(lambda t: acc(5 + t, 0), KOP + 16)
for t in range(5):
    cvt(VOP + 6 * t + 2, acc(10 + t, 0)); cvt(VOP + 6 * t + 3, acc(10 + t, 0) + 2)
a("""
s_mov_b32 s66, 0xffff
s_mov_b32 s67, 0
s_mov_b32 s68, 0xffff0000
s_mov_b32 s69, 0
s_mov_b32 s70, 0
s_mov_b32 s71, 0xffff
s_mov_b32 s72, 0
s_mov_b32 s73, 0xffff0000
v_and_b32 v12, 1, v3
v_cmp_eq_u32 s[74:75], 1, v12
v_lshl_add_u32 v13, v2, 2, v12
v_cmp_ge_u32 s[76:77], v3, v13
v_add_u32 v13, 2, v13
v_cmp_ge_u32 s[78:79], v3, v13
""")
for tau in (1, 0):
    cvt(6, acc(4, tau)); cvt(7, acc(4, tau) + 2)
    for h in range(4):
        d = QOP + tau * 16 + 4 * h
        cvt(d, acc(h, tau)); cvt(d + 1, acc(h, tau) + 2)
        a("v_cndmask_b32 v%d, 0, v6, s[%d:%d]" % (d + 2, 66 + 2 * h, 67 + 2 * h))
        a("v_cndmask_b32 v%d, 0, v7, s[%d:%d]" % (d + 3, 66 + 2 * h, 67 + 2 * h))
def S(tau, h, p): return SS + ((tau * 4 + h) * 2 + p) * 4
for h in range(4):
    smf(S(1, h, 1), KOP + 32 + 4 * h, QOP + 16 + 4 * h, "0")
    smf(S(1, h, 0), KOP + 16 + 4 * h, QOP + 16 + 4 * h, "0")
for h in range(4): smf(S(0, h, 1), KOP + 16 + 4 * h, QOP + 4 * h, "0")
a("""
v_mov_b32 v12, 0x0c0c0100
v_mov_b32 v13, 0x01000c0c
v_cndmask_b32 v12, v12, v13, s[74:75]
v_mov_b32 v13, 0x0c0c0302
v_mov_b32 v6, 0x03020c0c
v_cndmask_b32 v13, v13, v6, s[74:75]
v_mov_b32 v6, 0x0c0c0c0c
v_cndmask_b32 v240, v12, v6, s[76:77]
v_cndmask_b32 v241, v13, v6, s[78:79]
v_cndmask_b32 v242, v6, v12, s[76:77]
v_cndmask_b32 v243, v6, v13, s[78:79]
s_or_b32 s9, s6, s8
s_cmp_eq_u32 s9, 0
s_cselect_b32 s9, 0xf149f2ca, 0
v_mov_b32 v244, s9
v_mov_b32 v245, s9
v_mov_b32 v246, s9
v_mov_b32 v247, s9
s_mov_b32 s64, 0x%08x
""" % f2u(0.22360679774997896 * 1.4426950408889634))
o_addr()
lds_wait(F_XR - F_FREE, 1, "2", 248, vz="v14")
for h in range(4): a("ds_read_b128 %s, v10 offset:%d" % (q4(KOP + 4 * h), h * 1024))
for t in range(5): a("ds_read_b64 %s, v11 offset:%d" % (q2(VOP + 6 * t), 4096 + t * 512))
a("s_waitcnt lgkmcnt(5)")
for h in range(4): smf(S(0, h, 0), KOP + 4 * h, QOP + 4 * h, "v[244:247]")
def attn_tau(tau):
    o = Asm()
    E = EE + tau * 8; t0, t1, t2, t3 = (248, 249, 250, 251) if tau else (252, 253, 254, 255)
    for h in range(4):
        for i in range(2):
            cur = S(tau, h, 1) + 2 * i; prv = S(tau, h, 0) + 2 * i
            x, y = (t0, t1) if i == 0 else (t2, t3)
            o("v_cndmask_b32 v%d, v%d, v%d, s[74:75]" % (x, cur, cur + 1))
            o("v_cndmask_b32 v%d, v%d, v%d, s[74:75]" % (y, prv, prv + 1))
        for i in range(2):
            x, y = (t0, t1) if i == 0 else (t2, t3)
            o("v_cndmask_b32 v%d, v%d, v%d, s[%d:%d]" % (E + i * 4 + h, y, x, 76 + 2 * i, 77 + 2 * i))
    for b in (E, E + 4):
        o("v_permlane32_swap_b32 v%d, v%d" % (b, b + 2)); o("v_permlane32_swap_b32 v%d, v%d" % (b + 1, b + 3))
    for b in (E, E + 4):
        o("v_permlane16_swap_b32 v%d, v%d" % (b, b + 1)); o("v_permlane16_swap_b32 v%d, v%d" % (b + 2, b + 3))
    o("v_max3_f32 v%d, v%d, v%d, v%d" % (t0, E, E + 1, E + 2))
    o("v_max3_f32 v%d, v%d, v%d, v%d" % (t1, E + 4, E + 5, E + 3))
    o("v_max3_f32 v%d, v%d, v%d, v%d" % (t0, t0, E + 6, E + 7))
    o("v_max_f32 v%d, v%d, v%d" % (t0, t0, t1))
    o("v_mul_f32 v%d, s64, v%d" % (t0, t0))
    for i in range(8): o("v_fma_f32 v%d, v%d, s64, -v%d" % (E + i, E + i, t0))
    for i in range(8): o("v_exp_f32 v%d, v%d" % (E + i, E + i))
    o("v_add_f32 v%d, v%d, v%d" % (t0, E, E + 1)); o("v_add_f32 v%d, v%d, v%d" % (t1, E + 2, E + 3))
    o("v_add_f32 v%d, v%d, v%d" % (t2, E + 4, E + 5)); o("v_add_f32 v%d, v%d, v%d" % (t3, E + 6, E + 7))
    o("v_add_f32 v%d, v%d, v%d" % (t0, t0, t1)); o("v_add_f32 v%d, v%d, v%d" % (t2, t2, t3))
    o("v_add_f32 v%d, v%d, v%d" % (t0, t0, t2)); o("v_rcp_f32 v%d, v%d" % (t0, t0))
    for i in range(8): o("v_mul_f32 v%d, v%d, v%d" % (E + i, E + i, t0))
    for j in range(4): o("v_cvt_pk_bf16_f32 v%d, v%d, v%d" % (E + j, E + j, E + 4 + j))
    o("v_permlane32_swap_b32 v%d, v%d" % (E, E + 2)); o("v_permlane32_swap_b32 v%d, v%d" % (E + 1, E + 3))
    o("v_permlane16_swap_b32 v%d, v%d" % (E, E + 1)); o("v_permlane16_swap_b32 v%d, v%d" % (E + 2, E + 3))
    P = POP + tau * 16
    for h in range(4):
        for j in range(4): o("v_perm_b32 v%d, v%d, v%d, v%d" % (P + 4 * h + j, E + h, E + h, 240 + j))
    for h in range(4):
        smf(S(tau, h, 0), VOP + 6 * h + 2 * tau, P + 4 * h, "0", o)
        smf(S(tau, h, 1), VOP + 24 + 2 * tau, P + 4 * h, "0", o)
    return o
a("s_waitcnt lgkmcnt(0)")
merge([attn_tau(1), attn_tau(0)])
OPK = 16
for tau in (1, 0):
    for h in range(4):
        cvt(OPK + 8 * tau + 2 * h, S(tau, h, 0)); cvt(OPK + 8 * tau + 2 * h + 1, S(tau, h, 0) + 2)
for h in range(4):
    a("s_mov_b64 exec, s[%d:%d]" % (66 + 2 * h, 67 + 2 * h))
    for tau in range(2):
        cvt(OPK + 16 + 2 * tau, S(tau, h, 1)); cvt(OPK + 17 + 2 * tau, S(tau, h, 1) + 2)
a("s_mov_b64 exec, -1")
a("s_mov_b32 s66, %d\ns_mov_b32 s67, %d\ns_mov_b32 s68, %d\ns_mov_b32 s69, %d\ns_mov_b32 s70, %d\ns_mov_b32 s71, %d" %
  (A_WO[0], A_WO[1] - A_WO[0], A_WO[2] - A_WO[1], A_WO[3] - A_WO[2], 40 * 160, 20 * 160))
a("s_branch k_P2")

a.label("k_B")
gemm_loop('B', [(j // 5 - 1, j % 5, j) for j in range(5, 15)], B_XB, 2, lambda j: False, acc, 10, 0, (B_S1, B_S1, -2 * B_S1), 10, areg=(4, 6, 7))
stamp(2)
WP = 76
PK = 16
VT = 36
a("""
v_bfe_u32 v8, v1, 2, 2
v_and_b32 v9, 3, v1
v_mul_u32_u24 v10, 800, v2
v_mad_u32_u24 v10, v8, 40, v10
v_add_u32 v10, %d, v10
v_mov_b32 v11, %d
v_cmp_eq_u32 vcc, v9, v2
v_add_u32 v12, 640, v10
v_cndmask_b32 v10, v11, v10, vcc
v_cndmask_b32 v11, v11, v12, vcc
""" % (WPHI, ZERO))
for t in range(5): a("ds_read_b64_tr_b16 %s, v11 offset:%d" % (q2(WP + 10 * t + 8), t * 8))
for t in range(5):
    for c in range(2):
        for hf in range(2): a("ds_read_b64_tr_b16 %s, v10 offset:%d" % (q2(WP + 10 * t + 4 * c + 2 * hf), c * 320 + hf * 160 + t * 8))
a("""
s_lshl_b32 s9, s8, 5
v_add_u32 v12, s9, v3
v_mul_u32_u24 v12, %d, v12
v_add_u32 v12, %d, v12
v_mul_u32_u24 v13, 80, v2
v_add_u32 v126, v13, v12
v_mad_u32_u24 v127, v2, 48, v12
v_mov_b32 v%d, 0x3f803f80
v_mov_b32 v%d, 0x3f803f80
v_mov_b32 v%d, 0x3f803f80
v_mov_b32 v%d, 0x3f803f80
s_mov_b32 s64, 0x%08x
s_mov_b32 s65, 0x%08x
""" % (IMG_RS, IMG, VT + 10, VT + 11, VT + 22, VT + 23, f2u(1.4426950408889634), f2u(1.4426950408889634)))
def pack20(sec, tau, dst, o=None):
    for t in range(5):
        cvt(dst + 2 * t, acc(5 * sec + t, tau), o); cvt(dst + 2 * t + 1, acc(5 * sec + t, tau) + 2, o)
def pmf(sec, srcs):
    for tau in range(2):
        for t in range(5):
            d = acc(5 * sec + t, tau)
            a("v_mfma_f32_16x16x16_bf16 %s, %s, %s, 0" % (q4(d), q2(WP + 10 * t + 8), q2(srcs + 10 * tau + 8)))
    for tau in range(2):
        for t in range(5):
            d = acc(5 * sec + t, tau)
            smf(d, WP + 10 * t, srcs + 10 * tau, q4(d))
            smf(d, WP + 10 * t + 4, srcs + 10 * tau + 4, q4(d))
def softmax2(sec, tau, dst, tmp, tv):
    o = Asm()
    p = [acc(5 * sec + t, tau) + r for t in range(5) for r in range(4)]
    A0, B0 = tv, tv + 2
    o("v_max3_f32 v%d, v%d, v%d, v%d" % (A0, p[0], p[1], p[2])); o("v_min3_f32 v%d, v%d, v%d, v%d" % (B0, p[0], p[1], p[2]))
    for i in range(3, 19, 2):
        o("v_max3_f32 v%d, v%d, v%d, v%d" % (A0, A0, p[i], p[i + 1])); o("v_min3_f32 v%d, v%d, v%d, v%d" % (B0, B0, p[i], p[i + 1]))
    o("v_max_f32 v%d, v%d, v%d\nv_min_f32 v%d, v%d, v%d" % (A0, A0, p[19], B0, B0, p[19]))
    o("v_mul_f32 v%d, s64, v%d\nv_mul_f32 v%d, s64, v%d" % (A0, A0, B0, B0))
    for i in range(0, 20, 2):
        o("v_pk_fma_f32 %s, %s, s[64:65], %s op_sel_hi:[1,1,0] neg_lo:[1,0,0] neg_hi:[1,0,0]" % (q2(tmp + i), q2(p[i]), q2(B0)))
        o("v_pk_fma_f32 %s, %s, s[64:65], %s op_sel_hi:[1,1,0] neg_lo:[0,0,1] neg_hi:[0,0,1]" % (q2(p[i]), q2(p[i]), q2(A0)))
    for i in range(20):
        o("v_exp_f32 v%d, v%d" % (p[i], p[i])); o("v_exp_f32 v%d, v%d" % (tmp + i, tmp + i))
    o("v_pk_add_f32 %s, %s, %s" % (q2(A0), q2(p[0]), q2(p[2]))); o("v_pk_add_f32 %s, %s, %s" % (q2(B0), q2(tmp), q2(tmp + 2)))
    for i in range(4, 20, 2):
        o("v_pk_add_f32 %s, %s, %s" % (q2(A0), q2(A0), q2(p[i]))); o("v_pk_add_f32 %s, %s, %s" % (q2(B0), q2(B0), q2(tmp + i)))
    o("v_add_f32 v%d, v%d, v%d\nv_add_f32 v%d, v%d, v%d\nv_rcp_f32 v%d, v%d\nv_rcp_f32 v%d, v%d" % (A0, A0, A0 + 1, B0, B0, B0 + 1, A0, A0, B0, B0))
    for i in range(0, 20, 2):
        o("v_pk_mul_f32 %s, %s, %s op_sel_hi:[1,0]" % (q2(p[i]), q2(p[i]), q2(A0)))
        o("v_pk_mul_f32 %s, %s, %s op_sel_hi:[1,0]" % (q2(tmp + i), q2(tmp + i), q2(B0)))
    for i in range(0, 20, 2):
        cvt(dst + i // 2, p[i], o); cvt(dst + 10 + i // 2, tmp + i, o)
    return o
for tau in range(2): pack20(1, tau, PK + 10 * tau)
for tau in range(2): pack20(2, tau, VT + 12 * tau)
a("s_waitcnt lgkmcnt(0)")
pmf(1, PK)
lds_wait(F_FREE, 4, "9", 248)
for tau in range(2):
    for m in range(3): a("ds_write_b128 v127, %s offset:%d" % (q4(VT + 12 * tau + 4 * m), IMG_V + tau * 16 * IMG_RS + 16 * m))
TM = acc(10, 0)
PHK = 16
merge([softmax2(1, 0, PHK, TM, 248), softmax2(1, 1, PHK + 20, TM + 20, 252)])
for tau in range(2):
    for m in range(5): a("ds_write_b128 v126, %s offset:%d" % (q4(PHK + 20 * tau + 4 * m), tau * 16 * IMG_RS + 16 * m))
a("v_mov_b32 v12, 1\nds_write_b32 v14, v12 offset:%d" % (F_XR - F_FREE))
stamp(3)
gemm_loop('B', [(0, j, j) for j in range(5)], B_XB, 2, lambda j: False, acc, 10, 10, (B_T[1] - B_T[0], B_T[2] - B_T[1], B_T[0] - B_T[2]), 20, areg=(4, 6, 7))
stamp(4)
for tau in range(2): pack20(0, tau, PK + 10 * tau)
pmf(0, PK)
PHQ = 36
a("""
v_lshrrev_b32 v8, 2, v3
v_and_b32 v9, 3, v3
v_mul_u32_u24 v10, 80, v2
v_add_u32 v10, %d, v10
v_mul_u32_u24 v11, %d, v9
v_add_u32 v11, v11, v10
v_add_u32 v10, %d, v10
v_mov_b32 v12, %d
v_cmp_eq_u32 vcc, v8, v2
v_cndmask_b32 v9, v12, v10, vcc
v_cndmask_b32 v4, v12, v11, vcc
""" % (IMG, IMG_RS, 20 * IMG_RS, ZERO))
for t in range(1, 5):
    a("v_add_u32 v11, %d, v11\nv_cndmask_b32 v%d, v12, v11, vcc" % (4 * IMG_RS, (5, 6, 7, 13)[t - 1]))
merge([softmax2(0, 0, PHQ, TM, 248), softmax2(0, 1, PHQ + 20, TM + 20, 252)])
o_addr()
stamp(5)
lds_wait(F_KVR, 2, "1", 248)
stamp(6)
def oacc(t, tau): return ACC + (t * 2 + tau) * 4
FR = 76
Q = LgkmQ(15)
its = [(t, c) for t in (5, 0, 1, 2, 3, 4) for c in range(5)]
areg = {0: 4, 1: 5, 2: 6, 3: 7, 4: 13, 5: 9}
def kread(m):
    t, c = its[m]
    a("ds_read_b128 %s, v%d offset:%d" % (q4(FR + (m % 12) * 4), areg[t], c * 16)); Q.push(m)
for m in range(10): kread(m)
for m in range(30):
    t, c = its[m]
    if m % 2 == 0: a("s_waitcnt lgkmcnt(%d)" % Q.wait(m + 1))
    for tau in range(2):
        d = oacc(t, tau)
        smf(d, FR + (m % 12) * 4, PHQ + 20 * tau + 4 * c, "0" if c == 0 else q4(d))
        if tau == 0 and m + 10 < 30: kread(m + 10)
    if m == 9:
        for tau in range(2):
            a("v_add_f32 v%d, 0x%08x, v%d" % (10 + 2 * tau, f2u(1e-6), oacc(5, tau)))
            a("v_rcp_f32 v%d, v%d" % (10 + 2 * tau, 10 + 2 * tau))
for t in range(5):
    for tau in range(2):
        for i in range(2):
            r = oacc(t, tau) + 2 * i
            a("v_pk_mul_f32 %s, %s, %s op_sel_hi:[1,0]" % (q2(r), q2(r), q2(10 + 2 * tau)))
    for tau in range(2):
        for i in range(2):
            cvt((OPK + 8 * tau + 2 * t + i) if t < 4 else (OPK + 16 + 2 * tau + i), oacc(t, tau) + 2 * i)
a("s_mov_b32 s66, %d\ns_mov_b32 s67, %d\ns_mov_b32 s68, %d\ns_mov_b32 s69, %d\ns_mov_b32 s70, %d\ns_mov_b32 s71, %d" %
  (B_WO[0], B_WO[1] - B_WO[0], B_WO[2] - B_WO[1], B_WO[3] - B_WO[2], 8 * 160, 4 * 160))

a.label("k_P2")
for i in range(4): a("buffer_store_dwordx4 %s, v8, s[44:47], s12 offen offset:%d sc1" % (q4(OPK + 4 * i), i * 1024))
a("buffer_store_dwordx4 %s, v8, s[44:47], s13 offen sc1" % q4(OPK + 16))
stamp(7)
OF = 88; A2 = 40; R2 = 0
a("""
v_bfe_u32 v5, v1, 2, 2
v_and_b32 v6, 3, v1
v_mad_u32_u24 v7, v2, 20, v5
v_mul_u32_u24 v7, 160, v7
v_lshl_add_u32 v252, v6, 3, v7
v_lshl_add_u32 v7, v2, 2, v5
v_mul_u32_u24 v7, 160, v7
v_lshl_add_u32 v253, v6, 3, v7
s_cmp_eq_u32 s5, 0
s_cselect_b64 vcc, -1, 0
v_cndmask_b32 v248, v252, v253, vcc
v_add_u32 v248, s66, v248
v_add_u32 v252, s66, v252
v_add_u32 v249, s71, v248
v_add_u32 v250, s70, v248
v_add_u32 v251, s70, v249
""")
for r in range(A2, A2 + 40): a("v_mov_b32 v%d, 0" % r)
a("""
s_lshl_b32 s9, s6, 7
s_lshl_b32 s10, s8, 5
s_add_u32 s9, s9, s10
v_add_u32 v4, s9, v3
v_mul_u32_u24 v4, 2560, v4
s_mul_i32 s9, s5, 1280
s_mul_i32 s10, s7, 160
s_add_u32 s72, s9, s10
s_add_u32 s73, s72, 40960
v_and_b32 v5, 1, v2
v_lshlrev_b32 v5, 5, v5
v_lshrrev_b32 v6, 1, v2
v_lshl_add_u32 v5, v6, 4, v5
v_add_u32 v5, v5, v4
v_lshl_add_u32 v6, v2, 3, v4
v_mov_b32 v12, 1
s_waitcnt vmcnt(0)
ds_write_b32 v14, v12 offset:%d
""" % (F_ODONE - F_FREE))
lds_wait(F_ORDY, 1, "1", 80)
stamp(8)
VQ = LgkmQ(63)
def of(G, piece): return OF + (G * 5 + piece) * 4
def oload(P):
    for G in (2 * P, 2 * P + 1):
        a("s_add_u32 s13, s15, %d\ns_add_u32 s12, s15, %d" % (G * 5120, G * 5120 + 4096))
        for pc in (0, 2, 1, 3): a("buffer_load_dwordx4 %s, v8, s[44:47], s13 offen offset:%d sc1" % (q4(of(G, pc)), pc * 1024)); VQ.push((G, pc))
        a("buffer_load_dwordx4 %s, v8, s[44:47], s12 offen sc1" % q4(of(G, 4))); VQ.push((G, 4))
oload(0); oload(1)
def acc2(t, tau): return A2 + (t * 2 + tau) * 4
R2 = 16; RN2 = 6; D2 = 4
Q = LgkmQ(15)
its = [(P, c, t) for P in range(4) for c in range(5) for t in range(5)]
def w2read(m, hf):
    P, c, t = its[m]
    if c < 4:
        G, p = divmod(c, 2)
        reg = 248 + p * 2 + hf; off = G * 80 * 160 + 32 * t
    else:
        reg = 252; off = (80 * hf + 16) * 160 + 32 * t
    a("ds_read_b64_tr_b16 %s, v%d offset:%d" % (q2(R2 + (m % RN2) * 4 + 2 * hf), reg, off)); Q.push((m, hf))
for P in range(4):
    lds_wait(F_WO, 2, str(P + 1), 80); Q.clear()
    if P > 0:
        for r in range(248, 253): a("v_add_u32 v%d, s%d, v%d" % (r, 66 + P, r))
    for m in range(25 * P, 25 * P + D2): w2read(m, 0); w2read(m, 1)
    if P + 2 < 4: oload(P + 2)
    for m in range(25 * P, 25 * P + 25):
        _, c, t = its[m]
        if t == 0:
            tg = (2 * P + c // 2, 2 + c % 2) if c < 4 else (2 * P + 1, 4)
            w = VQ.wait(tg)
            if w is not None: a("s_waitcnt vmcnt(%d)" % w)
            if c == 4:
                a("v_swap_b32 v%d, v%d\nv_swap_b32 v%d, v%d" % (of(2 * P, 4) + 2, of(2 * P + 1, 4), of(2 * P, 4) + 3, of(2 * P + 1, 4) + 1))
        w = Q.wait((m, 1))
        if w is not None: a("s_waitcnt lgkmcnt(%d)" % w)
        for tau in range(2):
            d = acc2(t, tau)
            B = of(2 * P + c // 2, 2 * tau + c % 2) if c < 4 else of(2 * P + tau, 4)
            smf(d, R2 + (m % RN2) * 4, B, q4(d))
            if m + D2 < 25 * P + 25: w2read(m + D2, tau)
OP = 88
for tau in range(2):
    for t in range(5):
        cvt(OP + 12 * tau + 2 * t, acc2(t, tau)); cvt(OP + 12 * tau + 2 * t + 1, acc2(t, tau) + 2)
for tau in range(2):
    for p in range(2):
        a("v_permlane16_swap_b32 v%d, v%d" % (OP + 12 * tau + 4 * p, OP + 12 * tau + 4 * p + 2))
        a("v_permlane16_swap_b32 v%d, v%d" % (OP + 12 * tau + 4 * p + 1, OP + 12 * tau + 4 * p + 3))
for tau in range(2):
    for p in range(2):
        a("buffer_store_dwordx4 %s, v5, s[60:63], s%d offen offset:%d" % (q4(OP + 12 * tau + 4 * p), 72 + tau, 64 * p))
    a("buffer_store_dwordx2 %s, v6, s[60:63], s%d offen offset:128" % (q2(OP + 12 * tau + 8), 72 + tau))
stamp(9)
stamp_store()
a("s_endpgm")

a.label("k_loader")
a("""
v_lshrrev_b32 v8, 3, v1
v_mul_u32_u24 v8, 1280, v8
v_and_b32 v9, 7, v1
v_xor_b32 v9, v9, v2
v_lshl_add_u32 v4, v9, 4, v8
v_xor_b32 v5, 64, v4
v_mul_u32_u24 v8, 26, v1
v_lshrrev_b32 v8, 8, v8
v_mul_u32_u24 v9, 10, v8
v_sub_u32 v9, v1, v9
v_lshlrev_b32 v9, 4, v9
v_mul_u32_u24 v6, 1280, v8
v_add_u32 v6, v6, v9
""")
for e in range(11):
    a("""
    v_add_u32 v10, %d, v8
    v_and_b32 v11, 4, v10
    v_and_b32 v12, 8, v10
    v_and_b32 v10, 0x33, v10
    v_lshl_add_u32 v10, v11, 1, v10
    v_lshrrev_b32 v12, 1, v12
    v_add_u32 v10, v10, v12
    v_mul_u32_u24 v10, 3840, v10
    v_add_u32 v%d, v10, v9
    """ % (6 * e, 32 + e))
a("""
s_mul_i32 s64, s6, 163840
s_sub_u32 s65, s64, 20480
s_cmp_eq_u32 s6, 0
s_cselect_b32 s65, 0, s65
s_mov_b32 s66, -1
s_mov_b32 s67, 0x0fffffff
s_mov_b32 s68, -1
s_mov_b32 s69, 0xff
s_mul_i32 s70, s7, 160
s_sub_u32 s9, s8, 4
s_lshl_b32 s9, s9, 2
s_add_u32 s9, s9, %d
v_mov_b32 v14, s9
""" % F_FULL)
if ROT:
    a("""
    s_and_b32 s12, s6, 7
    s_and_b32 s9, s7, 3
    s_lshl_b32 s9, s9, 1
    s_add_u32 s12, s12, s9
    s_cmp_ge_u32 s12, 10
    s_cselect_b32 s9, 10, 0
    s_sub_u32 s12, s12, s9
    """)
else: a("s_mov_b32 s12, 0")
srds()
def dma_list(xs, secs, xb, halo):
    return [('x', i) for i in xs] + [('w', g, l, e) for (g, l) in secs for e in range(11)]
def issue(lst, xb, halo):
    ex = None
    for it in lst:
        if it[0] == 'x':
            i = it[1]
            if ex != -1: a("s_mov_b64 exec, -1"); ex = -1
            if halo: base, k = ("s65", i) if i < 2 else ("s64", i - 2)
            else: base, k = "s64", i
            a("s_add_u32 s15, %s, s13" % base)
            if k: a("s_add_u32 s15, s15, %d" % (k * 10240))
            a("s_add_u32 m0, s11, %d" % (i * 1024))
            a("buffer_load_dwordx4 v%d, s[36:39], s15 offen%s lds" % (4 + (i & 1), NT))
        else:
            _, g, l, e = it
            m = 66 if e < 10 else 68
            if ex != m: a("s_mov_b64 exec, s[%d:%d]" % (m, m + 1)); ex = m
            a("s_add_u32 s15, s71, %d" % (g * 1280))
            a("s_add_u32 m0, s11, %d" % (xb + l * SEC + e * 960))
            a("buffer_load_dwordx4 v%d, s[40:43], s15 offen%s lds" % (32 + e, NT))
    a("s_mov_b64 exec, -1")
def load_loop(lst, xb, halo, first, nst, deltas, nprev, firstbar, base0=None):
    n = len(lst); h = (n + 1) // 2
    lbl = L("ld")
    a("s_mov_b32 s10, %d\ns_mov_b32 s72, 0\ns_mov_b32 s100, %d\ns_mov_b32 s101, %d" % (first, deltas[0], deltas[1]))
    if base0 is not None: a("s_mov_b32 s11, %d" % base0)
    a.label(lbl)
    a("s_lshl_b32 s13, s12, 7\ns_mul_i32 s71, s12, %d\ns_add_u32 s71, s71, s70" % (64 * 3840))
    skip = L("nf")
    a("s_cmp_lt_u32 s10, 3\ns_cbranch_scc1 %s\ns_sub_u32 s73, s10, 2" % skip)
    lds_wait(F_FREE, 6, "s73", 20)
    a.label(skip)
    issue(lst[:h], xb, halo)
    if firstbar:
        nb = L("nb")
        a("s_cmp_eq_u32 s10, 0\ns_cbranch_scc0 %s\ns_barrier" % nb)
        a.label(nb)
    a("v_mov_b32 v20, s10\ns_waitcnt vmcnt(%d)\nds_write_b32 v14, v20" % h)
    issue(lst[h:], xb, halo)
    a("""
    s_add_u32 s12, s12, 1
    s_cmp_eq_u32 s12, 10
    s_cselect_b32 s12, 0, s12
    s_add_u32 s72, s72, 1
    s_cmp_eq_u32 s72, 2
    s_cselect_b32 s73, s101, s100
    s_cmp_eq_u32 s72, 3
    s_cselect_b32 s73, %d, s73
    s_cselect_b32 s72, 0, s72
    s_add_u32 s11, s11, s73
    s_add_u32 s10, s10, 1
    s_cmp_lt_u32 s10, %d
    s_cbranch_scc1 %s
    """ % (deltas[2], first + nst, lbl))
def wo_phase(P, base, half):
    es = [e for e in range(27) if e % 2 == half]
    a("s_mov_b64 exec, s[66:67]")
    for e in es:
        if e == 26: a("s_mov_b64 exec, s[68:69]")
        a("s_add_u32 s15, s70, %d\ns_mov_b32 m0, %d" % ((160 * P + 6 * e) * 1280, base + e * 960))
        a("buffer_load_dwordx4 v6, s[56:59], s15 offen lds")
    a("s_mov_b64 exec, -1")
    return len(es)
def publish(v, off, n):
    a("v_mov_b32 v20, %d\ns_waitcnt vmcnt(%d)\nds_write_b32 v14, v20 offset:%d" % (v, n, off))
AD = (A_SLOT, A_SLOT, -2 * A_SLOT); BD = (B_S1, B_S1, -2 * B_S1); TD = (B_T[1] - B_T[0], B_T[2] - B_T[1], B_T[0] - B_T[2])
a("s_cmp_eq_u32 s5, 0\ns_cbranch_scc0 k_lB")
for half, lw in ((0, 4), (1, 5)):
    if lw == 4: a("s_cmp_eq_u32 s8, 4\ns_cbranch_scc0 k_l5A")
    else: a.label("k_l5A"); a("s_setprio 2")
    lst = dma_list(range(18), [(0, 0)], A_XB, True) if lw == 4 else dma_list([], [(1, 1), (2, 2)], A_XB, True)
    load_loop(lst, A_XB, True, 0, 10, AD, 0, True, base0=0)
    publish(100, 0, 0)
    stamp(2)
    lds_wait(F_FREE, 6, "9", 20)
    ns = [wo_phase(P, A_WO[P], half) for P in range(3)]
    lds_wait(F_FREE, 6, "10", 20)
    publish(1, 8, ns[1] + ns[2])
    n3 = wo_phase(3, A_WO[3], half)
    publish(2, 8, ns[2] + n3); publish(3, 8, n3); publish(4, 8, 0)
    stamp(3)
    stamp_store()
    a("s_endpgm")
a.label("k_lB")
for half, lw in ((0, 4), (1, 5)):
    if lw == 4: a("s_cmp_eq_u32 s8, 4\ns_cbranch_scc0 k_l5B")
    else: a.label("k_l5B"); a("s_setprio 2")
    if lw == 4:
        load_loop(dma_list(range(16), [], B_XB, False), B_XB, False, 0, 10, BD, 0, True, base0=0)
        load_loop(dma_list(range(16), [], B_XB, False), B_XB, False, 10, 10, TD, 0, False)
    else:
        load_loop(dma_list([], [(1, 0), (2, 1)], B_XB, False), B_XB, False, 0, 10, BD, 0, True, base0=0)
        load_loop(dma_list([], [(0, 0)], B_XB, False), B_XB, False, 10, 10, TD, 0, False)
    publish(100, 0, 0)
    stamp(2)
    lds_wait(F_KVD, 2, "1", 20)
    ns = [wo_phase(P, B_WO[P], half) for P in range(2)]
    lds_wait(F_FREE, 4, "18", 20)
    publish(1, 8, ns[1])
    n2 = wo_phase(2, B_WO[2], half)
    lds_wait(F_FREE, 4, "19", 20)
    publish(2, 8, n2)
    n3 = wo_phase(3, B_WO[3], half)
    publish(3, 8, n3); publish(4, 8, 0)
    stamp(3)
    stamp_store()
    a("s_endpgm")

a.label("k_h67")
a("""
s_cmp_eq_u32 s8, 7
s_cbranch_scc0 k_h6i
v_lshl_add_u32 v8, v1, 2, v0
ds_write_b32 v8, v15
s_waitcnt lgkmcnt(0)
""")
a.label("k_h6i")
srds()
a("s_barrier")
a("""
v_mov_b32 v16, 0
v_mov_b32 v17, 0
v_mov_b32 v18, 0
v_mov_b32 v19, 0
v_mov_b32 v20, 1
s_lshl_b32 s74, s5, 4
s_add_u32 s74, s74, s6
s_lshl_b32 s75, s74, 2
s_lshl_b32 s74, s74, 8
s_add_u32 s74, s74, %d
s_or_b32 s9, s7, s8
s_cmp_eq_u32 s9, 6
s_cbranch_scc0 k_noz
s_cmp_eq_u32 s7, 0
s_cbranch_scc0 k_noz
s_mov_b64 exec, 1
buffer_store_dword v16, v15, s[44:47], s74 offen sc1
s_waitcnt vmcnt(0)
buffer_store_dword v20, v15, s[48:51], s75 offen sc1
s_mov_b64 exec, -1
""" % CNT)
a.label("k_noz")
if OPT("pfwo"):
    a("""
    s_sub_u32 s9, s8, 6
    s_mul_i32 s9, s9, 10
    s_mul_i32 s10, s4, 20
    s_add_u32 s9, s9, s10
    s_mul_i32 s9, s9, 1280
    s_lshr_b32 s10, s7, 2
    s_mul_i32 s10, s10, 640
    s_add_u32 s9, s9, s10
    v_mul_u32_u24 v8, 205, v1
    v_lshrrev_b32 v8, 13, v8
    v_mul_u32_u24 v9, 40, v8
    v_sub_u32 v9, v1, v9
    v_lshlrev_b32 v9, 4, v9
    v_mul_u32_u24 v8, 1280, v8
    v_add_u32 v8, v8, v9
    s_mov_b32 s66, -1
    s_mov_b32 s67, 0xff
    s_mov_b64 exec, s[66:67]
    """)
    for i in range(10):
        a("buffer_load_dwordx4 v[24:27], v8, s[56:59], s9 offen\ns_add_u32 s9, s9, 1280")
    a("s_mov_b64 exec, -1")
a("s_cmp_eq_u32 s5, 0\ns_cbranch_scc0 k_h67B")
lane_parts(); w_addrs(); x_addrs("0")
a("s_lshl_b32 s9, s8, 2\ns_add_u32 s9, s9, %d\nv_mov_b32 v14, s9" % (F_FREE - 8))
for r in range(ACC, ACC + 20): a("v_mov_b32 v%d, 0" % r)
hacc = lambda j, t: ACC + (j % 5) * 4
a("s_cmp_eq_u32 s8, 6\ns_cbranch_scc0 k_h7A")
gemm_loop('A', [(1, t, 5 + t) for t in range(5)], A_XB, 1, lambda j: False, hacc, 10, 0, AD, 10, D=4)
a("v_lshlrev_b32 v8, 4, v1")
packK(lambda t: hacc(t, 0), 64)
lds_wait(F_FREE, 6, "8", 248)
for h in range(4): a("ds_write_b128 v8, %s offset:%d" % (q4(64 + 4 * h), A_EXCH + h * 1024))
a("v_mov_b32 v12, 1\ns_mov_b64 exec, 1\nds_add_u32 v0, v12 offset:%d\ns_mov_b64 exec, -1" % (F_XR - FLG))
a("s_branch k_opoll")
a.label("k_h7A")
gemm_loop('A', [(2, t, 10 + t) for t in range(5)], A_XB, 1, lambda j: True, hacc, 10, 0, AD, 10, D=4)
a("v_lshlrev_b32 v8, 3, v1")
for t in range(5):
    cvt(64 + 2 * t, hacc(t, 0)); cvt(65 + 2 * t, hacc(t, 0) + 2)
lds_wait(F_FREE, 6, "8", 248)
for t in range(5): a("ds_write_b64 v8, %s offset:%d" % (q2(64 + 2 * t), A_EXCH + 4096 + t * 512))
a("v_mov_b32 v12, 1\ns_mov_b64 exec, 1\nds_add_u32 v0, v12 offset:%d" % (F_XR - FLG))
a("s_endpgm")

a.label("k_h67B")
a("""
v_lshlrev_b32 v8, 4, v1
s_sub_u32 s76, s8, 6
s_lshl_b32 s77, s7, 1
s_add_u32 s77, s77, s76
s_mul_i32 s78, s77, 12288
s_add_u32 s78, s78, %d
s_lshl_b32 s77, s77, 8
s_add_u32 s77, s77, %d
s_lshl_b32 s79, s7, 2
s_add_u32 s79, s79, 128
s_cmp_eq_u32 s8, 6
s_cbranch_scc0 k_h7B
s_mul_i32 s9, s7, 3200
""" % (KVSUM, CNT + 32 * 256))
for i in range(4):
    if i == 3: a("s_mov_b64 exec, 0xff")
    a("s_mov_b32 m0, %d" % (WPHI + i * 1024))
    a("buffer_load_dwordx4 v8, s[52:55], s9 offen lds")
    if i < 3: a("s_add_u32 s9, s9, 1024")
a("s_mov_b64 exec, -1\ns_branch k_h67Bz")
a.label("k_h7B")
a("s_mov_b32 s66, -1\ns_mov_b32 s67, 0xff\ns_mov_b64 exec, s[66:67]\nv_add_u32 v9, %d, v8\nds_write_b128 v9, v[16:19]\ns_mov_b64 exec, -1" % ZERO)
a.label("k_h67Bz")
a("s_cmp_eq_u32 s6, 0\ns_cbranch_scc0 k_h67Bn\ns_mov_b32 s9, s78")
for i in range(12):
    a("buffer_store_dwordx4 v[16:19], v8, s[44:47], s9 offen sc1")
    if i < 11: a("s_add_u32 s9, s9, 1024")
a("""
s_mov_b64 exec, 1
buffer_store_dword v16, v15, s[44:47], s77 offen sc1
s_waitcnt vmcnt(0)
buffer_atomic_add v20, v15, s[48:51], s79 offen sc1
s_mov_b64 exec, -1
""")
a.label("k_h67Bn")
a("s_waitcnt vmcnt(0) lgkmcnt(0)")
a("s_lshl_b32 s9, s76, 2\nv_add_u32 v14, s9, v0")
a("v_mov_b32 v12, 0x7fffffff\nds_write_b32 v14, v12 offset:%d" % (F_FREE + 16 - FLG))
lane_parts()
a("""
s_mul_i32 s9, s76, 160
s_add_u32 s9, s9, %d
v_mul_u32_u24 v4, %d, v10
v_lshl_add_u32 v4, v9, 3, v4
v_add_u32 v5, %d, v4
v_add_u32 v4, s9, v4
s_mul_i32 s10, s76, 96
v_add_u32 v5, s10, v5
v_lshlrev_b32 v6, 2, v1
v_mul_u32_u24 v12, %d, v3
v_lshl_add_u32 v12, v2, 3, v12
v_add_u32 v12, s9, v12
s_mov_b32 s66, 0x001f001f
s_mov_b32 s67, 0x001f001f
s_mov_b32 s68, -1
s_mov_b32 s69, 0
s_mov_b32 s70, 0x001f001f
s_mov_b32 s71, 0
""" % (IMG, IMG_RS, IMG + IMG_V, IMG_RS))
lds_wait(F_FULL, 2, "6", 248, sleep=8)
glb_wait("s[48:51]", "v15", "s79", "2", 13)
lds_wait(F_XR, 4, "1", 248, sleep=2)
stamp(3)
KA = 128
def tile_mask(ft, dt):
    if ft < 2: return "-1" if dt == 0 else "s[66:67]"
    return "s[68:69]" if dt == 0 else "s[70:71]"
seq = [(hh, kap) for hh in range(2) for kap in range(4)]
def kvreads(i):
    hh, kap = seq[i]; base = 16 + (i % 2) * 20
    for ft in range(3):
        for hf in range(2): a("ds_read_b64_tr_b16 %s, v4 offset:%d" % (q2(base + 4 * ft + 2 * hf), (32 * kap + 8 * hf) * IMG_RS + ft * 32 + hh * 80))
    for dt in range(2):
        for hf in range(2): a("ds_read_b64_tr_b16 %s, v5 offset:%d" % (q2(base + 12 + 4 * dt + 2 * hf), (32 * kap + 8 * hf) * IMG_RS + dt * 32 + hh * 48))
def atom(hh, load):
    for ft in range(3):
        for dt in range(2):
            if not load: a("s_mov_b64 exec, %s" % tile_mask(ft, dt))
            for r in range(4):
                i = (ft * 2 + dt) * 4 + r
                if i % 16 == 0: a("s_add_u32 s9, s78, %d" % (hh * 6144 + i * 256))
                if load: a("buffer_load_dword v%d, v6, s[44:47], s9 offen offset:%d sc1" % (KA + hh * 24 + i, (i % 16) * 256))
                else: a("buffer_atomic_add_f32 v%d, v6, s[44:47], s9 offen offset:%d sc0 sc1" % (KA + hh * 24 + i, (i % 16) * 256))
    a("s_mov_b64 exec, -1")
kvreads(0)
for i in range(8):
    hh, kap = seq[i]; pb = 16 + (i % 2) * 20
    if i + 1 < 8: kvreads(i + 1); a("s_waitcnt lgkmcnt(10)")
    else: a("s_waitcnt lgkmcnt(0)\nv_mov_b32 v13, 1\nds_write_b32 v14, v13 offset:%d" % (F_KVD - FLG))
    for ft in range(3):
        for dt in range(2):
            d = KA + hh * 24 + (ft * 2 + dt) * 4
            smf(d, pb + 4 * ft, pb + 12 + 4 * dt, "0" if kap == 0 else q4(d))
    if i == 4: atom(0, False)
atom(1, False)
if OPT("dbgkv"):
    a("s_waitcnt vmcnt(0)\ns_lshl_b32 s10, s2, 1\ns_add_u32 s10, s10, s76\ns_mul_i32 s10, s10, 12288\ns_add_u32 s10, s10, %d" % (48 << 20))
    for i in range(48): a("v_mov_b32 v%d, v%d" % (180 + i, KA + i))
a("v_mov_b32 v20, 1\ns_mov_b64 exec, 1\ns_waitcnt vmcnt(0)")
stamp(4)
a("buffer_atomic_add v20, v15, s[44:47], s77 offen sc1")
glb_wait("s[44:47]", "v15", "s77", "16", 13)
stamp(5)
a("s_mov_b64 exec, -1")
atom(0, True); atom(1, True)
if OPT("dbgkv"):
    a("s_waitcnt vmcnt(0)\ns_lshl_b32 s10, s2, 1\ns_add_u32 s10, s10, s76\ns_mul_i32 s10, s10, 12288\ns_add_u32 s10, s10, %d" % (32 << 20))
    for i in range(48):
        a("buffer_store_dword v%d, v6, s[44:47], s10 offen\ns_add_u32 s10, s10, 256" % (KA + i))
    a("s_lshl_b32 s10, s2, 1\ns_add_u32 s10, s10, s76\ns_mul_i32 s10, s10, 12288\ns_add_u32 s10, s10, %d" % (48 << 20))
    for i in range(48):
        a("buffer_store_dword v%d, v6, s[44:47], s10 offen\ns_add_u32 s10, s10, 256" % (180 + i))
    a("s_waitcnt vmcnt(0)")
for hh in range(2):
    a("s_waitcnt vmcnt(%d)" % (24 if hh == 0 else 0))
    for i in range(0, 24, 2): cvt(16 + hh * 12 + i // 2, KA + hh * 24 + i)
    for ft in range(3):
        for dt in range(2):
            a("s_mov_b64 exec, %s" % tile_mask(ft, dt))
            a("ds_write_b64 v12, %s offset:%d" % (q2(16 + hh * 12 + (ft * 2 + dt) * 2), dt * 16 * IMG_RS + ft * 32 + hh * 80))
    a("s_mov_b64 exec, -1")
a("v_mov_b32 v13, 1\nds_write_b32 v14, v13 offset:%d" % (F_KVR - FLG))
stamp(6)
a("s_cmp_eq_u32 s8, 6\ns_cbranch_scc1 k_opoll")
stamp_store()
a("s_endpgm")
a.label("k_opoll")
a("v_mov_b32 v20, 1")
glb_wait("s[48:51]", "v15", "s75", "1", 13)
lds_wait(F_ODONE, 4, "1", 248)
stamp(7)
a("s_mov_b64 exec, 1\nbuffer_atomic_add v20, v15, s[44:47], s74 offen sc1")
glb_wait("s[44:47]", "v15", "s74", "8", 13, sleep=2)
a("s_mov_b64 exec, -1\nds_write_b32 v0, v20 offset:%d" % (F_ORDY - FLG))
stamp(8)
stamp_store()
a.label("k_end")
a("s_endpgm")

a.raw('.section .rodata,"a"')
a.raw(""".p2align 6
.amdhsa_kernel %s
  .amdhsa_next_free_vgpr 256
  .amdhsa_next_free_sgpr 102
  .amdhsa_accum_offset 256
  .amdhsa_group_segment_fixed_size 0
  .amdhsa_kernarg_size 80
  .amdhsa_user_sgpr_count 2
  .amdhsa_user_sgpr_kernarg_segment_ptr 1
  .amdhsa_system_sgpr_workgroup_id_x 1
.end_amdhsa_kernel""" % KN)
out = [x for x in sys.argv[1:] if not x.startswith("--")][0]
open(out, "w").write(a.finish())
```

```python
import sys, struct
from asmlib import Asm, LgkmQ, Ins

NAME = "concat_heads__sliding_local_dilated__linear_kernel_hedgehog__prompt"
KN = NAME + "_kernel"
OPT = lambda o: ("--" + o) in sys.argv
STAMP = OPT("stamp"); ROT = not OPT("norot"); NT = " nt" if OPT("nt") else ""
OFL = "" if OPT("oplain") else (" sc0 sc1" if OPT("osys") else " sc1")
OST = "" if OPT("ostplain") else " sc1"
def f2u(x): return struct.unpack("<I", struct.pack("<f", x))[0]

FLG = 163584
F_FULL = FLG + 0
F_WO = FLG + 8
F_FREE = FLG + 16
F_XR = FLG + 48
F_KVR = FLG + 64
F_KVD = FLG + 72
F_ODONE = FLG + 80
F_ORDY = FLG + 96
A_SLOT = 49152; A_XB = 18432; SEC = 10240
A_EXCH = 49152
A_WO = [75776, 101376, 126976, 0]
B_S1 = 36864; B_XB = 16384
B_T = [36864, 63488, 10240]
IMG = 90112; IMG_RS = 544; IMG_V = 320
WPHI = 159744; ZERO = 162944
B_WO = [102624, 128224, 63488, 10240]
O_BR = 64 * 40960
KVSUM = 8 << 20
CNT = 9 << 20
STAMP_OFF = 16 << 20
WS_BYTES = 268435456
SPIN = 0x100000

a = Asm()
hdr = open("cdna_kernels/%s.s.ref" % NAME).read().split("; Override launch")[0]
a.raw(hdr.rstrip())
a.raw("; @launch grid=(256,1,1) block=(512,1,1) lds=163840")
a.raw('.amdgcn_target "amdgcn-amd-amdhsa--gfx950"')
a.raw(".text")
a.raw(".set DIAGOFF, 64")
def q4(r): return "v[%d:%d]" % (r, r + 3)
def q2(r): return "v[%d:%d]" % (r, r + 1)
def srd(n, lo, nbytes):
    a("s_mov_b32 s%d, s%d\ns_mov_b32 s%d, s%d\ns_mov_b32 s%d, %d\ns_mov_b32 s%d, 0x20000" % (n, lo, n + 1, lo + 1, n + 2, nbytes, n + 3))
def stamp(i):
    if STAMP: a("s_memtime s[%d:%d]" % (80 + 2 * i, 81 + 2 * i))
def stamp_store():
    if not STAMP: return
    a("s_waitcnt lgkmcnt(0)")
    for i in range(1, 9 if OPT("cntslow") else 10): a("s_sub_u32 s%d, s%d, s80" % (80 + 2 * i, 80 + 2 * i))
    a("s_mov_b64 exec, 1")
    for i in range(10): a("v_mov_b32 v%d, s%d" % (100 + i, 80 + 2 * i))
    a("v_mov_b32 v110, 0\nv_mov_b32 v111, 0")
    a("s_lshl_b32 s9, s2, 3\ns_add_u32 s9, s9, s8\ns_lshl_b32 s9, s9, 6\ns_add_u32 s9, s9, %d" % STAMP_OFF)
    a("v_mov_b32 v112, 0")
    a("buffer_store_dwordx4 v[100:103], v112, s[44:47], s9 offen")
    a("buffer_store_dwordx4 v[104:107], v112, s[44:47], s9 offen offset:16")
    a("buffer_store_dwordx4 v[108:111], v112, s[44:47], s9 offen offset:32")
def trace(code, sval):
    if not OPT("trace"): return
    a("s_memtime s[96:97]\ns_waitcnt lgkmcnt(0)")
    a("v_mov_b32 v120, %d\nv_mov_b32 v121, %s\nv_mov_b32 v122, s96\nv_mov_b32 v123, s10" % (code, sval))
    a("s_lshl_b32 s95, s2, 3\ns_add_u32 s95, s95, s8\ns_lshl_b32 s95, s95, 12\ns_add_u32 s95, s95, s99\ns_add_u32 s95, s95, %d\ns_add_u32 s99, s99, 16" % (20 << 20))
    a("s_mov_b64 s[92:93], exec\ns_mov_b64 exec, 1\nbuffer_store_dwordx4 v[120:123], v15, s[44:47], s95 offen\ns_mov_b64 exec, s[92:93]")
uid = [0]
def L(p):
    uid[0] += 1; return "%s_%d" % (p, uid[0])
def cvt(d, s, o=None): (o or a)("v_cvt_pk_bf16_f32 v%d, v%d, v%d" % (d, s, s + 1))
def smf(d, A, B, C, o=None): (o or a)("v_mfma_f32_16x16x32_bf16 %s, %s, %s, %s" % (q4(d), q4(A), q4(B), C))
def merge(streams):
    its = [list(s.items) for s in streams]
    while any(its):
        for it in its:
            if it: a.items.append(it.pop(0))

def lds_wait(off, nwords, thr, vt, vz="v0", sleep=1):
    if OPT("slp"): sleep = max(sleep, 4)
    top = L("lw"); ok = L("lwok")
    if vz == "v0": off -= FLG
    a("s_mov_b32 s14, 0")
    a.label(top)
    if nwords == 1: a("ds_read_b32 v%d, %s offset:%d" % (vt, vz, off))
    elif nwords == 2: a("ds_read_b64 %s, %s offset:%d" % (q2(vt), vz, off))
    elif nwords == 4: a("ds_read_b128 %s, %s offset:%d" % (q4(vt), vz, off))
    elif nwords == 6:
        a("ds_read_b128 %s, %s offset:%d" % (q4(vt), vz, off)); a("ds_read_b64 %s, %s offset:%d" % (q2(vt + 4), vz, off + 16))
    a("s_waitcnt lgkmcnt(0)")
    if nwords == 2: a("v_min_u32 v%d, v%d, v%d" % (vt, vt, vt + 1))
    if nwords >= 4:
        a("v_min3_u32 v%d, v%d, v%d, v%d" % (vt, vt, vt + 1, vt + 2)); a("v_min_u32 v%d, v%d, v%d" % (vt, vt, vt + 3))
    if nwords == 6: a("v_min3_u32 v%d, v%d, v%d, v%d" % (vt, vt, vt + 4, vt + 5))
    a("v_readfirstlane_b32 s9, v%d" % vt)
    a("s_cmp_ge_u32 s9, %s" % thr)
    a("s_cbranch_scc1 %s" % ok)
    a("s_sleep %d\ns_add_u32 s14, s14, 1\ns_cmp_lt_u32 s14, %d\ns_cbranch_scc1 %s" % (sleep, SPIN, top))
    a.label(ok)
def glb_wait(srdr, voff, soff, thr, vt, sleep=4):
    top = L("gw"); ok = L("gwok")
    a("s_mov_b32 s14, 0")
    a.label(top)
    a("buffer_load_dword v%d, %s, %s, %s offen sc1" % (vt, voff, srdr, soff))
    a("s_waitcnt vmcnt(0)\nv_readfirstlane_b32 s9, v%d\ns_cmp_ge_u32 s9, %s\ns_cbranch_scc1 %s" % (vt, thr, ok))
    a("s_sleep %d\ns_add_u32 s14, s14, 1\ns_cmp_lt_u32 s14, %d\ns_cbranch_scc1 %s" % (sleep, SPIN // 16, top))
    a.label(ok)

a.raw(".globl %s\n.p2align 8\n.type %s,@function" % (KN, KN))
a.label(KN)
a("s_cmp_ge_u32 s2, 256\ns_cbranch_scc1 k_end\ns_mov_b32 s99, 0")
if STAMP:
    for i in range(10): a("s_mov_b64 s[%d:%d], 0" % (80 + 2 * i, 81 + 2 * i))
stamp(0)
if OPT("diag"): a("s_memtime s[80:81]\ns_memrealtime s[82:83]")
a("""
s_load_dwordx16 s[16:31], s[0:1], 0
s_load_dwordx4 s[32:35], s[0:1], 64
s_and_b32 s3, s2, 7
s_lshr_b32 s4, s2, 3
s_lshr_b32 s5, s3, 2
s_and_b32 s6, s3, 1
s_lshl_b32 s6, s6, 3
s_and_b32 s9, s4, 7
s_add_u32 s6, s6, s9
s_bfe_u32 s7, s3, 0x10001
s_lshl_b32 s7, s7, 2
s_lshr_b32 s9, s4, 3
s_add_u32 s7, s7, s9
v_lshrrev_b32 v1, 6, v0
v_readfirstlane_b32 s8, v1
v_and_b32 v1, 63, v0
v_lshrrev_b32 v2, 4, v1
v_and_b32 v3, 15, v1
v_mov_b32 v15, 0
v_mov_b32 v0, %d
""" % FLG)
def srds():
    a("""
    s_waitcnt lgkmcnt(0)
    s_cmp_eq_u32 s5, 0
    s_cselect_b32 s36, s16, s22
    s_cselect_b32 s37, s17, s23
    s_mov_b32 s38, 2621440
    s_mov_b32 s39, 0x20000
    s_cselect_b32 s40, s18, s24
    s_cselect_b32 s41, s19, s25
    s_mov_b32 s42, 2457600
    s_mov_b32 s43, 0x20000
    s_cselect_b32 s56, s20, s28
    s_cselect_b32 s57, s21, s29
    s_mov_b32 s58, 819200
    s_mov_b32 s59, 0x20000
    """)
    srd(44, 34, WS_BYTES); srd(48, 32, 256); srd(52, 26, 25600); srd(60, 30, 2048 * 2560)
a("s_cmp_ge_u32 s8, 6\ns_cbranch_scc1 k_h67\ns_cmp_ge_u32 s8, 4\ns_cbranch_scc1 k_loader")

def lane_parts():
    a("""
    v_bfe_u32 v8, v1, 2, 2
    v_and_b32 v9, 3, v1
    v_lshrrev_b32 v10, 1, v2
    v_lshlrev_b32 v10, 4, v10
    v_and_b32 v11, 1, v2
    v_lshl_add_u32 v10, v11, 2, v10
    v_add_u32 v10, v10, v8
    """)
def w_addrs():
    a("""
    v_mul_u32_u24 v11, 160, v10
    v_mad_u32_u24 v4, v9, 40, v11
    v_lshl_add_u32 v5, v9, 3, v11
    """)
def x_addrs(rowbase):
    a("""
    v_lshrrev_b32 v11, 1, v3
    v_xor_b32 v11, v11, v2
    v_lshlrev_b32 v11, 4, v11
    v_add_u32 v12, %s, v3
    v_lshl_add_u32 v6, v12, 7, v11
    v_xor_b32 v7, 64, v6
    """ % rowbase)

ACC = 128
def acc(j, t): return ACC + j * 8 + t * 4
RING = 16; XF = 56

def gemm_loop(br, tiles, secbase, ntau, flip, accf, nst, first_stage, deltas, cap, D=5, areg=(4, 5, 6, 7), init=True):
    items = [(kap, tl) for kap in range(2) for tl in tiles]; N = len(items)
    RN = 10
    assert N % RN == 0
    Q = LgkmQ(15)
    def xr(kap, t): return (Ins("ds_read_b128 %s, v%d offset:%d" % (q4(XF + kap * 8 + t * 4), 6 + kap, t * 2048)), ("x", kap, t))
    def wreg(m):
        kap, (sec, t, j) = items[m]
        if br == 'B': return 4, 8 * t
        return (5, 40 * t) if t < 4 else (4, 32)
    def ir(m, hf):
        kap, (sec, t, j) = items[m]
        reg, toff = wreg(m)
        off = secbase + sec * SEC + (32 * kap + 8 * hf) * 160 + toff
        return (Ins("ds_read_b64_tr_b16 %s, v%d offset:%d" % (q2(RING + (m % RN) * 4 + 2 * hf), reg, off)), ("w", m, hf))
    def emit(lst):
        for ins, tag in lst:
            a.items.append(ins)
            if tag is not None: Q.push(tag)
    lbl = L("gl")
    lds_wait(F_FULL, 2, str(first_stage + 1), 72)
    if first_stage == 0: stamp(1)
    a("s_mov_b32 s10, %d\nv_mov_b32 v74, %d" % (first_stage, first_stage))
    a("s_mov_b32 s100, %d\ns_mov_b32 s101, %d\ns_mov_b32 s11, %d" % deltas)
    emit([xr(0, t) for t in range(ntau)] + [ir(m, hf) for m in range(D) for hf in range(2)])
    a.raw(".p2align 3")
    a.label(lbl)
    slow = L("slow"); back = L("back")
    G = N * ntau
    gaps = [[] for _ in range(G)]
    load = [0] * G
    for g in range(G):
        if (g + 1) % (2 * ntau) == 0: load[g] += 1
    sw = N - D
    for m in range(N):
        for hf in range(2):
            g = m * ntau + (hf if ntau == 2 else 0)
            gaps[g].append(ir((m + D) % N, hf)); load[g] += 1
    def place(ins, lo, hi, tag=None, front=False):
        g = min(range(lo, hi + 1), key=lambda x: (load[x], x))
        if isinstance(ins, str): ins = Ins(ins) if not ins.endswith(":") else ins
        if front: gaps[g].insert(0, (ins, tag))
        else: gaps[g].append((ins, tag))
        load[g] += 1
        return g
    gsw = sw * ntau
    half = (N // 2) * ntau
    g = 0
    for t in range(ntau):
        i, tg = xr(1, t); g = place(i, g, max(g, min(half - (D + 1) * ntau, g + 3)), tg)
    g7 = g
    g = place("ds_write_b32 v14, v74", 1, min(6, G - 1), ("fw",))
    g = 0
    for t_ in ("s_mov_b32 s13, s100", "s_mov_b32 s100, s101", "s_mov_b32 s101, s11", "s_mov_b32 s11, s13", "s_add_u32 s12, s10, 2", "s_min_u32 s12, s12, %d" % cap):
        g = place(t_, g, min(g + 4, gsw - 2))
    grot = g
    chkm = sw - 1 if (sw - 1) % 2 == 0 else sw - 2
    gf = max(0, (chkm - D) * ntau)
    place("ds_read_b64 v[72:73], v0 offset:%d" % (F_FULL - FLG), max(0, gf - 2), gf, ("f",))
    g = place("v_min_u32 v72, v72, v73", chkm * ntau, chkm * ntau)
    g = place("v_readfirstlane_b32 s9, v72", min(g + 1, gsw - 1), min(g + 1, gsw - 1))
    lastuse = {}
    for m in range(N - D):
        lastuse[wreg(m + D)[0]] = m * ntau + ntau - 1
    firstnext = {}
    for m in range(sw, N):
        firstnext.setdefault(wreg((m + D) % N)[0], m * ntau)
    for r in areg:
        if r == 6: place("v_add_u32 v6, s13, v6", grot + 1 if grot + 1 < gsw else gsw - 1, gsw - 1)
        elif r == 7: place("v_add_u32 v7, s13, v7", min(max(grot, g7) + 1, G - 1), G - 1)
        else:
            lo = max(lastuse.get(r, 0), grot); hi = firstnext.get(r, G) - 1
            place("v_add_u32 v%d, s13, v%d" % (r, r), lo, max(lo, hi))
    gaps[gsw - 1] += [(Ins("s_cmp_ge_u32 s9, s12"), None), (Ins("s_cbranch_scc0 %s" % slow), None), (back + ":", None)]
    load[gsw - 1] += 2
    g = max(gsw, half)
    for t in range(ntau):
        i, tg = xr(0, t); g = place(i, g, min(g + 1, G - 1), tg)
    place("v_add_u32 v74, 1, v74", max(8, gsw) if max(8, gsw) < G else G - 1, G - 1)
    g = place("s_add_u32 s10, s10, 1", gsw, G - 2)
    gaps[G - 1].append((Ins("s_cmp_lt_u32 s10, %d" % (first_stage + nst)), None))
    def body(dry):
        ws = []
        for m in range(N):
            kap, (sec, t, j) = items[m]
            if m % 2 == 0:
                needs = [("w", m + 1, 1), ("w", m + 1, 0)] + [("x", items[m + 1][0], t2) for t2 in range(ntau)]
                if m == chkm: needs.append(("f",))
                cs = [(Q.count_after(tg), tg) for tg in needs if Q.count_after(tg) is not None]
                if cs:
                    c, tg = min(cs)
                    w = Q.wait(tg); ws.append(w)
                    if not dry: a("s_waitcnt lgkmcnt(%d)" % w)
                else: ws.append(99)
            wf = RING + (m % RN) * 4
            for t2 in range(ntau):
                xf = XF + kap * 8 + t2 * 4; d = accf(j, t2)
                if dry:
                    for ins, tag in gaps[m * ntau + t2]:
                        if tag is not None: Q.push(tag)
                    continue
                if OPT("nomfma"): pass
                elif flip(j): smf(d, xf, wf, q4(d))
                else: smf(d, wf, xf, q4(d))
                emit(gaps[m * ntau + t2])
        return ws
    w1 = body(False); w2 = body(True)
    assert all(x <= y for x, y in zip(w1, w2)), (w1, w2)
    a("s_cbranch_scc1 %s" % lbl)
    a("s_waitcnt lgkmcnt(0)\nds_write_b32 v14, v74")
    done = L("gd")
    a("s_branch %s" % done)
    a.label(slow)
    if STAMP and OPT("cntslow"): a("s_add_u32 s98, s98, 1")
    trace(1, "s9")
    lds_wait(F_FULL, 2, "s12", 72)
    trace(2, "s9")
    a("s_branch %s" % back)
    a.label(done)

lane_parts(); w_addrs()
a("s_lshl_b32 s9, s8, 5\ns_cmp_eq_u32 s5, 0\ns_cselect_b32 s10, 16, 0\ns_add_u32 s9, s9, s10")
x_addrs("s9")
a("s_lshl_b32 s9, s8, 2\ns_add_u32 s9, s9, %d\nv_mov_b32 v14, s9" % F_FREE)
for r in range(ACC, ACC + 120): a("v_mov_b32 v%d, 0" % r)
srds()
a("s_barrier")
if OPT("cprio"): a("s_setprio 3")
a("s_cmp_eq_u32 s5, 0\ns_cbranch_scc0 k_B")

def o_addr():
    a("""
    v_lshlrev_b32 v8, 4, v1
    s_lshl_b32 s9, s6, 2
    s_add_u32 s9, s9, s8
    s_mul_i32 s9, s9, 40960
    s_mul_i32 s10, s5, %d
    s_add_u32 s15, s9, s10
    s_mul_i32 s10, s7, 5120
    s_add_u32 s12, s15, s10
    s_add_u32 s13, s12, 4096
    """ % O_BR)

gemm_loop('A', [(j // 5, j % 5, j) for j in range(15)], A_XB, 2, lambda j: j >= 10, acc, 10, 0, (A_SLOT, A_SLOT, -2 * A_SLOT), 10)
stamp(2)
QOP = 16; KOP = 48; VOP = 96; SS = 128; EE = 192; POP = 208
def packK(src, dst, o=None):
    for h in range(4):
        cvt(dst + 4 * h, src(h), o); cvt(dst + 4 * h + 1, src(h) + 2, o)
        cvt(dst + 4 * h + 2, src(4), o); cvt(dst + 4 * h + 3, src(4) + 2, o)
a("""
v_lshlrev_b32 v8, 4, v1
v_lshlrev_b32 v9, 3, v1
s_mul_i32 s9, s8, 6656
s_add_u32 s9, s9, %d
v_add_u32 v10, s9, v8
v_add_u32 v11, s9, v9
""" % A_EXCH)
packK(lambda t: acc(5 + t, 1), KOP + 32)
for t in range(5):
    cvt(VOP + 6 * t + 4, acc(10 + t, 1)); cvt(VOP + 6 * t + 5, acc(10 + t, 1) + 2)
lds_wait(F_FREE, 6, "8", 126 - 6 + 0 if False else 248)
a("s_cmp_eq_u32 s8, 3\ns_cbranch_scc1 k_A_nw")
for h in range(4): a("ds_write_b128 v10, %s offset:%d" % (q4(KOP + 32 + 4 * h), 6656 + h * 1024))
for t in range(5): a("ds_write_b64 v11, %s offset:%d" % (q2(VOP + 6 * t + 4), 6656 + 4096 + t * 512))
a("v_mov_b32 v12, 2\nds_write_b32 v14, v12 offset:%d" % (F_XR + 4 - F_FREE))
a.label("k_A_nw")
packK(lambda t: acc(5 + t, 0), KOP + 16)
for t in range(5):
    cvt(VOP + 6 * t + 2, acc(10 + t, 0)); cvt(VOP + 6 * t + 3, acc(10 + t, 0) + 2)
a("""
s_mov_b32 s66, 0xffff
s_mov_b32 s67, 0
s_mov_b32 s68, 0xffff0000
s_mov_b32 s69, 0
s_mov_b32 s70, 0
s_mov_b32 s71, 0xffff
s_mov_b32 s72, 0
s_mov_b32 s73, 0xffff0000
v_and_b32 v12, 1, v3
v_cmp_eq_u32 s[74:75], 1, v12
v_lshl_add_u32 v13, v2, 2, v12
v_cmp_ge_u32 s[76:77], v3, v13
v_add_u32 v13, 2, v13
v_cmp_ge_u32 s[78:79], v3, v13
""")
for tau in (1, 0):
    cvt(6, acc(4, tau)); cvt(7, acc(4, tau) + 2)
    for h in range(4):
        d = QOP + tau * 16 + 4 * h
        cvt(d, acc(h, tau)); cvt(d + 1, acc(h, tau) + 2)
        a("v_cndmask_b32 v%d, 0, v6, s[%d:%d]" % (d + 2, 66 + 2 * h, 67 + 2 * h))
        a("v_cndmask_b32 v%d, 0, v7, s[%d:%d]" % (d + 3, 66 + 2 * h, 67 + 2 * h))
def S(tau, h, p): return SS + ((tau * 4 + h) * 2 + p) * 4
for h in range(4):
    smf(S(1, h, 1), KOP + 32 + 4 * h, QOP + 16 + 4 * h, "0")
    smf(S(1, h, 0), KOP + 16 + 4 * h, QOP + 16 + 4 * h, "0")
for h in range(4): smf(S(0, h, 1), KOP + 16 + 4 * h, QOP + 4 * h, "0")
a("""
v_mov_b32 v12, 0x0c0c0100
v_mov_b32 v13, 0x01000c0c
v_cndmask_b32 v12, v12, v13, s[74:75]
v_mov_b32 v13, 0x0c0c0302
v_mov_b32 v6, 0x03020c0c
v_cndmask_b32 v13, v13, v6, s[74:75]
v_mov_b32 v6, 0x0c0c0c0c
v_cndmask_b32 v240, v12, v6, s[76:77]
v_cndmask_b32 v241, v13, v6, s[78:79]
v_cndmask_b32 v242, v6, v12, s[76:77]
v_cndmask_b32 v243, v6, v13, s[78:79]
s_or_b32 s9, s6, s8
s_cmp_eq_u32 s9, 0
s_cselect_b32 s9, 0xf149f2ca, 0
v_mov_b32 v244, s9
v_mov_b32 v245, s9
v_mov_b32 v246, s9
v_mov_b32 v247, s9
s_mov_b32 s64, 0x%08x
""" % f2u(0.22360679774997896 * 1.4426950408889634))
o_addr()
lds_wait(F_XR - F_FREE, 1, "2", 248, vz="v14")
for h in range(4): a("ds_read_b128 %s, v10 offset:%d" % (q4(KOP + 4 * h), h * 1024))
for t in range(5): a("ds_read_b64 %s, v11 offset:%d" % (q2(VOP + 6 * t), 4096 + t * 512))
a("s_waitcnt lgkmcnt(5)")
for h in range(4): smf(S(0, h, 0), KOP + 4 * h, QOP + 4 * h, "v[244:247]")
def attn_tau(tau):
    o = Asm()
    E = EE + tau * 8; t0, t1, t2, t3 = (248, 249, 250, 251) if tau else (252, 253, 254, 255)
    for h in range(4):
        for i in range(2):
            cur = S(tau, h, 1) + 2 * i; prv = S(tau, h, 0) + 2 * i
            x, y = (t0, t1) if i == 0 else (t2, t3)
            o("v_cndmask_b32 v%d, v%d, v%d, s[74:75]" % (x, cur, cur + 1))
            o("v_cndmask_b32 v%d, v%d, v%d, s[74:75]" % (y, prv, prv + 1))
        for i in range(2):
            x, y = (t0, t1) if i == 0 else (t2, t3)
            o("v_cndmask_b32 v%d, v%d, v%d, s[%d:%d]" % (E + i * 4 + h, y, x, 76 + 2 * i, 77 + 2 * i))
    for b in (E, E + 4):
        o("v_permlane32_swap_b32 v%d, v%d" % (b, b + 2)); o("v_permlane32_swap_b32 v%d, v%d" % (b + 1, b + 3))
    for b in (E, E + 4):
        o("v_permlane16_swap_b32 v%d, v%d" % (b, b + 1)); o("v_permlane16_swap_b32 v%d, v%d" % (b + 2, b + 3))
    o("v_max3_f32 v%d, v%d, v%d, v%d" % (t0, E, E + 1, E + 2))
    o("v_max3_f32 v%d, v%d, v%d, v%d" % (t1, E + 4, E + 5, E + 3))
    o("v_max3_f32 v%d, v%d, v%d, v%d" % (t0, t0, E + 6, E + 7))
    o("v_max_f32 v%d, v%d, v%d" % (t0, t0, t1))
    o("v_mul_f32 v%d, s64, v%d" % (t0, t0))
    for i in range(8): o("v_fma_f32 v%d, v%d, s64, -v%d" % (E + i, E + i, t0))
    for i in range(8): o("v_exp_f32 v%d, v%d" % (E + i, E + i))
    o("v_add_f32 v%d, v%d, v%d" % (t0, E, E + 1)); o("v_add_f32 v%d, v%d, v%d" % (t1, E + 2, E + 3))
    o("v_add_f32 v%d, v%d, v%d" % (t2, E + 4, E + 5)); o("v_add_f32 v%d, v%d, v%d" % (t3, E + 6, E + 7))
    o("v_add_f32 v%d, v%d, v%d" % (t0, t0, t1)); o("v_add_f32 v%d, v%d, v%d" % (t2, t2, t3))
    o("v_add_f32 v%d, v%d, v%d" % (t0, t0, t2)); o("v_rcp_f32 v%d, v%d" % (t0, t0))
    for i in range(8): o("v_mul_f32 v%d, v%d, v%d" % (E + i, E + i, t0))
    for j in range(4): o("v_cvt_pk_bf16_f32 v%d, v%d, v%d" % (E + j, E + j, E + 4 + j))
    o("v_permlane32_swap_b32 v%d, v%d" % (E, E + 2)); o("v_permlane32_swap_b32 v%d, v%d" % (E + 1, E + 3))
    o("v_permlane16_swap_b32 v%d, v%d" % (E, E + 1)); o("v_permlane16_swap_b32 v%d, v%d" % (E + 2, E + 3))
    P = POP + tau * 16
    for h in range(4):
        for j in range(4): o("v_perm_b32 v%d, v%d, v%d, v%d" % (P + 4 * h + j, E + h, E + h, 240 + j))
    for h in range(4):
        smf(S(tau, h, 0), VOP + 6 * h + 2 * tau, P + 4 * h, "0", o)
        smf(S(tau, h, 1), VOP + 24 + 2 * tau, P + 4 * h, "0", o)
    return o
a("s_waitcnt lgkmcnt(0)")
merge([attn_tau(1), attn_tau(0)])
OPK = 16
for tau in (1, 0):
    for h in range(4):
        cvt(OPK + 8 * tau + 2 * h, S(tau, h, 0)); cvt(OPK + 8 * tau + 2 * h + 1, S(tau, h, 0) + 2)
for h in range(4):
    a("s_mov_b64 exec, s[%d:%d]" % (66 + 2 * h, 67 + 2 * h))
    for tau in range(2):
        cvt(OPK + 16 + 2 * tau, S(tau, h, 1)); cvt(OPK + 17 + 2 * tau, S(tau, h, 1) + 2)
a("s_mov_b64 exec, -1")
a("s_mov_b32 s66, %d\ns_mov_b32 s67, %d\ns_mov_b32 s68, %d\ns_mov_b32 s69, %d\ns_mov_b32 s70, %d\ns_mov_b32 s71, %d" %
  (A_WO[0], A_WO[1], A_WO[2], A_WO[3], 40 * 160, 20 * 160))
a("s_branch k_P2")

a.label("k_B")
gemm_loop('B', [(j // 5 - 1, j % 5, j) for j in range(5, 15)], B_XB, 2, lambda j: False, acc, 10, 0, (B_S1, B_S1, -2 * B_S1), 10, areg=(4, 6, 7))
stamp(2)
WP = 76
PK = 16
VT = 36
a("""
v_bfe_u32 v8, v1, 2, 2
v_and_b32 v9, 3, v1
v_mul_u32_u24 v10, 800, v2
v_mad_u32_u24 v10, v8, 40, v10
v_add_u32 v10, %d, v10
v_mov_b32 v11, %d
v_cmp_eq_u32 vcc, v9, v2
v_add_u32 v12, 640, v10
v_cndmask_b32 v10, v11, v10, vcc
v_cndmask_b32 v11, v11, v12, vcc
""" % (WPHI, ZERO))
for t in range(5): a("ds_read_b64_tr_b16 %s, v11 offset:%d" % (q2(WP + 10 * t + 8), t * 8))
for t in range(5):
    for c in range(2):
        for hf in range(2): a("ds_read_b64_tr_b16 %s, v10 offset:%d" % (q2(WP + 10 * t + 4 * c + 2 * hf), c * 320 + hf * 160 + t * 8))
a("""
s_lshl_b32 s9, s8, 5
v_add_u32 v12, s9, v3
v_mul_u32_u24 v12, %d, v12
v_add_u32 v12, %d, v12
v_mul_u32_u24 v13, 80, v2
v_add_u32 v126, v13, v12
v_mad_u32_u24 v127, v2, 48, v12
v_mov_b32 v%d, 0x3f803f80
v_mov_b32 v%d, 0x3f803f80
v_mov_b32 v%d, 0x3f803f80
v_mov_b32 v%d, 0x3f803f80
s_mov_b32 s64, 0x%08x
s_mov_b32 s65, 0x%08x
""" % (IMG_RS, IMG, VT + 10, VT + 11, VT + 22, VT + 23, f2u(1.4426950408889634), f2u(1.4426950408889634)))
def pack20(sec, tau, dst, o=None):
    for t in range(5):
        cvt(dst + 2 * t, acc(5 * sec + t, tau), o); cvt(dst + 2 * t + 1, acc(5 * sec + t, tau) + 2, o)
def pmf(sec, srcs):
    for tau in range(2):
        for t in range(5):
            d = acc(5 * sec + t, tau)
            a("v_mfma_f32_16x16x16_bf16 %s, %s, %s, 0" % (q4(d), q2(WP + 10 * t + 8), q2(srcs + 10 * tau + 8)))
    for tau in range(2):
        for t in range(5):
            d = acc(5 * sec + t, tau)
            smf(d, WP + 10 * t, srcs + 10 * tau, q4(d))
            smf(d, WP + 10 * t + 4, srcs + 10 * tau + 4, q4(d))
def softmax2(sec, tau, dst, tmp, tv):
    o = Asm()
    p = [acc(5 * sec + t, tau) + r for t in range(5) for r in range(4)]
    A0, B0 = tv, tv + 2
    o("v_max3_f32 v%d, v%d, v%d, v%d" % (A0, p[0], p[1], p[2])); o("v_min3_f32 v%d, v%d, v%d, v%d" % (B0, p[0], p[1], p[2]))
    for i in range(3, 19, 2):
        o("v_max3_f32 v%d, v%d, v%d, v%d" % (A0, A0, p[i], p[i + 1])); o("v_min3_f32 v%d, v%d, v%d, v%d" % (B0, B0, p[i], p[i + 1]))
    o("v_max_f32 v%d, v%d, v%d\nv_min_f32 v%d, v%d, v%d" % (A0, A0, p[19], B0, B0, p[19]))
    o("v_mul_f32 v%d, s64, v%d\nv_mul_f32 v%d, s64, v%d" % (A0, A0, B0, B0))
    for i in range(0, 20, 2):
        o("v_pk_fma_f32 %s, %s, s[64:65], %s op_sel_hi:[1,1,0] neg_lo:[1,0,0] neg_hi:[1,0,0]" % (q2(tmp + i), q2(p[i]), q2(B0)))
        o("v_pk_fma_f32 %s, %s, s[64:65], %s op_sel_hi:[1,1,0] neg_lo:[0,0,1] neg_hi:[0,0,1]" % (q2(p[i]), q2(p[i]), q2(A0)))
    for i in range(20):
        o("v_exp_f32 v%d, v%d" % (p[i], p[i])); o("v_exp_f32 v%d, v%d" % (tmp + i, tmp + i))
    o("v_pk_add_f32 %s, %s, %s" % (q2(A0), q2(p[0]), q2(p[2]))); o("v_pk_add_f32 %s, %s, %s" % (q2(B0), q2(tmp), q2(tmp + 2)))
    for i in range(4, 20, 2):
        o("v_pk_add_f32 %s, %s, %s" % (q2(A0), q2(A0), q2(p[i]))); o("v_pk_add_f32 %s, %s, %s" % (q2(B0), q2(B0), q2(tmp + i)))
    o("v_add_f32 v%d, v%d, v%d\nv_add_f32 v%d, v%d, v%d\nv_rcp_f32 v%d, v%d\nv_rcp_f32 v%d, v%d" % (A0, A0, A0 + 1, B0, B0, B0 + 1, A0, A0, B0, B0))
    for i in range(0, 20, 2):
        o("v_pk_mul_f32 %s, %s, %s op_sel_hi:[1,0]" % (q2(p[i]), q2(p[i]), q2(A0)))
        o("v_pk_mul_f32 %s, %s, %s op_sel_hi:[1,0]" % (q2(tmp + i), q2(tmp + i), q2(B0)))
    for i in range(0, 20, 2):
        cvt(dst + i // 2, p[i], o); cvt(dst + 10 + i // 2, tmp + i, o)
    return o
for tau in range(2): pack20(1, tau, PK + 10 * tau)
for tau in range(2): pack20(2, tau, VT + 12 * tau)
a("s_waitcnt lgkmcnt(0)")
pmf(1, PK)
lds_wait(F_FREE, 4, "9", 248)
for tau in range(2):
    for m in range(3): a("ds_write_b128 v127, %s offset:%d" % (q4(VT + 12 * tau + 4 * m), IMG_V + tau * 16 * IMG_RS + 16 * m))
TM = acc(10, 0)
PHK = 16
merge([softmax2(1, 0, PHK, TM, 248), softmax2(1, 1, PHK + 20, TM + 20, 252)])
for tau in range(2):
    for m in range(5): a("ds_write_b128 v126, %s offset:%d" % (q4(PHK + 20 * tau + 4 * m), tau * 16 * IMG_RS + 16 * m))
a("v_mov_b32 v12, 1\nds_write_b32 v14, v12 offset:%d" % (F_XR - F_FREE))
stamp(3)
gemm_loop('B', [(0, j, j) for j in range(5)], B_XB, 2, lambda j: False, acc, 10, 10, (B_T[1] - B_T[0], B_T[2] - B_T[1], B_T[0] - B_T[2]), 20, areg=(4, 6, 7))
stamp(4)
for tau in range(2): pack20(0, tau, PK + 10 * tau)
pmf(0, PK)
PHQ = 36
a("""
v_lshrrev_b32 v8, 2, v3
v_and_b32 v9, 3, v3
v_mul_u32_u24 v10, 80, v2
v_add_u32 v10, %d, v10
v_mul_u32_u24 v11, %d, v9
v_add_u32 v11, v11, v10
v_add_u32 v10, %d, v10
v_mov_b32 v12, %d
v_cmp_eq_u32 vcc, v8, v2
v_cndmask_b32 v9, v12, v10, vcc
v_cndmask_b32 v4, v12, v11, vcc
""" % (IMG, IMG_RS, 20 * IMG_RS, ZERO))
for t in range(1, 5):
    a("v_add_u32 v11, %d, v11\nv_cndmask_b32 v%d, v12, v11, vcc" % (4 * IMG_RS, (5, 6, 7, 13)[t - 1]))
merge([softmax2(0, 0, PHQ, TM, 248), softmax2(0, 1, PHQ + 20, TM + 20, 252)])
o_addr()
stamp(5)
lds_wait(F_KVR, 2, "1", 248)
stamp(6)
def oacc(t, tau): return ACC + (t * 2 + tau) * 4
FR = 76
Q = LgkmQ(15)
its = [(t, c) for t in (5, 0, 1, 2, 3, 4) for c in range(5)]
areg = {0: 4, 1: 5, 2: 6, 3: 7, 4: 13, 5: 9}
def kread(m):
    t, c = its[m]
    a("ds_read_b128 %s, v%d offset:%d" % (q4(FR + (m % 12) * 4), areg[t], c * 16)); Q.push(m)
for m in range(10): kread(m)
for m in range(30):
    t, c = its[m]
    if m % 2 == 0: a("s_waitcnt lgkmcnt(%d)" % Q.wait(m + 1))
    for tau in range(2):
        d = oacc(t, tau)
        smf(d, FR + (m % 12) * 4, PHQ + 20 * tau + 4 * c, "0" if c == 0 else q4(d))
        if tau == 0 and m + 10 < 30: kread(m + 10)
    if m == 9:
        for tau in range(2):
            a("v_add_f32 v%d, 0x%08x, v%d" % (10 + 2 * tau, f2u(1e-6), oacc(5, tau)))
            a("v_rcp_f32 v%d, v%d" % (10 + 2 * tau, 10 + 2 * tau))
for t in range(5):
    for tau in range(2):
        for i in range(2):
            r = oacc(t, tau) + 2 * i
            a("v_pk_mul_f32 %s, %s, %s op_sel_hi:[1,0]" % (q2(r), q2(r), q2(10 + 2 * tau)))
    for tau in range(2):
        for i in range(2):
            cvt((OPK + 8 * tau + 2 * t + i) if t < 4 else (OPK + 16 + 2 * tau + i), oacc(t, tau) + 2 * i)
a("s_mov_b32 s66, %d\ns_mov_b32 s67, %d\ns_mov_b32 s68, %d\ns_mov_b32 s69, %d\ns_mov_b32 s70, %d\ns_mov_b32 s71, %d" %
  (B_WO[0], B_WO[1], B_WO[2], B_WO[3], 8 * 160, 4 * 160))

a.label("k_P2")
for i in range(4): a("buffer_store_dwordx4 %s, v8, s[44:47], s12 offen offset:%d%s" % (q4(OPK + 4 * i), i * 1024, OST))
a("buffer_store_dwordx4 %s, v8, s[44:47], s13 offen%s" % (q4(OPK + 16), OST))
stamp(7)
OF = 88; A2 = 40; R2 = 0
a("""
v_bfe_u32 v5, v1, 2, 2
v_and_b32 v6, 3, v1
v_mad_u32_u24 v7, v2, 20, v5
v_mul_u32_u24 v7, 160, v7
v_lshl_add_u32 v252, v6, 3, v7
v_lshl_add_u32 v7, v2, 2, v5
v_mul_u32_u24 v7, 160, v7
v_lshl_add_u32 v253, v6, 3, v7
s_cmp_eq_u32 s5, 0
s_cselect_b64 vcc, -1, 0
v_cndmask_b32 v248, v252, v253, vcc
s_and_b32 s74, s7, 3
s_cmp_eq_u32 s74, 0
s_cbranch_scc1 k_rot_done
k_rot:
s_mov_b32 s9, s66
s_mov_b32 s66, s67
s_mov_b32 s67, s68
s_mov_b32 s68, s69
s_mov_b32 s69, s9
s_sub_u32 s74, s74, 1
s_cmp_lg_u32 s74, 0
s_cbranch_scc1 k_rot
k_rot_done:
s_sub_u32 s69, s69, s68
s_sub_u32 s68, s68, s67
s_sub_u32 s67, s67, s66
s_and_b32 s74, s7, 3
v_add_u32 v248, s66, v248
v_add_u32 v252, s66, v252
v_add_u32 v249, s71, v248
v_add_u32 v250, s70, v248
v_add_u32 v251, s70, v249
""")
for r in range(A2, A2 + 40): a("v_mov_b32 v%d, 0" % r)
a("""
s_lshl_b32 s9, s6, 7
s_lshl_b32 s10, s8, 5
s_add_u32 s9, s9, s10
v_add_u32 v4, s9, v3
v_mul_u32_u24 v4, 2560, v4
s_mul_i32 s9, s5, 1280
s_mul_i32 s10, s7, 160
s_add_u32 s72, s9, s10
s_add_u32 s73, s72, 40960
v_and_b32 v5, 1, v2
v_lshlrev_b32 v5, 5, v5
v_lshrrev_b32 v6, 1, v2
v_lshl_add_u32 v5, v6, 4, v5
v_add_u32 v5, v5, v4
v_lshl_add_u32 v6, v2, 3, v4
v_mov_b32 v12, 1
s_waitcnt vmcnt(0)
ds_write_b32 v14, v12 offset:%d
""" % (F_ODONE - F_FREE))
lds_wait(F_ORDY, 1, "1", 80)
stamp(8)
VQ = LgkmQ(63)
def of(G, piece): return OF + (G * 5 + piece) * 4
def oload(P):
    if OPT("norot2"): a("s_mov_b32 s74, 0")
    a("s_add_u32 s75, s74, %d\ns_and_b32 s75, s75, 3\ns_mul_i32 s75, s75, 10240\ns_add_u32 s75, s75, s15" % P)
    for G in (2 * P, 2 * P + 1):
        a("s_add_u32 s13, s75, %d\ns_add_u32 s12, s75, %d" % ((G & 1) * 5120, (G & 1) * 5120 + 4096))
        for pc in (0, 2, 1, 3): a("buffer_load_dwordx4 %s, v8, s[44:47], s13 offen offset:%d%s" % (q4(of(G, pc)), pc * 1024, OFL)); VQ.push((G, pc))
        a("buffer_load_dwordx4 %s, v8, s[44:47], s12 offen%s" % (q4(of(G, 4)), OFL)); VQ.push((G, 4))
oload(0); oload(1)
def acc2(t, tau): return A2 + (t * 2 + tau) * 4
R2 = 16; RN2 = 6; D2 = 4
Q = LgkmQ(15)
its = [(P, c, t) for P in range(4) for c in range(5) for t in range(5)]
def w2read(m, hf):
    P, c, t = its[m]
    if c < 4:
        G, p = divmod(c, 2)
        reg = 248 + p * 2 + hf; off = G * 80 * 160 + 32 * t
    else:
        reg = 252; off = (80 * hf + 16) * 160 + 32 * t
    a("ds_read_b64_tr_b16 %s, v%d offset:%d" % (q2(R2 + (m % RN2) * 4 + 2 * hf), reg, off)); Q.push((m, hf))
for P in range(4):
    if P == 0: lds_wait(F_WO, 2, "4", 80); Q.clear()
    if P > 0:
        for r in range(248, 253): a("v_add_u32 v%d, s%d, v%d" % (r, 66 + P, r))
    for m in range(25 * P, 25 * P + D2): w2read(m, 0); w2read(m, 1)
    if P + 2 < 4: oload(P + 2)
    for m in range(25 * P, 25 * P + 25):
        _, c, t = its[m]
        if t == 0:
            tg = (2 * P + c // 2, 2 + c % 2) if c < 4 else (2 * P + 1, 4)
            w = VQ.wait(tg)
            if w is not None: a("s_waitcnt vmcnt(%d)" % w)
            if c == 4:
                a("v_swap_b32 v%d, v%d\nv_swap_b32 v%d, v%d" % (of(2 * P, 4) + 2, of(2 * P + 1, 4), of(2 * P, 4) + 3, of(2 * P + 1, 4) + 1))
        w = Q.wait((m, 1))
        if w is not None: a("s_waitcnt lgkmcnt(%d)" % w)
        for tau in range(2):
            d = acc2(t, tau)
            B = of(2 * P + c // 2, 2 * tau + c % 2) if c < 4 else of(2 * P + tau, 4)
            smf(d, R2 + (m % RN2) * 4, B, q4(d))
            if m + D2 < 25 * P + 25: w2read(m + D2, tau)
OP = 88
for tau in range(2):
    for t in range(5):
        cvt(OP + 12 * tau + 2 * t, acc2(t, tau)); cvt(OP + 12 * tau + 2 * t + 1, acc2(t, tau) + 2)
for tau in range(2):
    for p in range(2):
        a("v_permlane16_swap_b32 v%d, v%d" % (OP + 12 * tau + 4 * p, OP + 12 * tau + 4 * p + 2))
        a("v_permlane16_swap_b32 v%d, v%d" % (OP + 12 * tau + 4 * p + 1, OP + 12 * tau + 4 * p + 3))
for tau in range(2):
    for p in range(2):
        a("buffer_store_dwordx4 %s, v5, s[60:63], s%d offen offset:%d" % (q4(OP + 12 * tau + 4 * p), 72 + tau, 64 * p))
    a("buffer_store_dwordx2 %s, v6, s[60:63], s%d offen offset:128" % (q2(OP + 12 * tau + 8), 72 + tau))
if not OPT("cntslow"): stamp(9)
if OPT("diag"):
    a("""
    s_memtime s[84:85]
    s_memrealtime s[86:87]
    s_waitcnt lgkmcnt(0)
    s_sub_u32 s84, s84, s80
    s_sub_u32 s86, s86, s82
    s_cmp_lt_u32 s2, 8
    s_cbranch_scc0 k_nodiag
    s_cmp_eq_u32 s8, 0
    s_cbranch_scc0 k_nodiag
    v_mov_b32 v16, s84
    v_mov_b32 v17, s86
    s_lshl_b32 s9, s2, 3
    s_mov_b64 exec, 1
    buffer_store_dwordx2 v[16:17], v15, s[48:51], s9 offen
    k_nodiag:
    """)
stamp_store()
a("s_endpgm")

a.label("k_loader")
a("""
v_lshrrev_b32 v8, 3, v1
v_mul_u32_u24 v8, 1280, v8
v_and_b32 v9, 7, v1
v_xor_b32 v9, v9, v2
v_lshl_add_u32 v24, v9, 4, v8
v_xor_b32 v25, 64, v24
v_add_u32 v25, 9216, v25
v_add_u32 v26, 18432, v24
v_add_u32 v27, 18432, v25
v_mul_u32_u24 v8, 26, v1
v_lshrrev_b32 v8, 8, v8
v_mul_u32_u24 v9, 10, v8
v_sub_u32 v9, v1, v9
v_lshlrev_b32 v9, 4, v9
v_mul_u32_u24 v6, 1280, v8
v_add_u32 v6, v6, v9
""")
for e in range(1, 4): a("v_add_u32 v%d, %d, v6" % (28 + e, e * (6 * 1280 - 960)))
for e in range(11):
    a("""
    v_add_u32 v10, %d, v8
    v_and_b32 v11, 4, v10
    v_and_b32 v12, 8, v10
    v_and_b32 v10, 0x33, v10
    v_lshl_add_u32 v10, v11, 1, v10
    v_lshrrev_b32 v12, 1, v12
    v_add_u32 v10, v10, v12
    v_mul_u32_u24 v10, 3840, v10
    """ % (6 * e))
    if e % 4: a("v_subrev_u32 v10, %d, v10" % ((e % 4) * 960))
    a("v_add_u32 v%d, v10, v9" % (32 + e))
a("v_mov_b32 v28, v6")
a("""
s_mul_i32 s64, s6, 163840
s_sub_u32 s65, s64, 20480
s_cmp_eq_u32 s6, 0
s_cselect_b32 s65, 0, s65
s_mov_b32 s66, -1
s_mov_b32 s67, 0x0fffffff
s_mov_b32 s68, -1
s_mov_b32 s69, 0xff
s_mul_i32 s70, s7, 160
s_sub_u32 s9, s8, 4
s_lshl_b32 s9, s9, 2
s_add_u32 s9, s9, %d
v_mov_b32 v14, s9
""" % F_FULL)
if ROT:
    a("""
    s_and_b32 s12, s6, 7
    s_and_b32 s9, s7, 3
    s_lshl_b32 s9, s9, 1
    s_add_u32 s12, s12, s9
    s_cmp_ge_u32 s12, 10
    s_cselect_b32 s9, 10, 0
    s_sub_u32 s12, s12, s9
    """)
else: a("s_mov_b32 s12, 0")
srds()
def dma_list(xs, secs, xb, halo):
    return [('x', i) for i in xs] + [('w', g, l, e) for (g, l) in secs for e in range(11)]
def issue(lst, xb, halo):
    ex = None; so = None; m0 = None
    for it in lst:
        if it[0] == 'x':
            i = it[1]
            if ex != -1: a("s_mov_b64 exec, -1"); ex = -1
            if halo: base, k, j = ("s65", 0, i) if i < 2 else ("s64", (i - 2) // 4 * 4, (i - 2) % 4)
            else: base, k, j = "s64", i // 4 * 4, i % 4
            if m0 != i - j: a("s_add_u32 m0, s11, %d" % ((i - j) * 1024)); m0 = i - j
            if so != (base, k):
                if k: a("s_add_u32 s15, s74, %d" % (k * 10240))
                else: a("s_add_u32 s15, %s, s13" % base)
                so = (base, k)
            if not OPT("nodma"): a("buffer_load_dwordx4 v%d, s[36:39], s15 offen offset:%d%s lds" % (24 + j, j * 1024, NT))
        else:
            _, g, l, e = it
            m = 66 if e < 10 else 68
            mm = ('w', l, e // 4)
            if m0 != mm: a("s_add_u32 m0, s11, %d" % (xb + l * SEC + (e // 4) * 3840)); m0 = mm
            if ex != m: a("s_mov_b64 exec, s[%d:%d]" % (m, m + 1)); ex = m
            if so != ('w', g): a("s_add_u32 s15, s71, %d" % (g * 1280)); so = ('w', g)
            if not OPT("nodma"): a("buffer_load_dwordx4 v%d, s[40:43], s15 offen offset:%d%s lds" % (32 + e, (e % 4) * 960, NT))
    a("s_mov_b64 exec, -1")
def load_loop(lst, xb, halo, first, nst, deltas, h, firstbar, base0=None):
    n = len(lst)
    lbl = L("ld")
    a("s_mov_b32 s10, %d\ns_mov_b32 s72, 0\ns_mov_b32 s100, %d\ns_mov_b32 s101, %d" % (first, deltas[0], deltas[1]))
    if base0 is not None: a("s_mov_b32 s11, %d" % base0)
    a.label(lbl)
    skip = L("nf")
    a("v_mov_b32 v7, s10\ns_cmp_lt_u32 s10, 3\ns_cbranch_scc1 %s" % skip)
    a("ds_read_b128 v[16:19], v0 offset:%d\nds_read_b64 v[20:21], v0 offset:%d\ns_sub_u32 s73, s10, 2" % (F_FREE - FLG, F_FREE + 16 - FLG))
    a("s_waitcnt lgkmcnt(0)\nv_min3_u32 v16, v16, v17, v18\nv_min3_u32 v16, v16, v19, v20\nv_min_u32 v16, v16, v21\nv_readfirstlane_b32 s9, v16")
    a("s_cmp_ge_u32 s9, s73\ns_cbranch_scc1 %s" % skip)
    a("s_waitcnt vmcnt(0)\nds_write_b32 v14, v7")
    trace(3, "s9")
    lds_wait(F_FREE, 6, "s73", 16)
    a.label(skip)
    trace(4, "s9")
    a("s_lshl_b32 s13, s12, 7\ns_mul_i32 s71, s12, %d\ns_add_u32 s71, s71, s70\ns_add_u32 s74, s64, s13" % (64 * 3840))
    issue(lst[:h], xb, halo)
    if firstbar:
        nb = L("nb")
        a("s_cmp_eq_u32 s10, 0\ns_cbranch_scc0 %s\ns_barrier" % nb)
        a.label(nb)
    a("s_waitcnt vmcnt(%d)\nds_write_b32 v14, v7" % h)
    if h < n: issue(lst[h:], xb, halo)
    a("""
    s_add_u32 s12, s12, 1
    s_cmp_eq_u32 s12, 10
    s_cselect_b32 s12, 0, s12
    s_add_u32 s72, s72, 1
    s_cmp_eq_u32 s72, 2
    s_cselect_b32 s73, s101, s100
    s_cmp_eq_u32 s72, 3
    s_cselect_b32 s73, %d, s73
    s_cselect_b32 s72, 0, s72
    s_add_u32 s11, s11, s73
    s_add_u32 s10, s10, 1
    s_cmp_lt_u32 s10, %d
    s_cbranch_scc1 %s
    """ % (deltas[2], first + nst, lbl))
def wo_phase(P, base, half):
    es = range(0, 14) if half == 0 else range(14, 27)
    a("s_mov_b64 exec, s[66:67]")
    for q, e in enumerate(es):
        if e == 26: a("s_mov_b64 exec, s[68:69]")
        if q % 4 == 0: a("s_mov_b32 m0, %d\ns_add_u32 s15, s70, %d" % (base + e * 960, (160 * P + 6 * e) * 1280))
        a("buffer_load_dwordx4 v%d, s[56:59], s15 offen offset:%d lds" % (28 + q % 4, (q % 4) * 960))
    a("s_mov_b64 exec, -1")
    return len(es)
def publish(v, off, n):
    a("v_mov_b32 v7, %d\ns_waitcnt vmcnt(%d)\nds_write_b32 v14, v7 offset:%d" % (v, n, off))
AD = (A_SLOT, A_SLOT, -2 * A_SLOT); BD = (B_S1, B_S1, -2 * B_S1); TD = (B_T[1] - B_T[0], B_T[2] - B_T[1], B_T[0] - B_T[2])
a("s_cmp_eq_u32 s5, 0\ns_cbranch_scc0 k_lB")
for half, lw in ((0, 4), (1, 5)):
    if lw == 4: a("s_cmp_eq_u32 s8, 4\ns_cbranch_scc0 k_l5A")
    else: a.label("k_l5A"); a("s_setprio %d" % (0 if OPT("noprio") else 2))
    lst = dma_list(range(18), [(0, 0)], A_XB, True) if lw == 4 else dma_list([], [(1, 1), (2, 2)], A_XB, True)
    load_loop(lst, A_XB, True, 0, 10, AD, 14 if lw == 4 else 11, True, base0=0)
    publish(100, 0, 0)
    stamp(2)
    lds_wait(F_FREE, 6, "9", 16)
    ns = [wo_phase(P, A_WO[P], half) for P in range(3)]
    lds_wait(F_FREE, 6, "10", 16)
    publish(1, 8, ns[1] + ns[2])
    n3 = wo_phase(3, A_WO[3], half)
    publish(2, 8, ns[2] + n3); publish(3, 8, n3); publish(4, 8, 0)
    stamp(3)
    stamp_store()
    a("s_endpgm")
a.label("k_lB")
for half, lw in ((0, 4), (1, 5)):
    if lw == 4: a("s_cmp_eq_u32 s8, 4\ns_cbranch_scc0 k_l5B")
    else: a.label("k_l5B"); a("s_setprio %d" % (0 if OPT("noprio") else 2))
    if lw == 4:
        load_loop(dma_list(range(16), [], B_XB, False), B_XB, False, 0, 10, BD, 12, True, base0=0)
        load_loop(dma_list(range(16), [], B_XB, False), B_XB, False, 10, 10, TD, 16, False)
    else:
        load_loop(dma_list([], [(1, 0), (2, 1)], B_XB, False), B_XB, False, 0, 10, BD, 15, True, base0=0)
        load_loop(dma_list([], [(0, 0)], B_XB, False), B_XB, False, 10, 10, TD, 11, False)
    publish(100, 0, 0)
    stamp(2)
    lds_wait(F_KVD, 2, "1", 16)
    ns = [wo_phase(P, B_WO[P], half) for P in range(2)]
    lds_wait(F_FREE, 4, "18", 16)
    publish(1, 8, ns[1])
    n2 = wo_phase(2, B_WO[2], half)
    lds_wait(F_FREE, 4, "19", 16)
    publish(2, 8, n2)
    n3 = wo_phase(3, B_WO[3], half)
    publish(3, 8, n3); publish(4, 8, 0)
    stamp(3)
    stamp_store()
    a("s_endpgm")

a.label("k_h67")
a("""
s_cmp_eq_u32 s8, 7
s_cbranch_scc0 k_h6i
v_lshl_add_u32 v8, v1, 2, v0
ds_write_b32 v8, v15
s_waitcnt lgkmcnt(0)
""")
a.label("k_h6i")
srds()
a("s_barrier")
a("""
v_mov_b32 v16, 0
v_mov_b32 v17, 0
v_mov_b32 v18, 0
v_mov_b32 v19, 0
v_mov_b32 v20, 1
s_lshl_b32 s74, s5, 4
s_add_u32 s74, s74, s6
s_lshl_b32 s75, s74, 2
s_add_u32 s75, s75, DIAGOFF
s_lshl_b32 s74, s74, 8
s_add_u32 s74, s74, %d
s_or_b32 s9, s7, s8
s_cmp_eq_u32 s9, 6
s_cbranch_scc0 k_noz
s_cmp_eq_u32 s7, 0
s_cbranch_scc0 k_noz
s_mov_b64 exec, 1
buffer_store_dword v16, v15, s[44:47], s74 offen sc1
s_waitcnt vmcnt(0)
buffer_store_dword v20, v15, s[48:51], s75 offen sc1
s_mov_b64 exec, -1
""" % CNT)
a.label("k_noz")
if OPT("pfwo"):
    a("""
    s_sub_u32 s9, s8, 6
    s_mul_i32 s9, s9, 10
    s_mul_i32 s10, s4, 20
    s_add_u32 s9, s9, s10
    s_mul_i32 s9, s9, 1280
    s_lshr_b32 s10, s7, 2
    s_mul_i32 s10, s10, 640
    s_add_u32 s9, s9, s10
    v_mul_u32_u24 v8, 205, v1
    v_lshrrev_b32 v8, 13, v8
    v_mul_u32_u24 v9, 40, v8
    v_sub_u32 v9, v1, v9
    v_lshlrev_b32 v9, 4, v9
    v_mul_u32_u24 v8, 1280, v8
    v_add_u32 v8, v8, v9
    s_mov_b32 s66, -1
    s_mov_b32 s67, 0xff
    s_mov_b64 exec, s[66:67]
    """)
    for i in range(10):
        a("buffer_load_dwordx4 v[24:27], v8, s[56:59], s9 offen\ns_add_u32 s9, s9, 1280")
    a("s_mov_b64 exec, -1")
a("s_cmp_eq_u32 s5, 0\ns_cbranch_scc0 k_h67B")
lane_parts(); w_addrs(); x_addrs("0")
a("s_lshl_b32 s9, s8, 2\ns_add_u32 s9, s9, %d\nv_mov_b32 v14, s9" % (F_FREE - 8))
for r in range(ACC, ACC + 20): a("v_mov_b32 v%d, 0" % r)
hacc = lambda j, t: ACC + (j % 5) * 4
a("s_setprio 3\ns_cmp_eq_u32 s8, 6\ns_cbranch_scc0 k_h7A")
gemm_loop('A', [(1, t, 5 + t) for t in range(5)], A_XB, 1, lambda j: False, hacc, 10, 0, AD, 10, D=4)
a("v_lshlrev_b32 v8, 4, v1")
packK(lambda t: hacc(t, 0), 64)
lds_wait(F_FREE, 6, "8", 248)
for h in range(4): a("ds_write_b128 v8, %s offset:%d" % (q4(64 + 4 * h), A_EXCH + h * 1024))
a("v_mov_b32 v12, 1\ns_mov_b64 exec, 1\nds_add_u32 v0, v12 offset:%d\ns_mov_b64 exec, -1" % (F_XR - FLG))
a("s_branch k_opoll")
a.label("k_h7A")
gemm_loop('A', [(2, t, 10 + t) for t in range(5)], A_XB, 1, lambda j: True, hacc, 10, 0, AD, 10, D=4)
a("v_lshlrev_b32 v8, 3, v1")
for t in range(5):
    cvt(64 + 2 * t, hacc(t, 0)); cvt(65 + 2 * t, hacc(t, 0) + 2)
lds_wait(F_FREE, 6, "8", 248)
for t in range(5): a("ds_write_b64 v8, %s offset:%d" % (q2(64 + 2 * t), A_EXCH + 4096 + t * 512))
a("v_mov_b32 v12, 1\ns_mov_b64 exec, 1\nds_add_u32 v0, v12 offset:%d" % (F_XR - FLG))
a("s_endpgm")

a.label("k_h67B")
a("""
v_lshlrev_b32 v8, 4, v1
s_sub_u32 s76, s8, 6
s_lshl_b32 s77, s7, 1
s_add_u32 s77, s77, s76
s_mul_i32 s78, s77, 12288
s_add_u32 s78, s78, %d
s_lshl_b32 s77, s77, 8
s_add_u32 s77, s77, %d
s_lshl_b32 s79, s7, 2
s_add_u32 s79, s79, 192
s_cmp_eq_u32 s8, 6
s_cbranch_scc0 k_h7B
s_mul_i32 s9, s7, 3200
""" % (KVSUM, CNT + 32 * 256))
for i in range(4):
    if i == 3: a("s_mov_b64 exec, 0xff")
    a("s_mov_b32 m0, %d" % (WPHI + i * 1024))
    a("buffer_load_dwordx4 v8, s[52:55], s9 offen lds")
    if i < 3: a("s_add_u32 s9, s9, 1024")
a("s_mov_b64 exec, -1\ns_branch k_h67Bz")
a.label("k_h7B")
a("s_mov_b32 s66, -1\ns_mov_b32 s67, 0xff\ns_mov_b64 exec, s[66:67]\nv_add_u32 v9, %d, v8\nds_write_b128 v9, v[16:19]\ns_mov_b64 exec, -1" % ZERO)
a.label("k_h67Bz")
a("s_cmp_eq_u32 s6, 0\ns_cbranch_scc0 k_h67Bn\ns_mov_b32 s9, s78")
for i in range(12):
    a("buffer_store_dwordx4 v[16:19], v8, s[44:47], s9 offen sc1")
    if i < 11: a("s_add_u32 s9, s9, 1024")
a("""
s_mov_b64 exec, 1
buffer_store_dword v16, v15, s[44:47], s77 offen sc1
s_waitcnt vmcnt(0)
buffer_atomic_add v20, v15, s[48:51], s79 offen sc1
s_mov_b64 exec, -1
""")
a.label("k_h67Bn")
a("s_waitcnt vmcnt(0) lgkmcnt(0)")
a("s_lshl_b32 s9, s76, 2\nv_add_u32 v14, s9, v0")
a("v_mov_b32 v12, 0x7fffffff\nds_write_b32 v14, v12 offset:%d" % (F_FREE + 16 - FLG))
lane_parts()
a("""
s_mul_i32 s9, s76, 160
s_add_u32 s9, s9, %d
v_mul_u32_u24 v4, %d, v10
v_lshl_add_u32 v4, v9, 3, v4
v_add_u32 v5, %d, v4
v_add_u32 v4, s9, v4
s_mul_i32 s10, s76, 96
v_add_u32 v5, s10, v5
v_lshlrev_b32 v6, 2, v1
v_mul_u32_u24 v12, %d, v3
v_lshl_add_u32 v12, v2, 3, v12
v_add_u32 v12, s9, v12
s_mov_b32 s66, 0x001f001f
s_mov_b32 s67, 0x001f001f
s_mov_b32 s68, -1
s_mov_b32 s69, 0
s_mov_b32 s70, 0x001f001f
s_mov_b32 s71, 0
""" % (IMG, IMG_RS, IMG + IMG_V, IMG_RS))
lds_wait(F_FULL, 2, "6", 248, sleep=8)
glb_wait("s[48:51]", "v15", "s79", "2", 13)
lds_wait(F_XR, 4, "1", 248, sleep=2)
stamp(3)
KA = 128
def tile_mask(ft, dt):
    if ft < 2: return "-1" if dt == 0 else "s[66:67]"
    return "s[68:69]" if dt == 0 else "s[70:71]"
seq = [(hh, kap) for hh in range(2) for kap in range(4)]
def kvreads(i):
    hh, kap = seq[i]; base = 16 + (i % 2) * 20
    for ft in range(3):
        for hf in range(2): a("ds_read_b64_tr_b16 %s, v4 offset:%d" % (q2(base + 4 * ft + 2 * hf), (32 * kap + 8 * hf) * IMG_RS + ft * 32 + hh * 80))
    for dt in range(2):
        for hf in range(2): a("ds_read_b64_tr_b16 %s, v5 offset:%d" % (q2(base + 12 + 4 * dt + 2 * hf), (32 * kap + 8 * hf) * IMG_RS + dt * 32 + hh * 48))
def atom(hh, load):
    for ft in range(3):
        for dt in range(2):
            if not load: a("s_mov_b64 exec, %s" % tile_mask(ft, dt))
            for r in range(4):
                i = (ft * 2 + dt) * 4 + r
                if i % 16 == 0: a("s_add_u32 s9, s78, %d" % (hh * 6144 + i * 256))
                if load: a("buffer_load_dword v%d, v6, s[44:47], s9 offen offset:%d sc1" % (KA + hh * 24 + i, (i % 16) * 256))
                else: a("buffer_atomic_add_f32 v%d, v6, s[44:47], s9 offen offset:%d%s sc1" % (KA + hh * 24 + i, (i % 16) * 256, " sc0" if OPT("ret") else ""))
    a("s_mov_b64 exec, -1")
kvreads(0)
for i in range(8):
    hh, kap = seq[i]; pb = 16 + (i % 2) * 20
    if i + 1 < 8: kvreads(i + 1); a("s_waitcnt lgkmcnt(10)")
    else: a("s_waitcnt lgkmcnt(0)\nv_mov_b32 v13, 1\nds_write_b32 v14, v13 offset:%d" % (F_KVD - FLG))
    for ft in range(3):
        for dt in range(2):
            d = KA + hh * 24 + (ft * 2 + dt) * 4
            smf(d, pb + 4 * ft, pb + 12 + 4 * dt, "0" if kap == 0 else q4(d))
    if i == 4: atom(0, False)
atom(1, False)
if OPT("dbgkv"):
    a("s_waitcnt vmcnt(0)\ns_lshl_b32 s10, s2, 1\ns_add_u32 s10, s10, s76\ns_mul_i32 s10, s10, 12288\ns_add_u32 s10, s10, %d" % (48 << 20))
    for i in range(48): a("v_mov_b32 v%d, v%d" % (180 + i, KA + i))
a("v_mov_b32 v20, 1\ns_mov_b64 exec, 1\ns_waitcnt vmcnt(0)")
stamp(4)
a("buffer_atomic_add v20, v15, s[44:47], s77 offen sc1")
lds_wait(F_FULL, 2, "20", 248, sleep=4)
glb_wait("s[44:47]", "v15", "s77", "16", 13)
stamp(5)
a("s_mov_b64 exec, -1")
atom(0, True); atom(1, True)
if OPT("dbgkv"):
    a("s_waitcnt vmcnt(0)\ns_lshl_b32 s10, s2, 1\ns_add_u32 s10, s10, s76\ns_mul_i32 s10, s10, 12288\ns_add_u32 s10, s10, %d" % (32 << 20))
    for i in range(48):
        a("buffer_store_dword v%d, v6, s[44:47], s10 offen\ns_add_u32 s10, s10, 256" % (KA + i))
    a("s_lshl_b32 s10, s2, 1\ns_add_u32 s10, s10, s76\ns_mul_i32 s10, s10, 12288\ns_add_u32 s10, s10, %d" % (48 << 20))
    for i in range(48):
        a("buffer_store_dword v%d, v6, s[44:47], s10 offen\ns_add_u32 s10, s10, 256" % (180 + i))
    a("s_waitcnt vmcnt(0)")
for hh in range(2):
    a("s_waitcnt vmcnt(%d)" % (24 if hh == 0 else 0))
    for i in range(0, 24, 2): cvt(16 + hh * 12 + i // 2, KA + hh * 24 + i)
    for ft in range(3):
        for dt in range(2):
            a("s_mov_b64 exec, %s" % tile_mask(ft, dt))
            a("ds_write_b64 v12, %s offset:%d" % (q2(16 + hh * 12 + (ft * 2 + dt) * 2), dt * 16 * IMG_RS + ft * 32 + hh * 80))
    a("s_mov_b64 exec, -1")
a("v_mov_b32 v13, 1\nds_write_b32 v14, v13 offset:%d" % (F_KVR - FLG))
stamp(6)
a("s_cmp_eq_u32 s8, 6\ns_cbranch_scc1 k_opoll")
stamp_store()
a("s_endpgm")
a.label("k_opoll")
a("v_mov_b32 v20, 1")
glb_wait("s[48:51]", "v15", "s75", "1", 13)
lds_wait(F_ODONE, 4, "1", 248)
stamp(7)
a("s_mov_b64 exec, 1\nbuffer_atomic_add v20, v15, s[44:47], s74 offen sc1")
glb_wait("s[44:47]", "v15", "s74", "8", 13, sleep=2)
a("s_mov_b64 exec, -1\nds_write_b32 v0, v20 offset:%d" % (F_ORDY - FLG))
stamp(8)
stamp_store()
a.label("k_end")
a("s_endpgm")

a.raw('.section .rodata,"a"')
a.raw(""".p2align 6
.amdhsa_kernel %s
  .amdhsa_next_free_vgpr 256
  .amdhsa_next_free_sgpr 102
  .amdhsa_accum_offset 256
  .amdhsa_group_segment_fixed_size 0
  .amdhsa_kernarg_size 80
  .amdhsa_user_sgpr_count 2
  .amdhsa_user_sgpr_kernarg_segment_ptr 1
  .amdhsa_system_sgpr_workgroup_id_x 1
.end_amdhsa_kernel""" % KN)
out = [x for x in sys.argv[1:] if not x.startswith("--")][0]
open(out, "w").write(a.finish())
```

```python
import sys, struct
from asmlib import Asm, LgkmQ, Ins

NAME = "concat_heads__sliding_local_dilated__linear_kernel_hedgehog__prompt"
KN = NAME + "_kernel"
OPT = lambda o: ("--" + o) in sys.argv
AV = lambda n, d: int([x for x in sys.argv if x.startswith("--%s=" % n)][0].split("=")[1]) if any(x.startswith("--%s=" % n) for x in sys.argv) else d
STAMP = OPT("stamp"); NT = " nt" if OPT("nt") else ""
NSHA = AV("nsha", 0); NSHB = AV("nshb", 0); NPRE = AV("npre", 16); PRE_AT = AV("preat", 4); LSLP = AV("lslp", 0); CSLP = AV("cslp", 0)
def f2u(x): return struct.unpack("<I", struct.pack("<f", x))[0]

FLG = 163584
F_FREE = 16
F_AUX = 32
F_XR = 48
F_HX = 80
F_KVR = 96
F_KVD = 112
F_FULL = 128
F_WO = 216
A_SLOT = 49152; A_XB = 18432; SEC = 10240
A_EXCH = 49152
A_WO = [75776, 101376, 126976, 0]
B_S1 = 47104; B_XB = 16384
IMG = 90112; IMG_RS = 544; IMG_V = 320
WPHI = 159744; ZERO = 162944
B_WO = [51200, 0, 25600, 102624]
B_HX = 76800
B_HQ = 0
O_BR = 64 * 40960
PART = 8 << 20
CNT = 9 << 20
STAMP_OFF = 16 << 20
WS_BYTES = 268435456
SPIN = 0x100000
DG_O = 64; DG_K = 192

class Sec(Asm): pass
cur = [None]
def a(s): cur[0](s)
class _A:
    def __call__(self, s): cur[0](s)
    def raw(self, s): cur[0].raw(s)
    def label(self, s): cur[0].label(s)
    @property
    def items(self): return cur[0].items
a = _A()
secs = {}
def section(n):
    secs[n] = Asm(); cur[0] = secs[n]

def q4(r): return "v[%d:%d]" % (r, r + 3)
def q2(r): return "v[%d:%d]" % (r, r + 1)
def srd(n, lo, nbytes):
    a("s_mov_b32 s%d, s%d\ns_mov_b32 s%d, s%d\ns_mov_b32 s%d, %d\ns_mov_b32 s%d, 0x20000" % (n, lo, n + 1, lo + 1, n + 2, nbytes, n + 3))
def stamp(i):
    if STAMP: a("s_memtime s[%d:%d]" % (80 + 2 * i, 81 + 2 * i))
def stamp_store():
    if not STAMP: return
    a("s_waitcnt lgkmcnt(0)")
    for i in range(1, 10): a("s_sub_u32 s%d, s%d, s80" % (80 + 2 * i, 80 + 2 * i))
    a("s_mov_b64 exec, 1")
    for i in range(10): a("v_mov_b32 v%d, s%d" % (100 + i, 80 + 2 * i))
    a("v_mov_b32 v110, 0\nv_mov_b32 v111, 0")
    a("s_lshl_b32 s9, s2, 3\ns_add_u32 s9, s9, s8\ns_lshl_b32 s9, s9, 6\ns_add_u32 s9, s9, %d" % STAMP_OFF)
    a("v_mov_b32 v112, 0")
    a("buffer_store_dwordx4 v[100:103], v112, s[44:47], s9 offen")
    a("buffer_store_dwordx4 v[104:107], v112, s[44:47], s9 offen offset:16")
    a("buffer_store_dwordx4 v[108:111], v112, s[44:47], s9 offen offset:32")
uid = [0]
def L(p):
    uid[0] += 1; return "%s_%d" % (p, uid[0])
def cvt(d, s, o=None): (o or a)("v_cvt_pk_bf16_f32 v%d, v%d, v%d" % (d, s, s + 1))
def smf(d, A, B, C, o=None): (o or a)("v_mfma_f32_16x16x32_bf16 %s, %s, %s, %s" % (q4(d), q4(A), q4(B), C))
def merge(streams):
    its = [list(s.items) for s in streams]
    while any(its):
        for it in its:
            if it: a.items.append(it.pop(0))
def spin_tail(top, ok, sleep, bound):
    if sleep: a("s_sleep %d" % sleep)
    a("s_add_u32 s14, s14, 1\ns_cmp_lt_u32 s14, %d\ns_cbranch_scc1 %s" % (bound, top))
    a.label(ok)
def lds_wait(off, nwords, thr, vt, vz="v0", sleep=1):
    top = L("lw"); ok = L("lwok")
    a("s_mov_b32 s14, 0")
    a.label(top)
    if nwords == 1: a("ds_read_b32 v%d, %s offset:%d" % (vt, vz, off))
    elif nwords == 2: a("ds_read_b64 %s, %s offset:%d" % (q2(vt), vz, off))
    else: a("ds_read_b128 %s, %s offset:%d" % (q4(vt), vz, off))
    if nwords == 8: a("ds_read_b128 %s, %s offset:%d" % (q4(vt + 4), vz, off + 16))
    a("s_waitcnt lgkmcnt(0)")
    if nwords == 2: a("v_min_u32 v%d, v%d, v%d" % (vt, vt, vt + 1))
    if nwords == 4: a("v_min3_u32 v%d, v%d, v%d, v%d\nv_min_u32 v%d, v%d, v%d" % (vt, vt, vt + 1, vt + 2, vt, vt, vt + 3))
    if nwords == 8:
        a("v_min3_u32 v%d, v%d, v%d, v%d\nv_min3_u32 v%d, v%d, v%d, v%d" % (vt, vt, vt + 1, vt + 2, vt + 3, vt + 3, vt + 4, vt + 5))
        a("v_min3_u32 v%d, v%d, v%d, v%d\nv_min_u32 v%d, v%d, v%d" % (vt, vt, vt + 6, vt + 7, vt, vt, vt + 3))
    a("v_readfirstlane_b32 s9, v%d\ns_cmp_ge_u32 s9, %s\ns_cbranch_scc1 %s" % (vt, thr, ok))
    spin_tail(top, ok, sleep, SPIN)
def lds_wait0(off, vt, vz="v0", sleep=1):
    top = L("lz"); ok = L("lzok")
    a("s_mov_b32 s14, 0")
    a.label(top)
    a("ds_read_b32 v%d, %s offset:%d\ns_waitcnt lgkmcnt(0)\nv_readfirstlane_b32 s9, v%d\ns_cmp_eq_u32 s9, 0\ns_cbranch_scc1 %s" % (vt, vz, off, vt, ok))
    spin_tail(top, ok, sleep, SPIN)
def glb_wait(which, soff, thr, vt, sleep=1, vec=False):
    top = L("gw"); ok = L("gwok")
    a("s_mov_b32 s14, 0")
    a.label(top)
    if vec:
        a("buffer_load_dword v%d, v15, %s, %s offen sc1" % (vt, "s[44:47]" if which == 'ws' else "s[48:51]", soff))
        a("s_waitcnt vmcnt(0)\nv_readfirstlane_b32 s9, v%d" % vt)
    else:
        a("s_load_dword s9, %s, %s glc\ns_waitcnt lgkmcnt(0)" % ("s[34:35]" if which == 'ws' else "s[32:33]", soff))
    a("s_cmp_ge_u32 s9, %s\ns_cbranch_scc1 %s" % (thr, ok))
    spin_tail(top, ok, sleep, SPIN // 16)
def srd_xw():
    a("""
    s_mov_b32 s38, 2621440
    s_mov_b32 s39, 0x20000
    s_mov_b32 s42, 2457600
    s_mov_b32 s43, 0x20000
    s_cmp_eq_u32 s5, 0
    s_waitcnt lgkmcnt(0)
    s_cselect_b32 s36, s16, s22
    s_cselect_b32 s37, s17, s23
    s_cselect_b32 s40, s18, s24
    s_cselect_b32 s41, s19, s25
    """)
def srd_rest(wait=True):
    if wait: a("s_waitcnt lgkmcnt(0)")
    a("""
    s_cmp_eq_u32 s5, 0
    s_cselect_b32 s56, s20, s28
    s_cselect_b32 s57, s21, s29
    s_mov_b32 s58, 819200
    s_mov_b32 s59, 0x20000
    """)
    srd(44, 34, WS_BYTES); srd(48, 32, 256); srd(52, 26, 25600); srd(60, 30, 2048 * 2560)
def lane_parts():
    a("""
    v_bfe_u32 v8, v1, 2, 2
    v_and_b32 v9, 3, v1
    v_lshrrev_b32 v10, 1, v2
    v_lshlrev_b32 v10, 4, v10
    v_and_b32 v11, 1, v2
    v_lshl_add_u32 v10, v11, 2, v10
    v_add_u32 v10, v10, v8
    """)
AD = (A_SLOT, A_SLOT, -2 * A_SLOT); BD = (B_S1, B_S1, -2 * B_S1)

section("entry")
a.raw(".globl %s\n.p2align 8\n.type %s,@function" % (KN, KN))
a.label(KN)
a("s_cmp_ge_u32 s2, 256\ns_cbranch_scc1 k_end")
a("s_load_dwordx16 s[16:31], s[0:1], 0\ns_load_dwordx4 s[32:35], s[0:1], 64")
if STAMP:
    for i in range(10): a("s_mov_b64 s[%d:%d], 0" % (80 + 2 * i, 81 + 2 * i))
if OPT("diag"): a("s_memtime s[80:81]\ns_memrealtime s[82:83]")
stamp(0)
a("""
v_lshrrev_b32 v4, 6, v0
v_and_b32 v1, 63, v0
v_readfirstlane_b32 s8, v4
s_and_b32 s3, s2, 7
s_lshr_b32 s5, s3, 2
s_lshr_b32 s4, s2, 3
s_and_b32 s6, s3, 1
s_lshl_b32 s6, s6, 3
s_and_b32 s9, s4, 7
s_add_u32 s6, s6, s9
s_bfe_u32 s7, s3, 0x10001
s_lshl_b32 s7, s7, 2
s_lshr_b32 s10, s4, 3
s_add_u32 s7, s7, s10
v_lshrrev_b32 v2, 4, v1
v_and_b32 v3, 15, v1
v_mov_b32 v15, 0
v_mov_b32 v0, %d
s_and_b32 s11, s8, 6
s_cmp_eq_u32 s11, 4
s_cbranch_scc1 k_ld
s_cmp_eq_u32 s8, 6
s_cselect_b32 s11, s5, 0
s_cmp_eq_u32 s11, 1
s_cbranch_scc0 k_nost
v_lshlrev_b32 v8, 4, v1
s_mul_i32 s9, s7, 3200
s_mov_b32 s54, 25600
s_mov_b32 s55, 0x20000
s_mov_b32 m0, WPHI_ADDR
s_waitcnt lgkmcnt(0)
s_mov_b32 s52, s26
s_mov_b32 s53, s27
buffer_load_dwordx4 v8, s[52:55], s9 offen lds
buffer_load_dwordx4 v8, s[52:55], s9 offen offset:1024 lds
buffer_load_dwordx4 v8, s[52:55], s9 offen offset:2048 lds
s_mov_b64 exec, 0xff
buffer_load_dwordx4 v8, s[52:55], s9 offen offset:3072 lds
s_mov_b64 exec, -1
k_nost:
s_barrier
s_branch k_notld
k_ld:
s_lshl_b32 s10, s10, 1
s_add_u32 s12, s9, s10
s_cmp_ge_u32 s12, 10
s_cselect_b32 s9, 10, 0
s_sub_u32 s12, s12, s9
v_lshrrev_b32 v8, 3, v1
v_mul_u32_u24 v8, 1280, v8
v_and_b32 v9, 7, v1
v_xor_b32 v9, v9, v2
v_lshl_add_u32 v24, v9, 4, v8
v_xor_b32 v25, 64, v24
v_add_u32 v25, 9216, v25
v_add_u32 v26, 18432, v24
v_add_u32 v27, 18432, v25
v_mul_u32_u24 v8, 26, v1
v_lshrrev_b32 v8, 8, v8
v_mul_u32_u24 v9, 10, v8
v_sub_u32 v9, v1, v9
v_lshlrev_b32 v9, 4, v9
v_mul_u32_u24 v32, 3840, v8
v_add_u32 v32, v32, v9
v_add_u32 v33, %d, v32
v_add_u32 v34, %d, v32
v_add_u32 v35, %d, v32
s_cmp_eq_u32 s5, 0
s_cselect_b32 s9, 0x7ffffff0, 0
v_mov_b32 v4, s9
v_lshrrev_b32 v5, 1, v1
v_cmp_eq_u32 vcc, 4, v5
v_cndmask_b32 v6, v15, v4, vcc
s_mov_b32 s10, 0
s_mov_b32 s11, 0x4fffff
v_cndmask_b32 v6, v6, 1, s[10:11]
v_lshl_add_u32 v4, v1, 2, v0
s_and_b32 s10, s8, 1
s_cbranch_scc1 k_noinit
ds_write_b32 v4, v6
k_noinit:
s_mul_i32 s73, s10, 5120
s_mul_i32 s75, s10, 122880
s_mul_i32 s64, s6, 163840
s_sub_u32 s65, s64, 20480
s_cmp_eq_u32 s6, 0
s_cselect_b32 s65, 0, s65
s_mov_b32 s66, -1
s_mov_b32 s67, 0x0fffffff
s_mov_b32 s68, -1
s_mov_b32 s69, 0xff
s_mul_i32 s70, s7, 160
s_add_u32 s75, s75, s70
s_lshl_b32 s77, s10, 2
s_add_u32 s77, s77, %d
v_mov_b32 v7, 0x7fffff00
""" % (FLG, 2 * 15360 - 640, 15360 - 1280, 3 * 15360 - 1920, FLG + F_FULL))
srd_xw()
a("s_barrier")
srd(48, 32, 256)
stamp(8)
def issue_x(xs, halo):
    so = None; m0 = None
    for i in xs:
        if halo: base, k, j = ("s65", 0, i) if i < 2 else ("s64", (i - 2) // 4 * 4, (i - 2) % 4)
        else: base, k, j = "s64", i // 4 * 4, i % 4
        if m0 != i - j: a("s_add_u32 m0, s11, %d" % ((i - j) * 1024)); m0 = i - j
        if so != (base, k):
            if k: a("s_add_u32 s15, s74, %d" % (k * 10240))
            else: a("s_add_u32 s15, %s, s13" % base)
            so = (base, k)
        if not OPT("nodma"): a("buffer_load_dwordx4 v%d, s[36:39], s15 offen offset:%d%s lds" % (24 + j, j * 1024, NT))
def issue_w(xb):
    a("s_mov_b64 exec, s[68:69]\ns_add_u32 s76, s11, s73")
    for sec in range(3):
        for m in range(2):
            a("s_add_u32 m0, s76, %d\ns_add_u32 s15, s71, %d" % (xb + sec * SEC + m * 2560, sec * 1280 + m * 61440))
            for i in range(4):
                if not OPT("nodma"): a("buffer_load_dwordx4 v%d, s[40:43], s15 offen offset:%d%s lds" % (32 + i, i * 640, NT))
    a("""
    s_mov_b32 m0, s77
    s_mov_b64 exec, 1
    buffer_load_dword v7, s[48:51], 0 offen lds
    s_mov_b64 exec, -1
    s_add_u32 s77, s77, 8
    s_add_u32 s10, s10, 2
    """)
def free_wait():
    top = L("lp"); ok = L("lpok")
    early = L("le")
    a("s_mov_b32 s14, 0\ns_cmp_lt_u32 s10, 6\ns_cbranch_scc0 %s" % top)
    if OPT("nogate"): a("s_branch %s" % ok)
    else:
        a("s_cmp_lt_u32 s10, 3\ns_cbranch_scc1 %s\ns_bitcmp0_b32 s10, 0\ns_cbranch_scc1 %s\ns_sub_u32 s9, s77, 12\nv_mov_b32 v22, s9" % (ok, ok))
        lds_wait0(0, 16, vz="v22")
        a("s_branch %s" % ok)
    a.label(top)
    a("""
    ds_read_b128 v[16:19], v0 offset:%d
    ds_read_b64 v[20:21], v0 offset:%d
    s_waitcnt lgkmcnt(0)
    v_min3_u32 v16, v16, v17, v18
    v_min3_u32 v16, v16, v19, v20
    v_min_u32 v16, v16, v21
    v_readfirstlane_b32 s9, v16
    s_add_u32 s9, s9, 5
    s_cmp_ge_u32 s9, s10
    s_cbranch_scc1 %s
    """ % (F_FREE, F_AUX, ok))
    spin_tail(top, ok, LSLP, SPIN)
    if OPT("cnt"): a("s_add_u32 s98, s98, s14\ns_cmp_gt_u32 s14, 0\ns_cselect_b32 s9, 0x10000, 0\ns_add_u32 s98, s98, s9")
def load_loop(xs, xb, halo, deltas, nsh, first=True, end=20):
    lbl = L("ld"); nx = L("nx")
    if nsh and first: a("s_cmp_ge_u32 s12, %d\ns_cselect_b32 s9, %d, 0\ns_sub_u32 s79, s12, s9\ns_add_u32 s79, s79, %d\ns_mov_b32 s12, 0" % (10 - nsh, 10 - nsh, nsh))
    if first: a("s_mov_b32 s11, 0\ns_mov_b32 s100, %d\ns_mov_b32 s101, %d\ns_mov_b32 s72, %d" % deltas)
    a.label(lbl)
    a("""
    s_lshl_b32 s13, s12, 7
    s_mul_i32 s71, s12, %d
    s_add_u32 s71, s71, s75
    s_add_u32 s74, s64, s13
    """ % (64 * 3840))
    if end > 2: free_wait()
    a("s_cmp_eq_u32 s8, 4\ns_cbranch_scc0 %s" % nx)
    issue_x(xs, halo)
    a.label(nx)
    issue_w(xb)
    a("s_add_u32 s12, s12, 1\ns_cmp_eq_u32 s12, 10\ns_cselect_b32 s12, %d, s12" % nsh)
    if nsh: a("s_lshr_b32 s9, s10, 1\ns_cmp_eq_u32 s9, %d\ns_cselect_b32 s12, s79, s12" % nsh)
    a("""
    s_add_u32 s11, s11, s100
    s_mov_b32 s9, s100
    s_mov_b32 s100, s101
    s_mov_b32 s101, s72
    s_mov_b32 s72, s9
    s_cmp_lt_u32 s10, %d
    s_cbranch_scc1 %s
    """ % (end, lbl))
def wo_setup():
    a("v_mul_u32_u24 v28, 1280, v8\nv_add_u32 v28, v28, v9")
    for e in range(1, 4): a("v_add_u32 v%d, %d, v28" % (28 + e, e * (6 * 1280 - 960)))
def wo_phase(P, base):
    a("s_mov_b64 exec, s[66:67]")
    for q in range(27):
        if q % 4 == 0: a("s_mov_b32 m0, %d\ns_add_u32 s15, s70, %d" % (base + q * 960, (160 * P + 6 * q) * 1280))
        if q == 26: a("s_mov_b64 exec, s[68:69]")
        a("buffer_load_dwordx4 v%d, s[56:59], s15 offen offset:%d lds" % (28 + q % 4, (q % 4) * 960))
    a("s_mov_b64 exec, -1")
def wo_done():
    a("s_mov_b32 m0, %d\ns_mov_b64 exec, 1\nbuffer_load_dword v7, s[48:51], 0 offen lds\ns_mov_b64 exec, -1" % (FLG + F_WO))
a("s_cmp_eq_u32 s5, 0\ns_cbranch_scc1 k_lA")
load_loop(range(16), B_XB, False, BD, NSHB, end=2)
a.raw("@@HSETUP@@")
load_loop(range(16), B_XB, False, BD, NSHB, first=False)
stamp(2)
a.raw("@@WPHI@@")
a("s_cmp_eq_u32 s8, 4\ns_cbranch_scc0 k_hB2")
lds_wait(F_FREE, 4, "16", 16)
wo_phase(0, B_WO[0])
a("s_branch k_hB2")
a.label("k_lA")
load_loop(range(18), A_XB, True, AD, NSHA)
stamp(2)
a("s_cmp_eq_u32 s8, 4\ns_cbranch_scc0 k_end")
srd_rest(False)
wo_setup()
lds_wait(F_FREE, 4, "18", 16)
for P in range(3): wo_phase(P, A_WO[P])
lds_wait(F_FREE, 4, "20", 16)
wo_phase(3, A_WO[3])
wo_done()
if STAMP: a("s_waitcnt vmcnt(0)")
stamp(3)
stamp_store()
a("s_endpgm")

ACC = 128
def acc(j, t): return ACC + j * 8 + t * 4
RING = 16; XF = 56; XH = 76; HACC = 84
def gemm_loop(br, secbase, flip, deltas, xoff=0, halo=None, D=5, areg=(4, 5, 6, 7), pre=None):
    halo = halo or {}
    tiles = [(j // 5, j % 5, j) for j in range(15)]
    items = [(kap, tl) for kap in range(2) for tl in tiles]; N = len(items)
    RN = 10
    Q = LgkmQ(15)
    nx = 3 if halo else 2
    def xr(kap, t):
        if t < 2: return (Ins("ds_read_b128 %s, v%d offset:%d" % (q4(XF + kap * 8 + t * 4), 6 + kap, xoff + t * 2048)), ("x", kap, t))
        return (Ins("ds_read_b128 %s, v%d" % (q4(XH + kap * 4), 6 + kap)), ("x", kap, t))
    def wreg(m):
        kap, (sec, t, j) = items[m]
        if br == 'B': return 4, 8 * t
        return (5, 40 * t) if t < 4 else (4, 32)
    def ir(m, hf):
        kap, (sec, t, j) = items[m]
        reg, toff = wreg(m)
        off = secbase + sec * SEC + (32 * kap + 8 * hf) * 160 + toff
        if OPT("noread"): return (Ins("s_nop 0"), None)
        return (Ins("ds_read_b64_tr_b16 %s, v%d offset:%d" % (q2(RING + (m % RN) * 4 + 2 * hf), reg, off)), ("w", m, hf))
    def emit(lst):
        for ins, tag in lst:
            a.items.append(ins)
            if tag is not None: Q.push(tag)
    lbl = L("gl")
    a("s_mov_b32 s10, 0\nv_mov_b32 v74, 0\nv_add_u32 v73, %d, v0" % (F_FULL + 4))
    a("s_mov_b32 s100, %d\ns_mov_b32 s101, %d\ns_mov_b32 s11, %d" % deltas)
    if pre: pre()
    lds_wait0(F_FULL, 72)
    stamp(1)
    emit([xr(0, t) for t in range(nx)] + [ir(m, hf) for m in range(D) for hf in range(2)])
    a.raw(".p2align 3")
    a.label(lbl)
    slow = L("slow"); back = L("back")
    mf = []; g0 = []
    for m in range(N):
        kap, (sec, t, j) = items[m]
        g0.append(len(mf))
        for t2 in range(2): mf.append((m, XF + kap * 8 + t2 * 4, acc(j, t2)))
        if j in halo: mf.append((m, XH + kap * 4, halo[j]))
    G = len(mf); g0.append(G)
    gaps = [[] for _ in range(G)]; load = [0] * G
    for m in range(2, N + 1, 2): load[g0[m] - 1] += 1
    sw = N - D
    for m in range(N):
        for hf in range(2):
            g = g0[m] + hf
            gaps[g].append(ir((m + D) % N, hf)); load[g] += 1
    def place(ins, lo, hi, tag=None):
        hi = max(lo, hi)
        g = min(range(lo, hi + 1), key=lambda x: (load[x], x))
        if isinstance(ins, str): ins = Ins(ins)
        gaps[g].append((ins, tag)); load[g] += 1
        return g
    gsw = g0[sw]; half = g0[N // 2]
    g = 0
    for t in range(nx):
        i, tg = xr(1, t); g = place(i, g, min(g0[N // 2 - D], g + 2), tg)
    g7 = g
    H = N // 2
    g = place("v_add_u32 v74, 1, v74", 4, g0[H - 1] - 1)
    gaps[g0[H - 1]].append((Ins("ds_write_b32 v14, v74"), ("fw", 0))); load[g0[H - 1]] += 1
    g = place("v_add_u32 v74, 1, v74", g0[H], g0[N - 2] - 1)
    gaps[g0[N - 2]].append((Ins("ds_write_b32 v14, v74"), ("fw", 1))); load[g0[N - 2]] += 1
    slow2 = L("slowb"); back2 = L("backb")
    gm = g0[H - D]; chk2 = H - D - 1 if (H - D - 1) % 2 == 0 else H - D - 2
    place("ds_read_b32 v75, v73", g0[chk2 - D + 1], g0[chk2 - D + 1] + 1, ("f2",))
    place("v_readfirstlane_b32 s12, v75", g0[chk2], min(g0[chk2] + 1, gm - 2))
    gaps[gm - 1] += [(Ins("s_cmp_eq_u32 s12, 0"), None), (Ins("s_cbranch_scc0 %s" % slow2), None), (back2 + ":", None)]
    load[gm - 1] += 2
    g = 0
    for t_ in ("s_mov_b32 s13, s100", "s_mov_b32 s100, s101", "s_mov_b32 s101, s11", "s_mov_b32 s11, s13"):
        g = place(t_, g, g + 3)
    grot = g
    chkm = sw - 1 if (sw - 1) % 2 == 0 else sw - 2
    gf = g0[chkm - D + 1]
    place("ds_read_b32 v72, v73 offset:4", gf, gf + 1, ("f",))
    place("v_readfirstlane_b32 s9, v72", g0[chkm], min(g0[chkm] + 1, gsw - 2))
    lastuse = {}
    for m in range(N - D): lastuse[wreg(m + D)[0]] = g0[m] + 1
    firstnext = {}
    for m in range(sw, N): firstnext.setdefault(wreg((m + D) % N)[0], g0[m])
    for r in areg:
        if r == 6: place("v_add_u32 v6, s13, v6", grot + 1, gsw - 1)
        elif r == 7: place("v_add_u32 v7, s13, v7", max(grot, g7) + 1, G - 1)
        else: place("v_add_u32 v%d, s13, v%d" % (r, r), max(lastuse.get(r, 0), grot), firstnext.get(r, G) - 1)
    gaps[gsw - 1] += [(Ins("s_cmp_eq_u32 s9, 0"), None), (Ins("s_cbranch_scc0 %s" % slow), None), (back + ":", None)]
    load[gsw - 1] += 2
    g = max(gsw, half)
    for t in range(nx):
        i, tg = xr(0, t); g = place(i, g, min(g + 1, G - 1), tg)
    place("v_add_u32 v73, 8, v73", gsw, G - 1)
    place("s_add_u32 s10, s10, 1", gsw, G - 2)
    if OPT("prof"):
        gaps[gsw].append((Ins("s_memtime s[96:97]"), None))
        gaps[7].append((Ins("s_mov_b32 m0, s10"), None)); gaps[8].append((Ins("v_writelane_b32 v255, s96, m0"), None))
    gaps[G - 1].append((Ins("s_cmp_lt_u32 s10, 10"), None))
    def body(dry):
        ws = []
        for gi, (m, xf, d) in enumerate(mf):
            kap, (sec, t, j) = items[m]
            if gi == g0[m] and m % 2 == 0:
                needs = [("w", m + 1, 1), ("w", m + 1, 0)] + [("x", items[m + 1][0], t2) for t2 in range(nx)]
                if m == chkm: needs.append(("f",))
                if m == chk2: needs.append(("f2",))
                cs = [(Q.count_after(tg), tg) for tg in needs if Q.count_after(tg) is not None]
                if cs:
                    c, tg = min(cs)
                    w = Q.wait(tg); ws.append(w)
                    if not dry: a("s_waitcnt lgkmcnt(%d)" % w)
                else: ws.append(99)
            wf = RING + (m % RN) * 4
            if dry:
                for ins, tag in gaps[gi]:
                    if tag is not None: Q.push(tag)
                continue
            if OPT("nomfma"): pass
            elif flip(j): smf(d, xf, wf, q4(d))
            else: smf(d, wf, xf, q4(d))
            emit(gaps[gi])
        return ws
    w1 = body(False); w2 = body(True)
    assert all(x <= y for x, y in zip(w1, w2)), (w1, w2)
    a("s_cbranch_scc1 %s" % lbl)
    a("s_waitcnt lgkmcnt(0)")
    if OPT("prof"):
        a("v_writelane_b32 v255, s96, 10\nv_subrev_u32 v255, s80, v255\ns_lshl_b32 s9, s2, 3\ns_add_u32 s9, s9, s8\ns_lshl_b32 s9, s9, 8\ns_add_u32 s9, s9, %d\nv_lshlrev_b32 v72, 2, v1\nbuffer_store_dword v255, v72, s[44:47], s9 offen" % (20 << 20))
    done = L("gd")
    a("s_branch %s" % done)
    a.label(slow)
    lds_wait0(4, 72, vz="v73", sleep=CSLP)
    if OPT("cnt"): a("s_add_u32 s88, s88, 0x10000\ns_add_u32 s88, s88, s14")
    a("s_branch %s" % back)
    a.label(slow2)
    lds_wait0(0, 72, vz="v73", sleep=CSLP)
    if OPT("cnt"): a("s_add_u32 s88, s88, 0x1000000\ns_add_u32 s88, s88, s14")
    a("s_branch %s" % back2)
    a.label(done)

section("setup")
a.label("k_notld")
a("s_cmp_ge_u32 s8, 6\ns_cbranch_scc1 k_h567")
lane_parts()
a("""
v_mul_u32_u24 v11, 160, v10
v_mad_u32_u24 v4, v9, 40, v11
v_lshl_add_u32 v5, v9, 3, v11
s_lshl_b32 s9, s8, 5
s_cmp_eq_u32 s5, 0
s_cselect_b32 s9, 0, s9
v_lshrrev_b32 v11, 1, v3
v_xor_b32 v11, v11, v2
v_lshlrev_b32 v11, 4, v11
v_add_u32 v12, s9, v3
v_lshl_add_u32 v6, v12, 7, v11
v_xor_b32 v7, 64, v6
s_lshl_b32 s9, s8, 2
s_add_u32 s9, s9, %d
v_add_u32 v14, s9, v0
""" % F_FREE)
for r in range(ACC, ACC + 120): a("v_mov_b32 v%d, 0" % r)
for r in range(HACC, HACC + 12): a("v_mov_b32 v%d, 0" % r)
srd_rest()
def ocnt_addr(wreg):
    a("""
    s_lshl_b32 s77, s5, 4
    s_add_u32 s77, s77, s6
    s_lshl_b32 s76, s77, 2
    s_add_u32 s76, s76, %s
    s_lshl_b32 s76, s76, 8
    s_add_u32 s76, s76, %d
    s_lshl_b32 s77, s77, 2
    s_add_u32 s77, s77, %d
    """ % (wreg, CNT, DG_O))
def o_addr(wreg):
    a("""
    v_lshlrev_b32 v8, 4, v1
    v_lshlrev_b32 v9, 3, v1
    s_lshl_b32 s9, s6, 2
    s_add_u32 s9, s9, %s
    s_mul_i32 s9, s9, 40960
    s_mul_i32 s10, s5, %d
    s_add_u32 s15, s9, s10
    s_mul_i32 s10, s7, 5120
    s_add_u32 s12, s15, s10
    s_add_u32 s13, s12, 2560
    """ % (wreg, O_BR))
ocnt_addr("s8")
a("s_cmp_eq_u32 s5, 0\ns_cbranch_scc1 k_A")

WP = 76
def wphi_load():
    lds_wait(F_AUX, 2, "1", 248)
    a("""
    v_bfe_u32 v8, v1, 2, 2
    v_and_b32 v9, 3, v1
    v_mul_u32_u24 v10, 800, v2
    v_mad_u32_u24 v10, v8, 40, v10
    v_add_u32 v10, %d, v10
    v_mov_b32 v11, %d
    v_cmp_eq_u32 vcc, v9, v2
    v_add_u32 v12, 640, v10
    v_cndmask_b32 v10, v11, v10, vcc
    v_cndmask_b32 v11, v11, v12, vcc
    """ % (WPHI, ZERO))
    for t in range(5): a("ds_read_b64_tr_b16 %s, v11 offset:%d" % (q2(WP + 10 * t + 8), t * 8))
    for t in range(5):
        for c in range(2):
            for hf in range(2): a("ds_read_b64_tr_b16 %s, v10 offset:%d" % (q2(WP + 10 * t + 4 * c + 2 * hf), c * 320 + hf * 160 + t * 8))
def set_l2e(): a("s_mov_b32 s64, 0x%08x\ns_mov_b32 s65, 0x%08x" % (f2u(1.4426950408889634), f2u(1.4426950408889634)))
def img_addr(wreg, tau):
    a("""
    s_lshl_b32 s9, %s, 5
    s_add_u32 s9, s9, %d
    v_add_u32 v12, s9, v3
    v_mul_u32_u24 v12, %d, v12
    v_add_u32 v12, %d, v12
    v_mul_u32_u24 v13, 80, v2
    v_add_u32 v126, v13, v12
    v_mad_u32_u24 v127, v2, 48, v12
    s_mul_i32 s9, %s, 3072
    s_add_u32 s9, s9, %d
    v_lshlrev_b32 v13, 4, v1
    v_add_u32 v13, s9, v13
    """ % (wreg, 16 * tau, IMG_RS, IMG, wreg, B_HX))
def preB():
    wphi_load(); img_addr("s8", 0); set_l2e()
gemm_loop('B', B_XB, lambda j: False, BD, areg=(4, 6, 7), pre=preB)
stamp(2)
def pack20(sec, tau, dst, o=None):
    for t in range(5):
        cvt(dst + 2 * t, acc(5 * sec + t, tau), o); cvt(dst + 2 * t + 1, acc(5 * sec + t, tau) + 2, o)
def pmf(P, src, o=None):
    o = o or a
    for t in range(5): o("v_mfma_f32_16x16x16_bf16 %s, %s, %s, 0" % (q4(P + 4 * t), q2(WP + 10 * t + 8), q2(src + 8)))
    for c in range(2):
        for t in range(5): smf(P + 4 * t, WP + 10 * t + 4 * c, src + 4 * c, q4(P + 4 * t), o)
def softmax2(P, dst, tmp, tv, wr=None):
    p = [P + i for i in range(20)]
    A0, B0 = tv, tv + 2
    a("v_max3_f32 v%d, v%d, v%d, v%d" % (A0, p[0], p[1], p[2])); a("v_min3_f32 v%d, v%d, v%d, v%d" % (B0, p[0], p[1], p[2]))
    a("v_max3_f32 v%d, v%d, v%d, v%d" % (A0 + 1, p[3], p[4], p[5])); a("v_min3_f32 v%d, v%d, v%d, v%d" % (B0 + 1, p[3], p[4], p[5]))
    for i in range(6, 20, 4):
        a("v_max3_f32 v%d, v%d, v%d, v%d" % (A0, A0, p[i], p[i + 1])); a("v_min3_f32 v%d, v%d, v%d, v%d" % (B0, B0, p[i], p[i + 1]))
        if i + 2 < 20:
            a("v_max3_f32 v%d, v%d, v%d, v%d" % (A0 + 1, A0 + 1, p[i + 2], p[i + 3])); a("v_min3_f32 v%d, v%d, v%d, v%d" % (B0 + 1, B0 + 1, p[i + 2], p[i + 3]))
    a("v_max_f32 v%d, v%d, v%d\nv_min_f32 v%d, v%d, v%d" % (A0, A0, A0 + 1, B0, B0, B0 + 1))
    a("v_mul_f32 v%d, s64, v%d\nv_mul_f32 v%d, s64, v%d" % (A0, A0, B0, B0))
    for i in range(0, 20, 2):
        a("v_pk_fma_f32 %s, %s, s[64:65], %s op_sel_hi:[1,1,0] neg_lo:[1,0,0] neg_hi:[1,0,0]" % (q2(tmp + i), q2(p[i]), q2(B0)))
        a("v_pk_fma_f32 %s, %s, s[64:65], %s op_sel_hi:[1,1,0] neg_lo:[0,0,1] neg_hi:[0,0,1]" % (q2(p[i]), q2(p[i]), q2(A0)))
    for i in range(20): a("v_exp_f32 v%d, v%d" % (p[i], p[i]))
    for i in range(20):
        a("v_exp_f32 v%d, v%d" % (tmp + i, tmp + i))
        if i == 0: a("v_pk_add_f32 %s, %s, %s" % (q2(A0), q2(p[0]), q2(p[2])))
        elif i <= 8: a("v_pk_add_f32 %s, %s, %s" % (q2(A0), q2(A0), q2(p[2 + 2 * i])))
        elif i == 9: a("v_add_f32 v%d, v%d, v%d" % (A0, A0, A0 + 1))
        elif i == 10: a("v_rcp_f32 v%d, v%d" % (A0, A0))
    a("v_pk_add_f32 %s, %s, %s" % (q2(B0), q2(tmp), q2(tmp + 2)))
    for i in range(10):
        a("v_pk_mul_f32 %s, %s, %s op_sel_hi:[1,0]" % (q2(p[2 * i]), q2(p[2 * i]), q2(A0)))
        if i < 8: a("v_pk_add_f32 %s, %s, %s" % (q2(B0), q2(B0), q2(tmp + 4 + 2 * i)))
        elif i == 8: a("v_add_f32 v%d, v%d, v%d" % (B0, B0, B0 + 1))
        else: a("v_rcp_f32 v%d, v%d" % (B0, B0))
    for i in range(10):
        cvt(dst + i, p[2 * i])
        if wr and i in (3, 7): wr(i // 4, dst + i - 3)
    for i in range(10):
        a("v_pk_mul_f32 %s, %s, %s op_sel_hi:[1,0]" % (q2(tmp + 2 * i), q2(tmp + 2 * i), q2(B0)))
    for i in range(10):
        cvt(dst + 10 + i, tmp + 2 * i)
        if wr and (10 + i) % 4 == 3: wr((10 + i) // 4, dst + 10 + i - 3)
def phi_wr(m, r): a("ds_write_b128 v126, %s offset:%d" % (q4(r), 16 * m))
HK = 16
pack20(1, 1, HK)
lds_wait(F_FREE, 4, "18", 248)
for m in range(2): a("ds_write_b128 v13, %s offset:%d" % (q4(HK + 4 * m), 1024 * m))
a("ds_write_b128 v13, %s offset:2048" % q4(HK + 8))
a("v_mov_b32 v12, 1\nds_write_b32 v14, v12 offset:%d" % (F_HX - F_FREE))
PK = 28; VT = 40
pack20(1, 0, PK)
PP = acc(5, 0)
pmf(PP, PK)
a("v_mov_b32 v%d, 0x3f803f80\nv_mov_b32 v%d, 0x3f803f80\nv_mov_b32 v%d, 0x3f803f80\nv_mov_b32 v%d, 0x3f803f80" % (VT + 10, VT + 11, VT + 22, VT + 23))
for tau in range(2):
    pack20(2, tau, VT + 12 * tau)
    for m in range(3): a("ds_write_b128 v127, %s offset:%d" % (q4(VT + 12 * tau + 4 * m), IMG_V + tau * 16 * IMG_RS + 16 * m))
TM = acc(10, 0)
softmax2(PP, 16, TM, 248, phi_wr)
a("v_mov_b32 v12, 1\nds_write_b32 v14, v12 offset:%d" % (F_XR - F_FREE))
stamp(3)
pack20(0, 1, 40)
pack20(0, 0, 52)
PQ = acc(8, 0)
pmf(PQ, 52)
lds_wait(F_XR + 16 - F_FREE, 1, "1", 248, vz="v14")
for m in range(3): a("ds_write_b128 v13, %s offset:%d" % (q4(40 + 4 * m), 1024 * m))
a("v_mov_b32 v12, 2\nds_write_b32 v14, v12 offset:%d\ns_mov_b32 s78, 1" % (F_HX - F_FREE))
PHQ = 76
def kv_addr(KB):
    a("""
    v_lshrrev_b32 v8, 2, v3
    v_and_b32 v9, 3, v3
    v_mul_u32_u24 v10, 80, v2
    v_add_u32 v10, %d, v10
    v_mul_u32_u24 v11, %d, v9
    v_add_u32 v11, v11, v10
    v_add_u32 v10, %d, v10
    v_mov_b32 v12, %d
    v_cmp_eq_u32 vcc, v8, v2
    v_cndmask_b32 v%d, v12, v10, vcc
    v_cndmask_b32 v%d, v12, v11, vcc
    """ % (IMG, IMG_RS, 20 * IMG_RS, ZERO, KB + 5, KB))
    for t in range(1, 5): a("v_add_u32 v11, %d, v11\nv_cndmask_b32 v%d, v12, v11, vcc" % (4 * IMG_RS, KB + t))
OPK = 232
def o_compute(FR, OA):
    Q = LgkmQ(15)
    its = [(t, c) for c in range(5) for t in (5, 0, 1, 2, 3, 4)]
    def kread(m):
        t, c = its[m]
        a("ds_read_b128 %s, v%d offset:%d" % (q4(FR + (m % 12) * 4), 64 + t, c * 16)); Q.push(m)
    for m in range(11): kread(m)
    for m in range(30):
        t, c = its[m]
        if m % 2 == 0: a("s_waitcnt lgkmcnt(%d)" % Q.wait(m + 1))
        d = OA + 4 * t
        smf(d, FR + (m % 12) * 4, PHQ + 4 * c, "0" if c == 0 else q4(d))
        if m + 11 < 30: kread(m + 11)
    a("v_add_f32 v10, 0x%08x, v%d\nv_rcp_f32 v10, v10" % (f2u(1e-6), OA + 20))
    for i in range(10): a("v_pk_mul_f32 %s, %s, v[10:11] op_sel_hi:[1,0]" % (q2(OA + 2 * i), q2(OA + 2 * i)))
    for i in range(10): cvt(OPK + i, OA + 2 * i)
def o_store(base, regs):
    a("buffer_store_dwordx4 %s, v8, s[44:47], %s offen sc1" % (q4(regs), base))
    a("buffer_store_dwordx4 %s, v8, s[44:47], %s offen offset:1024 sc1" % (q4(regs + 4), base))
    a("buffer_store_dwordx2 %s, v9, s[44:47], %s offen offset:2048 sc1" % (q2(regs + 8), base))
kv_addr(64)
softmax2(PQ, PHQ, 212, 248)
o_addr("s8")
stamp(5)
lds_wait(F_KVR, 4, "1", 248)
stamp(6)
o_compute(16, 128)
o_store("s12", OPK)
a("s_mov_b32 s66, %d\ns_mov_b32 s67, %d\ns_mov_b32 s68, %d\ns_mov_b32 s69, %d\ns_mov_b32 s70, %d\ns_mov_b32 s71, %d\ns_mov_b32 s79, 16" %
  (B_WO[0], B_WO[1], B_WO[2], B_WO[3], 8 * 160, 4 * 160))

a.label("k_P2")
stamp(7)
OF = 88; A2 = 48
a("""
v_bfe_u32 v5, v1, 2, 2
v_and_b32 v6, 3, v1
v_mad_u32_u24 v7, v2, 20, v5
v_mul_u32_u24 v7, 160, v7
v_lshl_add_u32 v252, v6, 3, v7
v_lshl_add_u32 v7, v2, 2, v5
v_mul_u32_u24 v7, 160, v7
v_lshl_add_u32 v253, v6, 3, v7
s_cmp_eq_u32 s5, 0
s_cselect_b64 vcc, -1, 0
v_cndmask_b32 v248, v252, v253, vcc
s_and_b32 s74, s7, 3
s_cmp_eq_u32 s74, 0
s_cbranch_scc1 k_rot_done
k_rot:
s_mov_b32 s9, s66
s_mov_b32 s66, s67
s_mov_b32 s67, s68
s_mov_b32 s68, s69
s_mov_b32 s69, s9
s_sub_u32 s74, s74, 1
s_cmp_lg_u32 s74, 0
s_cbranch_scc1 k_rot
k_rot_done:
s_sub_u32 s69, s69, s68
s_sub_u32 s68, s68, s67
s_sub_u32 s67, s67, s66
s_and_b32 s74, s7, 3
v_add_u32 v248, s66, v248
v_add_u32 v252, s66, v252
v_add_u32 v249, s71, v248
v_add_u32 v250, s70, v248
v_add_u32 v251, s70, v249
""")
for r in range(A2, A2 + 40): a("v_mov_b32 v%d, 0" % r)
a("""
s_lshl_b32 s9, s6, 7
s_lshl_b32 s10, s8, 5
s_add_u32 s9, s9, s10
v_add_u32 v4, s9, v3
v_mul_u32_u24 v4, 2560, v4
s_mul_i32 s9, s5, 1280
s_mul_i32 s10, s7, 160
s_add_u32 s72, s9, s10
s_add_u32 s73, s72, 40960
v_and_b32 v5, 1, v2
v_lshlrev_b32 v5, 5, v5
v_lshrrev_b32 v6, 1, v2
v_lshl_add_u32 v5, v6, 4, v5
v_add_u32 v5, v5, v4
v_lshl_add_u32 v6, v2, 3, v4
v_mov_b32 v12, 1
""")
for P in range(4):
    a("s_add_u32 s9, s74, %d\ns_and_b32 s9, s9, 3\ns_mul_i32 s9, s9, 10240\ns_add_u32 s%d, s9, s15" % (P, 16 + 4 * P))
    for k in range(1, 4): a("s_add_u32 s%d, s%d, %d" % (16 + 4 * P + k, 16 + 4 * P, 2560 * k))
a("s_waitcnt lgkmcnt(0)\ns_cmp_ge_u32 s78, 1\ns_cbranch_scc1 k_zok")
glb_wait('dbg', "s77", "1", 254, vec=True)
a.label("k_zok")
a("s_waitcnt vmcnt(0)\ns_mov_b64 exec, 1\nbuffer_atomic_add v12, v15, s[44:47], s76 offen sc1\ns_mov_b64 exec, -1")
lds_wait0(F_WO, 254)
R2 = 16; RN2 = 8; D2 = 5
Q = LgkmQ(15)
its = [(P, c, t) for P in range(4) for c in range(5) for t in range(5)]
def w2read(m, hf):
    P, c, t = its[m]
    if c < 4:
        G, p = divmod(c, 2)
        reg = 248 + p * 2 + hf; off = G * 80 * 160 + 32 * t
    else:
        reg = 252; off = (80 * hf + 16) * 160 + 32 * t
    a("ds_read_b64_tr_b16 %s, v%d offset:%d" % (q2(R2 + (m % RN2) * 4 + 2 * hf), reg, off)); Q.push((m, hf))
for m in range(D2): w2read(m, 0); w2read(m, 1)
glb_wait('ws', "s76", "s79", 254, sleep=1)
Q.clear()
stamp(8)
VQ = LgkmQ(63)
VQ.push("atom")
def of(P, c, tau): return OF + ((P * 5 + c) * 2 + tau) * 4
olist = []
for P in range(4):
    for c in range(4):
        gg, p = divmod(c, 2)
        for tau in range(2): olist.append(("x4", of(P, c, tau), 16 + 4 * P + 2 * gg + tau, p * 1024, (P, c, tau)))
    for tau in range(2):
        for gg in range(2): olist.append(("x2", of(P, 4, tau) + 2 * gg, 16 + 4 * P + 2 * gg + tau, 2048, (P, 4, tau, gg)))
oi = [0]
def oload():
    if oi[0] >= len(olist): return
    k, r, so, off, tag = olist[oi[0]]; oi[0] += 1
    if k == "x4": a("buffer_load_dwordx4 %s, v8, s[44:47], s%d offen offset:%d sc1" % (q4(r), so, off))
    else: a("buffer_load_dwordx2 %s, v9, s[44:47], s%d offen offset:%d sc1" % (q2(r), so, off))
    VQ.push(tag)
for _ in range(NPRE): oload()
def acc2(t, tau): return A2 + (t * 2 + tau) * 4
for m in range(100):
    P, c, t = its[m]
    if t == 0:
        tg = (P, c, 1) if c < 4 else (P, 4, 1, 1)
        w = VQ.wait(tg)
        assert w is not None or tg not in [x[4] for x in olist[oi[0]:]]
        if w is not None: a("s_waitcnt vmcnt(%d)" % w)
    if m % 2 == 0:
        w = Q.wait((min(m + 1, 99), 1))
        if w is not None: a("s_waitcnt lgkmcnt(%d)" % w)
    for tau in range(2):
        d = acc2(t, tau)
        smf(d, R2 + (m % RN2) * 4, of(P, c, tau), q4(d))
        if m + D2 < 100: w2read(m + D2, tau)
        if tau == 1 and m % 2 == 1: oload()
    mm = m + D2
    if mm < 100:
        Pm, cm, tm = its[mm]
        if Pm < 3 and tm == 4:
            if cm == 2: a("v_add_u32 v248, s%d, v248\nv_add_u32 v249, s%d, v249" % (67 + Pm, 67 + Pm))
            if cm == 3: a("v_add_u32 v250, s%d, v250\nv_add_u32 v251, s%d, v251" % (67 + Pm, 67 + Pm))
            if cm == 4: a("v_add_u32 v252, s%d, v252" % (67 + Pm))
assert oi[0] == len(olist)
OP = 88
for tau in range(2):
    for t in range(5):
        cvt(OP + 12 * tau + 2 * t, acc2(t, tau)); cvt(OP + 12 * tau + 2 * t + 1, acc2(t, tau) + 2)
for tau in range(2):
    for p in range(2):
        a("v_permlane16_swap_b32 v%d, v%d" % (OP + 12 * tau + 4 * p, OP + 12 * tau + 4 * p + 2))
        a("v_permlane16_swap_b32 v%d, v%d" % (OP + 12 * tau + 4 * p + 1, OP + 12 * tau + 4 * p + 3))
OUTFL = " nt" if OPT("outnt") else (" sc1" if OPT("outsc1") else "")
for tau in range(2):
    for p in range(2):
        a("buffer_store_dwordx4 %s, v5, s[60:63], s%d offen offset:%d%s" % (q4(OP + 12 * tau + 4 * p), 72 + tau, 64 * p, OUTFL))
    a("buffer_store_dwordx2 %s, v6, s[60:63], s%d offen offset:128%s" % (q2(OP + 12 * tau + 8), 72 + tau, OUTFL))
stamp(9)
if OPT("diag"):
    a("""
    s_memtime s[84:85]
    s_memrealtime s[86:87]
    s_waitcnt lgkmcnt(0)
    s_sub_u32 s84, s84, s80
    s_sub_u32 s86, s86, s82
    s_cmp_lt_u32 s2, 8
    s_cbranch_scc0 k_nodiag
    s_cmp_eq_u32 s8, 0
    s_cbranch_scc0 k_nodiag
    v_mov_b32 v16, s84
    v_mov_b32 v17, s86
    s_lshl_b32 s9, s2, 3
    s_mov_b64 exec, 1
    buffer_store_dwordx2 v[16:17], v15, s[48:51], s9 offen
    k_nodiag:
    """)
stamp_store()
a("s_endpgm")

section("A")
a.label("k_A")
HT = [(5, 6, 7), (8, 9, 10), (11, 12), (13, 14)]
QOP = 16; KOP = 48; VOP = 96; SS = 128; EE = 192; POP = 208
for w in range(4):
    if w < 3: a("s_cmp_eq_u32 s8, %d\ns_cbranch_scc0 k_A%d" % (w, w + 1))
    halo = {j: HACC + 4 * i for i, j in enumerate(HT[w])}
    gemm_loop('A', A_XB, lambda j: j >= 10, AD, xoff=(16 + 32 * w) * 128, halo=halo)
    stamp(2)
    a("v_lshlrev_b32 v8, 4, v1\nv_lshlrev_b32 v9, 3, v1")
    for i, j in enumerate(HT[w]):
        cvt(16 + 2 * i, halo[j]); cvt(17 + 2 * i, halo[j] + 2)
    lds_wait(F_FREE, 4, "16", 248)
    for i, j in enumerate(HT[w]):
        if j < 9: a("ds_write_b64 v8, %s offset:%d" % (q2(16 + 2 * i), A_EXCH + (j - 5) * 1024))
        elif j == 9:
            for h in range(4): a("ds_write_b64 v8, %s offset:%d" % (q2(16 + 2 * i), A_EXCH + h * 1024 + 8))
        else: a("ds_write_b64 v9, %s offset:%d" % (q2(16 + 2 * i), A_EXCH + 4096 + (j - 10) * 512))
    a("v_mov_b32 v12, 1\ns_mov_b64 exec, 1\nds_add_u32 v0, v12 offset:%d\ns_mov_b64 exec, -1" % F_XR)
    if w < 3:
        a("s_branch k_Aep")
        a.label("k_A%d" % (w + 1))
a.label("k_Aep")
def packK(src, dst):
    for h in range(4):
        cvt(dst + 4 * h, src(h)); cvt(dst + 4 * h + 1, src(h) + 2)
        cvt(dst + 4 * h + 2, src(4)); cvt(dst + 4 * h + 3, src(4) + 2)
a("""
s_load_dword s78, s[32:33], s77
s_mul_i32 s9, s8, 6656
s_add_u32 s9, s9, %d
v_add_u32 v10, s9, v8
v_add_u32 v11, s9, v9
""" % A_EXCH)
packK(lambda t: acc(5 + t, 1), KOP + 32)
for t in range(5):
    cvt(VOP + 6 * t + 4, acc(10 + t, 1)); cvt(VOP + 6 * t + 5, acc(10 + t, 1) + 2)
a("s_cmp_eq_u32 s8, 3\ns_cbranch_scc1 k_A_nw")
for h in range(4): a("ds_write_b128 v10, %s offset:%d" % (q4(KOP + 32 + 4 * h), 6656 + h * 1024))
for t in range(5): a("ds_write_b64 v11, %s offset:%d" % (q2(VOP + 6 * t + 4), 6656 + 4096 + t * 512))
a("v_mov_b32 v12, 4\nds_write_b32 v14, v12 offset:%d" % (F_XR + 4 - F_FREE))
a.label("k_A_nw")
packK(lambda t: acc(5 + t, 0), KOP + 16)
for t in range(5):
    cvt(VOP + 6 * t + 2, acc(10 + t, 0)); cvt(VOP + 6 * t + 3, acc(10 + t, 0) + 2)
a("""
s_mov_b32 s66, 0xffff
s_mov_b32 s67, 0
s_mov_b32 s68, 0xffff0000
s_mov_b32 s69, 0
s_mov_b32 s70, 0
s_mov_b32 s71, 0xffff
s_mov_b32 s72, 0
s_mov_b32 s73, 0xffff0000
v_and_b32 v12, 1, v3
v_cmp_eq_u32 s[74:75], 1, v12
v_lshl_add_u32 v13, v2, 2, v12
v_cmp_ge_u32 s[100:101], v3, v13
v_add_u32 v13, 2, v13
v_cmp_ge_u32 vcc, v3, v13
""")
for tau in (1, 0):
    cvt(6, acc(4, tau)); cvt(7, acc(4, tau) + 2)
    for h in range(4):
        d = QOP + tau * 16 + 4 * h
        cvt(d, acc(h, tau)); cvt(d + 1, acc(h, tau) + 2)
        a("v_cndmask_b32 v%d, 0, v6, s[%d:%d]" % (d + 2, 66 + 2 * h, 67 + 2 * h))
        a("v_cndmask_b32 v%d, 0, v7, s[%d:%d]" % (d + 3, 66 + 2 * h, 67 + 2 * h))
def S(tau, h, p): return SS + ((tau * 4 + h) * 2 + p) * 4
for h in range(4):
    smf(S(1, h, 1), KOP + 32 + 4 * h, QOP + 16 + 4 * h, "0")
    smf(S(1, h, 0), KOP + 16 + 4 * h, QOP + 16 + 4 * h, "0")
for h in range(4): smf(S(0, h, 1), KOP + 16 + 4 * h, QOP + 4 * h, "0")
a("""
v_mov_b32 v12, 0x0c0c0100
v_mov_b32 v13, 0x01000c0c
v_cndmask_b32 v12, v12, v13, s[74:75]
v_mov_b32 v13, 0x0c0c0302
v_mov_b32 v6, 0x03020c0c
v_cndmask_b32 v13, v13, v6, s[74:75]
v_mov_b32 v6, 0x0c0c0c0c
v_cndmask_b32 v240, v12, v6, s[100:101]
v_cndmask_b32 v241, v13, v6, vcc
v_cndmask_b32 v242, v6, v12, s[100:101]
v_cndmask_b32 v243, v6, v13, vcc
s_or_b32 s9, s6, s8
s_cmp_eq_u32 s9, 0
s_cselect_b32 s9, 0xf149f2ca, 0
v_mov_b32 v244, s9
v_mov_b32 v245, s9
v_mov_b32 v246, s9
v_mov_b32 v247, s9
s_mov_b32 s64, 0x%08x
""" % f2u(0.22360679774997896 * 1.4426950408889634))
o_addr("s8")
lds_wait(F_XR - F_FREE, 1, "4", 248, vz="v14")
for h in range(4): a("ds_read_b128 %s, v10 offset:%d" % (q4(KOP + 4 * h), h * 1024))
for t in range(5): a("ds_read_b64 %s, v11 offset:%d" % (q2(VOP + 6 * t), 4096 + t * 512))
a("s_waitcnt lgkmcnt(5)")
for h in range(4): smf(S(0, h, 0), KOP + 4 * h, QOP + 4 * h, "v[244:247]")
def attn_tau(tau):
    o = Asm()
    E = EE + tau * 8; t0, t1, t2, t3 = (248, 249, 250, 251) if tau else (252, 253, 254, 255)
    for h in range(4):
        for i in range(2):
            cu = S(tau, h, 1) + 2 * i; prv = S(tau, h, 0) + 2 * i
            x, y = (t0, t1) if i == 0 else (t2, t3)
            o("v_cndmask_b32 v%d, v%d, v%d, s[74:75]" % (x, cu, cu + 1))
            o("v_cndmask_b32 v%d, v%d, v%d, s[74:75]" % (y, prv, prv + 1))
        for i in range(2):
            x, y = (t0, t1) if i == 0 else (t2, t3)
            o("v_cndmask_b32 v%d, v%d, v%d, %s" % (E + i * 4 + h, y, x, "s[100:101]" if i == 0 else "vcc"))
    for b in (E, E + 4):
        o("v_permlane32_swap_b32 v%d, v%d" % (b, b + 2)); o("v_permlane32_swap_b32 v%d, v%d" % (b + 1, b + 3))
    for b in (E, E + 4):
        o("v_permlane16_swap_b32 v%d, v%d" % (b, b + 1)); o("v_permlane16_swap_b32 v%d, v%d" % (b + 2, b + 3))
    o("v_max3_f32 v%d, v%d, v%d, v%d" % (t0, E, E + 1, E + 2))
    o("v_max3_f32 v%d, v%d, v%d, v%d" % (t1, E + 4, E + 5, E + 3))
    o("v_max3_f32 v%d, v%d, v%d, v%d" % (t0, t0, E + 6, E + 7))
    o("v_max_f32 v%d, v%d, v%d" % (t0, t0, t1))
    o("v_mul_f32 v%d, s64, v%d" % (t0, t0))
    for i in range(8): o("v_fma_f32 v%d, v%d, s64, -v%d" % (E + i, E + i, t0))
    for i in range(8): o("v_exp_f32 v%d, v%d" % (E + i, E + i))
    o("v_add_f32 v%d, v%d, v%d" % (t0, E, E + 1)); o("v_add_f32 v%d, v%d, v%d" % (t1, E + 2, E + 3))
    o("v_add_f32 v%d, v%d, v%d" % (t2, E + 4, E + 5)); o("v_add_f32 v%d, v%d, v%d" % (t3, E + 6, E + 7))
    o("v_add_f32 v%d, v%d, v%d" % (t0, t0, t1)); o("v_add_f32 v%d, v%d, v%d" % (t2, t2, t3))
    o("v_add_f32 v%d, v%d, v%d" % (t0, t0, t2)); o("v_rcp_f32 v%d, v%d" % (t0, t0))
    for i in range(8): o("v_mul_f32 v%d, v%d, v%d" % (E + i, E + i, t0))
    for j in range(4): o("v_cvt_pk_bf16_f32 v%d, v%d, v%d" % (E + j, E + j, E + 4 + j))
    o("v_permlane32_swap_b32 v%d, v%d" % (E, E + 2)); o("v_permlane32_swap_b32 v%d, v%d" % (E + 1, E + 3))
    o("v_permlane16_swap_b32 v%d, v%d" % (E, E + 1)); o("v_permlane16_swap_b32 v%d, v%d" % (E + 2, E + 3))
    P = POP + tau * 16
    for h in range(4):
        for j in range(4): o("v_perm_b32 v%d, v%d, v%d, v%d" % (P + 4 * h + j, E + h, E + h, 240 + j))
    for h in range(4):
        smf(S(tau, h, 0), VOP + 6 * h + 2 * tau, P + 4 * h, "0", o)
        smf(S(tau, h, 1), VOP + 24 + 2 * tau, P + 4 * h, "0", o)
    return o
a("s_waitcnt lgkmcnt(0)")
merge([attn_tau(1), attn_tau(0)])
OA = 208
for tau in (1, 0):
    for h in range(4):
        cvt(OA + 12 * tau + 2 * h, S(tau, h, 0)); cvt(OA + 12 * tau + 2 * h + 1, S(tau, h, 0) + 2)
for h in range(4):
    a("s_mov_b64 exec, s[%d:%d]" % (66 + 2 * h, 67 + 2 * h))
    for tau in range(2):
        cvt(OA + 12 * tau + 8, S(tau, h, 1)); cvt(OA + 12 * tau + 9, S(tau, h, 1) + 2)
a("s_mov_b64 exec, -1")
o_store("s12", OA); o_store("s13", OA + 12)
a("s_mov_b32 s66, %d\ns_mov_b32 s67, %d\ns_mov_b32 s68, %d\ns_mov_b32 s69, %d\ns_mov_b32 s70, %d\ns_mov_b32 s71, %d\ns_mov_b32 s79, 8" %
  (A_WO[0], A_WO[1], A_WO[2], A_WO[3], 40 * 160, 20 * 160))
a("s_branch k_P2")

section("help")
a.label("k_h567")
srd_rest()
a("""
v_mov_b32 v16, 0
v_mov_b32 v17, 0
v_mov_b32 v18, 0
v_mov_b32 v19, 0
v_mov_b32 v20, 1
v_lshlrev_b32 v8, 4, v1
""")
if OPT("pfcode"):
    a("""
    s_cmp_eq_u32 s8, 6
    s_cbranch_scc0 k_nopc
    s_getpc_b64 s[10:11]
    k_pcref:
    s_add_u32 s10, s10, k_pf_start-k_pcref
    s_addc_u32 s11, s11, -1
    s_lshl_b32 s9, s4, 10
    s_add_u32 s10, s10, s9
    s_addc_u32 s11, s11, 0
    v_add_co_u32 v22, vcc, s10, v8
    v_mov_b32 v23, s11
    v_addc_co_u32 v23, vcc, 0, v23, vcc
    global_load_dwordx4 v[24:27], v[22:23], off
    k_nopc:
    """)
if not OPT("nopfwo"):
    a("""
    s_sub_u32 s9, s8, 6
    s_mul_i32 s9, s9, 10
    s_mul_i32 s10, s4, 20
    s_add_u32 s9, s9, s10
    s_mul_i32 s9, s9, 1280
    s_lshr_b32 s10, s7, 2
    s_mul_i32 s10, s10, 640
    s_add_u32 s9, s9, s10
    s_mov_b32 s66, -1
    s_mov_b32 s67, 0xff
    s_mov_b64 exec, s[66:67]
    """)
    for i in range(10):
        a("buffer_load_dwordx4 v[24:27], v8, s[56:59], s9 offen%s\ns_add_u32 s9, s9, 1280" % NT)
    a("s_mov_b64 exec, -1\nk_nopf:")
a("""
s_cmp_eq_u32 s5, 0
s_cbranch_scc0 k_noz
s_cmp_eq_u32 s8, 7
s_cbranch_scc0 k_end
s_cmp_lt_u32 s7, 3
s_cbranch_scc0 k_end
""")
a("""
s_cmp_eq_u32 s7, 2
s_cselect_b32 s9, s6, 0
s_cmp_ge_u32 s9, 8
s_cbranch_scc1 k_end
""")
lds_wait0(F_FULL + 4 * AV("zat", 3), 248, sleep=4)
a("""
s_lshl_b32 s75, s7, 4
s_add_u32 s75, s75, s6
s_lshl_b32 s74, s75, 10
s_add_u32 s74, s74, %d
s_lshl_b32 s75, s75, 2
s_add_u32 s75, s75, %d
v_lshlrev_b32 v9, 8, v1
s_mov_b64 exec, 15
buffer_store_dword v16, v9, s[44:47], s74 offen sc1
s_mov_b64 exec, 1
s_waitcnt vmcnt(0)
buffer_store_dword v20, v15, s[48:51], s75 offen sc1
s_endpgm
k_noz:
""" % (CNT, DG_O))
a("""
s_cmp_eq_u32 s8, 6
s_cbranch_scc1 k_h67Bz
""")
a("s_mov_b32 s66, -1\ns_mov_b32 s67, 0xff\ns_mov_b64 exec, s[66:67]\nv_add_u32 v9, %d, v8\nds_write_b128 v9, v[16:19]\ns_mov_b64 exec, -1" % ZERO)
a.label("k_h67Bz")
a("s_waitcnt vmcnt(%d) lgkmcnt(0)\ns_lshl_b32 s9, s8, 2\nv_add_u32 v9, s9, v0" % (0 if OPT("nopfwo") else 10))
a("v_mov_b32 v12, 0x7ffffff0\nds_write_b32 v9, v12 offset:%d" % (F_AUX - 24))
def hsetup(wphi=True):
    srd_rest(False)
    a("""
    s_sub_u32 s16, s8, 4
    v_mul_u32_u24 v8, 26, v1
    v_lshrrev_b32 v8, 8, v8
    v_mul_u32_u24 v9, 10, v8
    v_sub_u32 v9, v1, v9
    v_lshlrev_b32 v9, 4, v9
    v_mov_b32 v7, 0x7fffff00
    s_mov_b32 s66, -1
    s_mov_b32 s67, 0x0fffffff
    s_mov_b32 s68, -1
    s_mov_b32 s69, 0xff
    s_mul_i32 s70, s7, 160
    s_lshl_b32 s9, s16, 2
    v_add_u32 v14, s9, v0
    """)
    wo_setup()
    if wphi: wphi_load()
    img_addr("s16", 1)
    lane_parts()
    a("""
    s_add_u32 s22, s6, 16
    s_lshl_b32 s21, s22, 2
    s_add_u32 s21, s21, s16
    s_lshl_b32 s21, s21, 8
    s_add_u32 s21, s21, %d
    s_lshl_b32 s22, s22, 2
    s_add_u32 s22, s22, %d
    s_lshl_b32 s18, s7, 2
    s_add_u32 s18, s18, s16
    s_lshl_b32 s17, s18, 15
    s_add_u32 s17, s17, %d
    s_lshl_b32 s18, s18, 8
    s_add_u32 s18, s18, %d
    s_lshl_b32 s19, s7, 2
    s_add_u32 s19, s19, %d
    s_mul_i32 s20, s16, 80
    s_add_u32 s20, s20, %d
    v_mul_u32_u24 v4, %d, v10
    v_lshl_add_u32 v4, v9, 3, v4
    v_add_u32 v5, %d, v4
    v_add_u32 v4, s20, v4
    s_mul_i32 s9, s16, 48
    v_add_u32 v5, s9, v5
    v_mul_u32_u24 v6, %d, v3
    v_lshl_add_u32 v6, v2, 3, v6
    v_add_u32 v6, s20, v6
    """ % (CNT, DG_O, PART, CNT + 128 * 256, DG_K, IMG, IMG_RS, IMG + IMG_V, IMG_RS))
    def unit_addr(dst, ureg, clamp):
        if clamp: a("v_min_u32 v%d, 104, v%d" % (ureg, ureg))
        a("""
        v_mul_u32_u24 v8, 205, v%d
        v_lshrrev_b32 v8, 10, v8
        v_min_u32 v8, 22, v8
        v_mul_u32_u24 v9, 5, v8
        v_sub_u32 v9, v%d, v9
        v_min_u32 v9, 4, v9
        v_mul_u32_u24 v%d, %d, v8
        v_lshl_add_u32 v%d, v9, 4, v%d
        v_add_u32 v%d, s20, v%d
        """ % (ureg, ureg, dst, IMG_RS, dst, dst, dst, dst))
    a("v_mov_b32 v10, v1"); unit_addr(236, 10, True)
    a("v_add_u32 v10, 64, v1"); unit_addr(237, 10, True)
    for k in range(4):
        a("v_lshrrev_b32 v10, 1, v2\nv_lshl_add_u32 v10, v10, 4, v3\nv_add_u32 v10, %d, v10" % (32 * k))
        unit_addr(70 + k, 10, False)
        a("v_and_b32 v10, 1, v2\nv_lshl_add_u32 v%d, v10, 3, v%d" % (70 + k, 70 + k))
    a("""
    v_and_b32 v8, 1, v3
    v_mov_b32 v9, 0x3f80
    v_mov_b32 v10, 0x3f800000
    v_cmp_eq_u32 vcc, 1, v8
    v_cndmask_b32 v9, v9, v10, vcc
    v_lshrrev_b32 v8, 1, v3
    """)
    for hi in range(2):
        for r in range(4):
            a("v_lshl_add_u32 v10, v2, 2, %d\nv_cmp_eq_u32 vcc, v10, v8\nv_cndmask_b32 v%d, v15, v9, vcc" % (r - 8 * hi, 240 + 4 * hi + r))
    kv_addr(64)

hsetup()
a("s_cmp_eq_u32 s8, 6\ns_cbranch_scc1 k_hB2")
lds_wait0(F_FULL + 56, 248, sleep=8)
a("s_load_dword s9, s[32:33], s19\ns_load_dword s10, s[32:33], s22\ns_waitcnt lgkmcnt(0)\ns_and_b32 s9, s9, s10\ns_cmp_ge_u32 s9, 1\ns_cbranch_scc1 k_hB2")
glb_wait('dbg', "s19", "1", 12, vec=True)
glb_wait('dbg', "s22", "1", 12, vec=True)
a.label("k_hB2")
set_l2e()
lds_wait(F_HX, 1, "1", 248, vz="v14")
stamp(1)
for m in range(3): a("ds_read_b128 %s, v13 offset:%d" % (q4(36 + 4 * m), 1024 * m))
a("s_waitcnt lgkmcnt(0)")
pmf(128, 36)
softmax2(128, 36, 148, 248, phi_wr)
a("v_mov_b32 v12, 1\nds_write_b32 v14, v12 offset:%d" % (F_XR + 16))
lds_wait(F_XR, 8, "1", 248)
stamp(3)
KA = 128
for kap in range(4):
    base = 152 + kap * 20
    for ft in range(3):
        for hf in range(2): a("ds_read_b64_tr_b16 %s, v4 offset:%d" % (q2(base + 4 * ft + 2 * hf), (32 * kap + 8 * hf) * IMG_RS + ft * 32))
    for dt in range(2):
        for hf in range(2): a("ds_read_b64_tr_b16 %s, v5 offset:%d" % (q2(base + 12 + 4 * dt + 2 * hf), (32 * kap + 8 * hf) * IMG_RS + dt * 32))
    if kap >= 1:
        a("s_waitcnt lgkmcnt(10)")
        pb = base - 20
        for ft in range(3):
            for dt in range(2):
                d = KA + (ft * 2 + dt) * 4
                smf(d, pb + 4 * ft, pb + 12 + 4 * dt, "0" if kap == 1 else q4(d))
a("s_waitcnt lgkmcnt(0)\nv_mov_b32 v12, 1\nds_write_b32 v14, v12 offset:%d" % F_KVD)
for ft in range(3):
    for dt in range(2):
        d = KA + (ft * 2 + dt) * 4
        smf(d, 212 + 4 * ft, 212 + 12 + 4 * dt, q4(d))
a("s_lshl_b32 s9, s6, 11\ns_add_u32 s9, s9, s17\ns_mov_b32 s100, 0x001f001f\ns_mov_b32 s101, 0x001f001f\nv_lshlrev_b32 v8, 4, v1")
for i in range(12): cvt(36 + i, KA + 2 * i)
for ft, dt in ((0, 0), (1, 0), (0, 1), (1, 1), (2, 1), (2, 0)):
    if (ft, dt) == (0, 1): a("s_mov_b64 exec, s[100:101]")
    if (ft, dt) == (2, 1): a("s_mov_b32 exec_hi, 0")
    if (ft, dt) == (2, 0): a("s_mov_b32 exec_lo, -1")
    a("ds_write_b64 v6, %s offset:%d" % (q2(36 + (ft * 2 + dt) * 2), dt * 16 * IMG_RS + ft * 32))
a("s_mov_b64 exec, -1")
a("ds_read_b128 v[48:51], v236\nds_read_b128 v[52:55], v237\ns_waitcnt lgkmcnt(1)")
a("buffer_store_dwordx4 v[48:51], v8, s[44:47], s9 offen sc1\ns_waitcnt lgkmcnt(0)")
a("buffer_store_dwordx4 v[52:55], v8, s[44:47], s9 offen offset:1024 sc1")
lds_wait(F_HX, 1, "2", 248, vz="v14")
for m in range(3): a("ds_read_b128 %s, v13 offset:%d" % (q4(36 + 4 * m), 1024 * m))
a("v_mov_b32 v12, 1\ns_waitcnt lgkmcnt(0)")
pmf(128, 36)
a("s_mov_b64 exec, 1\ns_waitcnt vmcnt(0)")
stamp(4)
a("buffer_atomic_add v12, v15, s[44:47], s18 offen sc1\ns_mov_b64 exec, -1")
a("s_cmp_eq_u32 s8, 4\ns_cbranch_scc0 k_nowo")
lds_wait(F_FREE, 4, "20", 248)
wo_phase(1, B_WO[1]); wo_phase(2, B_WO[2])
lds_wait(F_KVD, 4, "1", 248)
wo_phase(3, B_WO[3])
wo_done()
a.label("k_nowo")
softmax2(128, PHQ, 148, 248)
glb_wait('ws', "s18", "16", 12)
stamp(5)
a("s_mov_b32 s10, s6")
LB = 16
bufs = [128 + 8 * i for i in range(13)] + [16, 24, 32]
for i in range(16):
    a("s_lshl_b32 s9, s10, 11\ns_add_u32 s9, s9, s17\ns_add_u32 s10, s10, 1\ns_and_b32 s10, s10, 15")
    a("buffer_load_dwordx4 %s, v8, s[44:47], s9 offen sc1" % q4(bufs[i]))
    a("buffer_load_dwordx4 %s, v8, s[44:47], s9 offen offset:1024 sc1" % q4(bufs[i] + 4))
o_addr("s16")
SA = 40
for i in range(16):
    a("s_waitcnt vmcnt(%d)" % (30 - 2 * i))
    for k in range(4):
        smf(SA + 4 * k, 240 + 4 * (k & 1), bufs[i] + 4 * (k >> 1), "0" if i == 0 else q4(SA + 4 * k))
for k in range(4):
    cvt(56 + 2 * k, SA + 4 * k); cvt(57 + 2 * k, SA + 4 * k + 2)
for k in range(4): a("ds_write_b64 v%d, %s" % (70 + k, q2(56 + 2 * k)))
a("v_mov_b32 v12, 1\nds_write_b32 v14, v12 offset:%d" % F_KVR)
stamp(6)
lds_wait(F_KVR, 4, "1", 248)
o_compute(16, 128)
o_store("s13", OPK)
a("v_mov_b32 v12, 1\ns_mov_b64 exec, 1\ns_waitcnt vmcnt(0)\nbuffer_atomic_add v12, v15, s[44:47], s21 offen sc1")
stamp(7)
stamp_store()
a.label("k_end")
a("s_endpgm")

fin = Asm()
hdr = open("cdna_kernels/%s.s.ref" % NAME).read().split("; Override launch")[0]
fin.raw(hdr.rstrip())
fin.raw("; @launch grid=(256,1,1) block=(512,1,1) lds=163840")
fin.raw('.amdgcn_target "amdgcn-amd-amdhsa--gfx950"')
fin.raw(".text")
fin.raw(".set WPHI_ADDR, %d" % WPHI)
section("hs"); hsetup(False)
section("wp"); wphi_load()
for it in secs["entry"].items:
    if it == "@@HSETUP@@": fin.items += secs["hs"].items
    elif it == "@@WPHI@@": fin.items += secs["wp"].items
    else: fin.items.append(it)
fin.raw("k_pf_start:")
for n in ("setup", "A", "help"): fin.items += secs[n].items
fin.raw('.section .rodata,"a"')
fin.raw(""".p2align 6
.amdhsa_kernel %s
  .amdhsa_next_free_vgpr 256
  .amdhsa_next_free_sgpr 102
  .amdhsa_accum_offset 256
  .amdhsa_group_segment_fixed_size 0
  .amdhsa_kernarg_size 80
  .amdhsa_user_sgpr_count 2
  .amdhsa_user_sgpr_kernarg_segment_ptr 1
  .amdhsa_system_sgpr_workgroup_id_x 1
.end_amdhsa_kernel""" % KN)
out = [x for x in sys.argv[1:] if not x.startswith("--")][0]
open(out, "w").write(fin.finish())
```

```python
import sys, struct
from asmlib import Asm, LgkmQ, Ins

NAME = "concat_heads__sliding_local_dilated__linear_kernel_hedgehog__prompt"
KN = NAME + "_kernel"
OPT = lambda o: ("--" + o) in sys.argv
AV = lambda n, d: int([x for x in sys.argv if x.startswith("--%s=" % n)][0].split("=")[1]) if any(x.startswith("--%s=" % n) for x in sys.argv) else d
STAMP = OPT("stamp"); NT = " nt" if OPT("nt") else ""
NSHA = AV("nsha", 0); NSHB = AV("nshb", 0); NPRE = AV("npre", 16); PRE_AT = AV("preat", 4); LSLP = AV("lslp", 0); CSLP = AV("cslp", 0)
def f2u(x): return struct.unpack("<I", struct.pack("<f", x))[0]

FLG = 163584
F_FREE = 16
F_AUX = 32
F_XR = 48
F_HX = 80
F_KVR = 96
F_KVD = 112
F_FULL = 128
F_WO = 216
A_SLOT = 49152; A_XB = 18432; SEC = 10240
A_EXCH = 49152
A_WO = [75776, 101376, 126976, 0]
B_S1 = 47104; B_XB = 16384
IMG = 90112; IMG_RS = 544; IMG_V = 320
WPHI = 159744; ZERO = 162944
B_WO = [51200, 0, 25600, 102624]
B_HX = 76800
B_HQ = 0
O_BR = 64 * 40960
PART = 8 << 20
CNT = 9 << 20
STAMP_OFF = 16 << 20
WS_BYTES = 268435456
SPIN = 0x100000
DG_O = 64; DG_K = 192

class Sec(Asm): pass
cur = [None]
def a(s): cur[0](s)
class _A:
    def __call__(self, s): cur[0](s)
    def raw(self, s): cur[0].raw(s)
    def label(self, s): cur[0].label(s)
    @property
    def items(self): return cur[0].items
a = _A()
secs = {}
def section(n):
    secs[n] = Asm(); cur[0] = secs[n]

def q4(r): return "v[%d:%d]" % (r, r + 3)
def q2(r): return "v[%d:%d]" % (r, r + 1)
def srd(n, lo, nbytes):
    a("s_mov_b32 s%d, s%d\ns_mov_b32 s%d, s%d\ns_mov_b32 s%d, %d\ns_mov_b32 s%d, 0x20000" % (n, lo, n + 1, lo + 1, n + 2, nbytes, n + 3))
def stamp(i):
    if STAMP: a("s_memtime s[%d:%d]" % (80 + 2 * i, 81 + 2 * i))
def stamp_store():
    if not STAMP: return
    a("s_waitcnt lgkmcnt(0)")
    for i in range(1, 10): a("s_sub_u32 s%d, s%d, s80" % (80 + 2 * i, 80 + 2 * i))
    a("s_mov_b64 exec, 1")
    for i in range(10): a("v_mov_b32 v%d, s%d" % (100 + i, 80 + 2 * i))
    a("v_mov_b32 v110, 0\nv_mov_b32 v111, 0")
    a("s_lshl_b32 s9, s2, 3\ns_add_u32 s9, s9, s8\ns_lshl_b32 s9, s9, 6\ns_add_u32 s9, s9, %d" % STAMP_OFF)
    a("v_mov_b32 v112, 0")
    a("buffer_store_dwordx4 v[100:103], v112, s[44:47], s9 offen")
    a("buffer_store_dwordx4 v[104:107], v112, s[44:47], s9 offen offset:16")
    a("buffer_store_dwordx4 v[108:111], v112, s[44:47], s9 offen offset:32")
uid = [0]
def L(p):
    uid[0] += 1; return "%s_%d" % (p, uid[0])
def cvt(d, s, o=None): (o or a)("v_cvt_pk_bf16_f32 v%d, v%d, v%d" % (d, s, s + 1))
def smf(d, A, B, C, o=None): (o or a)("v_mfma_f32_16x16x32_bf16 %s, %s, %s, %s" % (q4(d), q4(A), q4(B), C))
def merge(streams):
    its = [list(s.items) for s in streams]
    while any(its):
        for it in its:
            if it: a.items.append(it.pop(0))
def spin_tail(top, ok, sleep, bound):
    if sleep: a("s_sleep %d" % sleep)
    a("s_add_u32 s14, s14, 1\ns_cmp_lt_u32 s14, %d\ns_cbranch_scc1 %s" % (bound, top))
    a.label(ok)
def lds_wait(off, nwords, thr, vt, vz="v0", sleep=1):
    top = L("lw"); ok = L("lwok")
    a("s_mov_b32 s14, 0")
    a.label(top)
    if nwords == 1: a("ds_read_b32 v%d, %s offset:%d" % (vt, vz, off))
    elif nwords == 2: a("ds_read_b64 %s, %s offset:%d" % (q2(vt), vz, off))
    else: a("ds_read_b128 %s, %s offset:%d" % (q4(vt), vz, off))
    if nwords == 8: a("ds_read_b128 %s, %s offset:%d" % (q4(vt + 4), vz, off + 16))
    a("s_waitcnt lgkmcnt(0)")
    if nwords == 2: a("v_min_u32 v%d, v%d, v%d" % (vt, vt, vt + 1))
    if nwords == 4: a("v_min3_u32 v%d, v%d, v%d, v%d\nv_min_u32 v%d, v%d, v%d" % (vt, vt, vt + 1, vt + 2, vt, vt, vt + 3))
    if nwords == 8:
        a("v_min3_u32 v%d, v%d, v%d, v%d\nv_min3_u32 v%d, v%d, v%d, v%d" % (vt, vt, vt + 1, vt + 2, vt + 3, vt + 3, vt + 4, vt + 5))
        a("v_min3_u32 v%d, v%d, v%d, v%d\nv_min_u32 v%d, v%d, v%d" % (vt, vt, vt + 6, vt + 7, vt, vt, vt + 3))
    a("v_readfirstlane_b32 s9, v%d\ns_cmp_ge_u32 s9, %s\ns_cbranch_scc1 %s" % (vt, thr, ok))
    spin_tail(top, ok, sleep, SPIN)
def lds_wait0(off, vt, vz="v0", sleep=1):
    top = L("lz"); ok = L("lzok")
    a("s_mov_b32 s14, 0")
    a.label(top)
    a("ds_read_b32 v%d, %s offset:%d\ns_waitcnt lgkmcnt(0)\nv_readfirstlane_b32 s9, v%d\ns_cmp_eq_u32 s9, 0\ns_cbranch_scc1 %s" % (vt, vz, off, vt, ok))
    spin_tail(top, ok, sleep, SPIN)
def glb_wait(which, soff, thr, vt, sleep=1, vec=False):
    top = L("gw"); ok = L("gwok")
    a("s_mov_b32 s14, 0")
    a.label(top)
    if vec:
        a("buffer_load_dword v%d, v15, %s, %s offen sc1" % (vt, "s[44:47]" if which == 'ws' else "s[48:51]", soff))
        a("s_waitcnt vmcnt(0)\nv_readfirstlane_b32 s9, v%d" % vt)
    else:
        a("s_load_dword s9, %s, %s glc\ns_waitcnt lgkmcnt(0)" % ("s[34:35]" if which == 'ws' else "s[32:33]", soff))
    a("s_cmp_ge_u32 s9, %s\ns_cbranch_scc1 %s" % (thr, ok))
    spin_tail(top, ok, sleep, SPIN // 16)
def srd_xw():
    a("""
    s_mov_b32 s38, 2621440
    s_mov_b32 s39, 0x20000
    s_mov_b32 s42, 2457600
    s_mov_b32 s43, 0x20000
    s_cmp_eq_u32 s5, 0
    s_waitcnt lgkmcnt(0)
    s_cselect_b32 s36, s16, s22
    s_cselect_b32 s37, s17, s23
    s_cselect_b32 s40, s18, s24
    s_cselect_b32 s41, s19, s25
    """)
def srd_rest(wait=True):
    if wait: a("s_waitcnt lgkmcnt(0)")
    a("""
    s_cmp_eq_u32 s5, 0
    s_cselect_b32 s56, s20, s28
    s_cselect_b32 s57, s21, s29
    s_mov_b32 s58, 819200
    s_mov_b32 s59, 0x20000
    """)
    srd(44, 34, WS_BYTES); srd(48, 32, 256); srd(52, 26, 25600); srd(60, 30, 2048 * 2560)
def lane_parts():
    a("""
    v_bfe_u32 v8, v1, 2, 2
    v_and_b32 v9, 3, v1
    v_lshrrev_b32 v10, 1, v2
    v_lshlrev_b32 v10, 4, v10
    v_and_b32 v11, 1, v2
    v_lshl_add_u32 v10, v11, 2, v10
    v_add_u32 v10, v10, v8
    """)
AD = (A_SLOT, A_SLOT, -2 * A_SLOT); BD = (B_S1, B_S1, -2 * B_S1)

section("entry")
a.raw(".globl %s\n.p2align 8\n.type %s,@function" % (KN, KN))
a.label(KN)
a("s_cmp_ge_u32 s2, 256\ns_cbranch_scc1 k_end")
a("s_load_dwordx16 s[16:31], s[0:1], 0\ns_load_dwordx4 s[32:35], s[0:1], 64")
if STAMP:
    for i in range(10): a("s_mov_b64 s[%d:%d], 0" % (80 + 2 * i, 81 + 2 * i))
if OPT("diag"): a("s_memtime s[80:81]\ns_memrealtime s[82:83]")
stamp(0)
a("""
v_lshrrev_b32 v4, 6, v0
v_and_b32 v1, 63, v0
v_readfirstlane_b32 s8, v4
s_and_b32 s3, s2, 7
s_lshr_b32 s5, s3, 2
s_lshr_b32 s4, s2, 3
s_and_b32 s6, s3, 1
s_lshl_b32 s6, s6, 3
s_and_b32 s9, s4, 7
s_add_u32 s6, s6, s9
s_bfe_u32 s7, s3, 0x10001
s_lshl_b32 s7, s7, 2
s_lshr_b32 s10, s4, 3
s_add_u32 s7, s7, s10
v_lshrrev_b32 v2, 4, v1
v_and_b32 v3, 15, v1
v_mov_b32 v15, 0
v_mov_b32 v0, %d
s_and_b32 s11, s8, 6
s_cmp_eq_u32 s11, 4
s_cbranch_scc1 k_ld
s_cmp_eq_u32 s8, 6
s_cselect_b32 s11, s5, 0
s_cmp_eq_u32 s11, 1
s_cbranch_scc0 k_nost
v_lshlrev_b32 v8, 4, v1
s_mul_i32 s9, s7, 3200
s_mov_b32 s54, 25600
s_mov_b32 s55, 0x20000
s_mov_b32 m0, WPHI_ADDR
s_waitcnt lgkmcnt(0)
s_mov_b32 s52, s26
s_mov_b32 s53, s27
buffer_load_dwordx4 v8, s[52:55], s9 offen lds
buffer_load_dwordx4 v8, s[52:55], s9 offen offset:1024 lds
buffer_load_dwordx4 v8, s[52:55], s9 offen offset:2048 lds
s_mov_b64 exec, 0xff
buffer_load_dwordx4 v8, s[52:55], s9 offen offset:3072 lds
s_mov_b64 exec, -1
k_nost:
s_barrier
s_branch k_notld
k_ld:
s_lshl_b32 s10, s10, 1
s_add_u32 s12, s9, s10
s_cmp_ge_u32 s12, 10
s_cselect_b32 s9, 10, 0
s_sub_u32 s12, s12, s9
v_lshrrev_b32 v8, 3, v1
v_mul_u32_u24 v8, 1280, v8
v_and_b32 v9, 7, v1
v_xor_b32 v9, v9, v2
v_lshl_add_u32 v24, v9, 4, v8
v_xor_b32 v25, 64, v24
v_add_u32 v25, 9216, v25
v_add_u32 v26, 18432, v24
v_add_u32 v27, 18432, v25
v_mul_u32_u24 v8, 26, v1
v_lshrrev_b32 v8, 8, v8
v_mul_u32_u24 v9, 10, v8
v_sub_u32 v9, v1, v9
v_lshlrev_b32 v9, 4, v9
v_mul_u32_u24 v32, 3840, v8
v_add_u32 v32, v32, v9
v_add_u32 v33, %d, v32
v_add_u32 v34, %d, v32
v_add_u32 v35, %d, v32
s_cmp_eq_u32 s5, 0
s_cselect_b32 s9, 0x7ffffff0, 0
v_mov_b32 v4, s9
v_lshrrev_b32 v5, 1, v1
v_cmp_eq_u32 vcc, 4, v5
v_cndmask_b32 v6, v15, v4, vcc
s_mov_b32 s10, 0
s_mov_b32 s11, 0x4fffff
v_cndmask_b32 v6, v6, 1, s[10:11]
v_lshl_add_u32 v4, v1, 2, v0
s_and_b32 s10, s8, 1
s_cbranch_scc1 k_noinit
ds_write_b32 v4, v6
k_noinit:
s_mul_i32 s73, s10, 5120
s_mul_i32 s75, s10, 122880
s_mul_i32 s64, s6, 163840
s_sub_u32 s65, s64, 20480
s_cmp_eq_u32 s6, 0
s_cselect_b32 s65, 0, s65
s_mov_b32 s66, -1
s_mov_b32 s67, 0x0fffffff
s_mov_b32 s68, -1
s_mov_b32 s69, 0xff
s_mul_i32 s70, s7, 160
s_add_u32 s75, s75, s70
s_lshl_b32 s77, s10, 2
s_add_u32 s77, s77, %d
v_mov_b32 v7, 0x7fffff00
""" % (FLG, 2 * 15360 - 640, 15360 - 1280, 3 * 15360 - 1920, FLG + F_FULL))
srd_xw()
a("s_barrier")
srd(48, 32, 256)
stamp(8)
def issue_x(xs, halo):
    so = None; m0 = None
    for i in xs:
        if halo: base, k, j = ("s65", 0, i) if i < 2 else ("s64", (i - 2) // 4 * 4, (i - 2) % 4)
        else: base, k, j = "s64", i // 4 * 4, i % 4
        if m0 != i - j: a("s_add_u32 m0, s11, %d" % ((i - j) * 1024)); m0 = i - j
        if so != (base, k):
            if k: a("s_add_u32 s15, s74, %d" % (k * 10240))
            else: a("s_add_u32 s15, %s, s13" % base)
            so = (base, k)
        if not OPT("nodma"): a("buffer_load_dwordx4 v%d, s[36:39], s15 offen offset:%d%s lds" % (24 + j, j * 1024, NT))
def issue_w(xb):
    a("s_mov_b64 exec, s[68:69]\ns_add_u32 s76, s11, s73")
    for sec in range(3):
        for m in range(2):
            a("s_add_u32 m0, s76, %d\ns_add_u32 s15, s71, %d" % (xb + sec * SEC + m * 2560, sec * 1280 + m * 61440))
            for i in range(4):
                if not OPT("nodma"): a("buffer_load_dwordx4 v%d, s[40:43], s15 offen offset:%d%s lds" % (32 + i, i * 640, NT))
    a("""
    s_mov_b32 m0, s77
    s_mov_b64 exec, 1
    buffer_load_dword v7, s[48:51], 0 offen lds
    s_mov_b64 exec, -1
    s_add_u32 s77, s77, 8
    s_add_u32 s10, s10, 2
    """)
def free_wait():
    top = L("lp"); ok = L("lpok")
    early = L("le")
    a("s_mov_b32 s14, 0\ns_cmp_lt_u32 s10, 6\ns_cbranch_scc0 %s" % top)
    if OPT("nogate"): a("s_branch %s" % ok)
    else:
        a("s_cmp_lt_u32 s10, 3\ns_cbranch_scc1 %s\ns_bitcmp0_b32 s10, 0\ns_cbranch_scc1 %s\ns_sub_u32 s9, s77, 12\nv_mov_b32 v22, s9" % (ok, ok))
        lds_wait0(0, 16, vz="v22")
        a("s_branch %s" % ok)
    a.label(top)
    a("""
    ds_read_b128 v[16:19], v0 offset:%d
    ds_read_b64 v[20:21], v0 offset:%d
    s_waitcnt lgkmcnt(0)
    v_min3_u32 v16, v16, v17, v18
    v_min3_u32 v16, v16, v19, v20
    v_min_u32 v16, v16, v21
    v_readfirstlane_b32 s9, v16
    s_add_u32 s9, s9, 5
    s_cmp_ge_u32 s9, s10
    s_cbranch_scc1 %s
    """ % (F_FREE, F_AUX, ok))
    spin_tail(top, ok, LSLP, SPIN)
    if OPT("cnt"): a("s_add_u32 s98, s98, s14\ns_cmp_gt_u32 s14, 0\ns_cselect_b32 s9, 0x10000, 0\ns_add_u32 s98, s98, s9")
def load_loop(xs, xb, halo, deltas, nsh, first=True, end=20):
    lbl = L("ld"); nx = L("nx")
    if nsh and first: a("s_cmp_ge_u32 s12, %d\ns_cselect_b32 s9, %d, 0\ns_sub_u32 s79, s12, s9\ns_add_u32 s79, s79, %d\ns_mov_b32 s12, 0" % (10 - nsh, 10 - nsh, nsh))
    if first: a("s_mov_b32 s11, 0\ns_mov_b32 s100, %d\ns_mov_b32 s101, %d\ns_mov_b32 s72, %d" % deltas)
    a.label(lbl)
    a("""
    s_lshl_b32 s13, s12, 7
    s_mul_i32 s71, s12, %d
    s_add_u32 s71, s71, s75
    s_add_u32 s74, s64, s13
    """ % (64 * 3840))
    if end > 2: free_wait()
    a("s_cmp_eq_u32 s8, 4\ns_cbranch_scc0 %s" % nx)
    issue_x(xs, halo)
    a.label(nx)
    issue_w(xb)
    a("s_add_u32 s12, s12, 1\ns_cmp_eq_u32 s12, 10\ns_cselect_b32 s12, %d, s12" % nsh)
    if nsh: a("s_lshr_b32 s9, s10, 1\ns_cmp_eq_u32 s9, %d\ns_cselect_b32 s12, s79, s12" % nsh)
    a("""
    s_add_u32 s11, s11, s100
    s_mov_b32 s9, s100
    s_mov_b32 s100, s101
    s_mov_b32 s101, s72
    s_mov_b32 s72, s9
    s_cmp_lt_u32 s10, %d
    s_cbranch_scc1 %s
    """ % (end, lbl))
def wo_setup():
    a("v_mul_u32_u24 v28, 1280, v8\nv_add_u32 v28, v28, v9")
    for e in range(1, 4): a("v_add_u32 v%d, %d, v28" % (28 + e, e * (6 * 1280 - 960)))
def wo_phase(P, base):
    a("s_mov_b64 exec, s[66:67]")
    for q in range(27):
        if q % 4 == 0: a("s_mov_b32 m0, %d\ns_add_u32 s15, s70, %d" % (base + q * 960, (160 * P + 6 * q) * 1280))
        if q == 26: a("s_mov_b64 exec, s[68:69]")
        a("buffer_load_dwordx4 v%d, s[56:59], s15 offen offset:%d lds" % (28 + q % 4, (q % 4) * 960))
    a("s_mov_b64 exec, -1")
def wo_done():
    a("s_mov_b32 m0, %d\ns_mov_b64 exec, 1\nbuffer_load_dword v7, s[48:51], 0 offen lds\ns_mov_b64 exec, -1" % (FLG + F_WO))
a("s_cmp_eq_u32 s5, 0\ns_cbranch_scc1 k_lA")
load_loop(range(16), B_XB, False, BD, NSHB, end=2)
a.raw("@@HSETUP@@")
load_loop(range(16), B_XB, False, BD, NSHB, first=False)
stamp(2)
a.raw("@@WPHI@@")
a("s_cmp_eq_u32 s8, 4\ns_cbranch_scc0 k_hB2")
lds_wait(F_FREE, 4, "16", 16)
wo_phase(0, B_WO[0])
a("s_branch k_hB2")
a.label("k_lA")
load_loop(range(18), A_XB, True, AD, NSHA)
stamp(2)
a("s_cmp_eq_u32 s8, 4\ns_cbranch_scc0 k_end")
srd_rest(False)
wo_setup()
lds_wait(F_FREE, 4, "18", 16)
for P in range(3): wo_phase(P, A_WO[P])
lds_wait(F_FREE, 4, "20", 16)
wo_phase(3, A_WO[3])
wo_done()
if STAMP: a("s_waitcnt vmcnt(0)")
stamp(3)
stamp_store()
a("s_endpgm")

ACC = 128
def acc(j, t): return ACC + j * 8 + t * 4
RING = 16; XF = 56; XH = 76; HACC = 84
def gemm_loop(br, secbase, flip, deltas, xoff=0, halo=None, D=5, areg=(4, 5, 6, 7), pre=None):
    halo = halo or {}
    tiles = [(j // 5, j % 5, j) for j in range(15)]
    items = [(kap, tl) for kap in range(2) for tl in tiles]; N = len(items)
    RN = 10
    Q = LgkmQ(15)
    nx = 3 if halo else 2
    def xr(kap, t):
        if t < 2: return (Ins("ds_read_b128 %s, v%d offset:%d" % (q4(XF + kap * 8 + t * 4), 6 + kap, xoff + t * 2048)), ("x", kap, t))
        return (Ins("ds_read_b128 %s, v%d" % (q4(XH + kap * 4), 6 + kap)), ("x", kap, t))
    def wreg(m):
        kap, (sec, t, j) = items[m]
        if br == 'B': return 4, 8 * t
        return (5, 40 * t) if t < 4 else (4, 32)
    def ir(m, hf):
        kap, (sec, t, j) = items[m]
        reg, toff = wreg(m)
        off = secbase + sec * SEC + (32 * kap + 8 * hf) * 160 + toff
        if OPT("noread"): return (Ins("s_nop 0"), None)
        return (Ins("ds_read_b64_tr_b16 %s, v%d offset:%d" % (q2(RING + (m % RN) * 4 + 2 * hf), reg, off)), ("w", m, hf))
    def emit(lst):
        for ins, tag in lst:
            a.items.append(ins)
            if tag is not None: Q.push(tag)
    lbl = L("gl")
    a("s_mov_b32 s10, 0\nv_mov_b32 v74, 0\nv_add_u32 v73, %d, v0" % (F_FULL + 4))
    a("s_mov_b32 s100, %d\ns_mov_b32 s101, %d\ns_mov_b32 s11, %d" % deltas)
    if pre: pre()
    lds_wait0(F_FULL, 72)
    stamp(1)
    emit([xr(0, t) for t in range(nx)] + [ir(m, hf) for m in range(D) for hf in range(2)])
    a.raw(".p2align 3")
    a.label(lbl)
    slow = L("slow"); back = L("back")
    mf = []; g0 = []
    for m in range(N):
        kap, (sec, t, j) = items[m]
        g0.append(len(mf))
        for t2 in range(2): mf.append((m, XF + kap * 8 + t2 * 4, acc(j, t2)))
        if j in halo: mf.append((m, XH + kap * 4, halo[j]))
    G = len(mf); g0.append(G)
    gaps = [[] for _ in range(G)]; load = [0] * G
    for m in range(2, N + 1, 2): load[g0[m] - 1] += 1
    sw = N - D
    for m in range(N):
        for hf in range(2):
            g = g0[m] + hf
            gaps[g].append(ir((m + D) % N, hf)); load[g] += 1
    def place(ins, lo, hi, tag=None):
        hi = max(lo, hi)
        g = min(range(lo, hi + 1), key=lambda x: (load[x], x))
        if isinstance(ins, str): ins = Ins(ins)
        gaps[g].append((ins, tag)); load[g] += 1
        return g
    gsw = g0[sw]; half = g0[N // 2]
    g = 0
    for t in range(nx):
        i, tg = xr(1, t); g = place(i, g, min(g0[N // 2 - D], g + 2), tg)
    g7 = g
    H = N // 2
    g = place("v_add_u32 v74, 1, v74", 4, g0[H - 1] - 1)
    gaps[g0[H - 1]].append((Ins("ds_write_b32 v14, v74"), ("fw", 0))); load[g0[H - 1]] += 1
    g = place("v_add_u32 v74, 1, v74", g0[H], g0[N - 2] - 1)
    gaps[g0[N - 2]].append((Ins("ds_write_b32 v14, v74"), ("fw", 1))); load[g0[N - 2]] += 1
    slow2 = L("slowb"); back2 = L("backb")
    gm = g0[H - D]; chk2 = H - D - 1 if (H - D - 1) % 2 == 0 else H - D - 2
    place("ds_read_b32 v75, v73", g0[chk2 - D + 1], g0[chk2 - D + 1] + 1, ("f2",))
    place("v_readfirstlane_b32 s12, v75", g0[chk2], min(g0[chk2] + 1, gm - 2))
    gaps[gm - 1] += [(Ins("s_cmp_eq_u32 s12, 0"), None), (Ins("s_cbranch_scc0 %s" % slow2), None), (back2 + ":", None)]
    load[gm - 1] += 2
    g = 0
    for t_ in ("s_mov_b32 s13, s100", "s_mov_b32 s100, s101", "s_mov_b32 s101, s11", "s_mov_b32 s11, s13"):
        g = place(t_, g, g + 3)
    grot = g
    chkm = sw - 1 if (sw - 1) % 2 == 0 else sw - 2
    gf = g0[chkm - D + 1]
    place("ds_read_b32 v72, v73 offset:4", gf, gf + 1, ("f",))
    place("v_readfirstlane_b32 s9, v72", g0[chkm], min(g0[chkm] + 1, gsw - 2))
    lastuse = {}
    for m in range(N - D): lastuse[wreg(m + D)[0]] = g0[m] + 1
    firstnext = {}
    for m in range(sw, N): firstnext.setdefault(wreg((m + D) % N)[0], g0[m])
    for r in areg:
        if r == 6: place("v_add_u32 v6, s13, v6", grot + 1, gsw - 1)
        elif r == 7: place("v_add_u32 v7, s13, v7", max(grot, g7) + 1, G - 1)
        else: place("v_add_u32 v%d, s13, v%d" % (r, r), max(lastuse.get(r, 0), grot), firstnext.get(r, G) - 1)
    gaps[gsw - 1] += [(Ins("s_cmp_eq_u32 s9, 0"), None), (Ins("s_cbranch_scc0 %s" % slow), None), (back + ":", None)]
    load[gsw - 1] += 2
    g = max(gsw, half)
    for t in range(nx):
        i, tg = xr(0, t); g = place(i, g, min(g + 1, G - 1), tg)
    place("v_add_u32 v73, 8, v73", gsw, G - 1)
    place("s_add_u32 s10, s10, 1", gsw, G - 2)
    if OPT("prof"):
        gaps[gsw].append((Ins("s_memtime s[96:97]"), None))
        gaps[7].append((Ins("s_mov_b32 m0, s10"), None)); gaps[8].append((Ins("v_writelane_b32 v255, s96, m0"), None))
    gaps[G - 1].append((Ins("s_cmp_lt_u32 s10, 10"), None))
    def body(dry):
        ws = []
        for gi, (m, xf, d) in enumerate(mf):
            kap, (sec, t, j) = items[m]
            if gi == g0[m] and m % 2 == 0:
                needs = [("w", m + 1, 1), ("w", m + 1, 0)] + [("x", items[m + 1][0], t2) for t2 in range(nx)]
                if m == chkm: needs.append(("f",))
                if m == chk2: needs.append(("f2",))
                cs = [(Q.count_after(tg), tg) for tg in needs if Q.count_after(tg) is not None]
                if cs:
                    c, tg = min(cs)
                    w = Q.wait(tg); ws.append(w)
                    if not dry: a("s_waitcnt lgkmcnt(%d)" % w)
                else: ws.append(99)
            wf = RING + (m % RN) * 4
            if dry:
                for ins, tag in gaps[gi]:
                    if tag is not None: Q.push(tag)
                continue
            if OPT("nomfma"): pass
            elif flip(j): smf(d, xf, wf, q4(d))
            else: smf(d, wf, xf, q4(d))
            emit(gaps[gi])
        return ws
    w1 = body(False); w2 = body(True)
    assert all(x <= y for x, y in zip(w1, w2)), (w1, w2)
    a("s_cbranch_scc1 %s" % lbl)
    a("s_waitcnt lgkmcnt(0)")
    if OPT("prof"):
        a("v_writelane_b32 v255, s96, 10\nv_subrev_u32 v255, s80, v255\ns_lshl_b32 s9, s2, 3\ns_add_u32 s9, s9, s8\ns_lshl_b32 s9, s9, 8\ns_add_u32 s9, s9, %d\nv_lshlrev_b32 v72, 2, v1\nbuffer_store_dword v255, v72, s[44:47], s9 offen" % (20 << 20))
    done = L("gd")
    a("s_branch %s" % done)
    a.label(slow)
    lds_wait0(4, 72, vz="v73", sleep=CSLP)
    if OPT("cnt"): a("s_add_u32 s88, s88, 0x10000\ns_add_u32 s88, s88, s14")
    a("s_branch %s" % back)
    a.label(slow2)
    lds_wait0(0, 72, vz="v73", sleep=CSLP)
    if OPT("cnt"): a("s_add_u32 s88, s88, 0x1000000\ns_add_u32 s88, s88, s14")
    a("s_branch %s" % back2)
    a.label(done)

section("setup")
a.label("k_notld")
a("s_cmp_ge_u32 s8, 6\ns_cbranch_scc1 k_h567")
lane_parts()
a("""
v_mul_u32_u24 v11, 160, v10
v_mad_u32_u24 v4, v9, 40, v11
v_lshl_add_u32 v5, v9, 3, v11
s_lshl_b32 s9, s8, 5
s_cmp_eq_u32 s5, 0
s_cselect_b32 s9, 0, s9
v_lshrrev_b32 v11, 1, v3
v_xor_b32 v11, v11, v2
v_lshlrev_b32 v11, 4, v11
v_add_u32 v12, s9, v3
v_lshl_add_u32 v6, v12, 7, v11
v_xor_b32 v7, 64, v6
s_lshl_b32 s9, s8, 2
s_add_u32 s9, s9, %d
v_add_u32 v14, s9, v0
""" % F_FREE)
for r in range(ACC, ACC + 120): a("v_mov_b32 v%d, 0" % r)
for r in range(HACC, HACC + 12): a("v_mov_b32 v%d, 0" % r)
srd_rest()
def ocnt_addr(wreg):
    a("""
    s_lshl_b32 s77, s5, 4
    s_add_u32 s77, s77, s6
    s_lshl_b32 s76, s77, 2
    s_add_u32 s76, s76, %s
    s_lshl_b32 s76, s76, 8
    s_add_u32 s76, s76, %d
    s_lshl_b32 s77, s77, 2
    s_add_u32 s77, s77, %d
    """ % (wreg, CNT, DG_O))
def o_addr(wreg):
    a("""
    v_lshlrev_b32 v8, 4, v1
    v_lshlrev_b32 v9, 3, v1
    s_lshl_b32 s9, s6, 2
    s_add_u32 s9, s9, %s
    s_mul_i32 s9, s9, 40960
    s_mul_i32 s10, s5, %d
    s_add_u32 s15, s9, s10
    s_mul_i32 s10, s7, 5120
    s_add_u32 s12, s15, s10
    s_add_u32 s13, s12, 2560
    """ % (wreg, O_BR))
ocnt_addr("s8")
a("s_cmp_eq_u32 s5, 0\ns_cbranch_scc1 k_A")

WP = 76
def wphi_load():
    lds_wait(F_AUX, 2, "1", 248)
    a("""
    v_bfe_u32 v8, v1, 2, 2
    v_and_b32 v9, 3, v1
    v_mul_u32_u24 v10, 800, v2
    v_mad_u32_u24 v10, v8, 40, v10
    v_add_u32 v10, %d, v10
    v_mov_b32 v11, %d
    v_cmp_eq_u32 vcc, v9, v2
    v_add_u32 v12, 640, v10
    v_cndmask_b32 v10, v11, v10, vcc
    v_cndmask_b32 v11, v11, v12, vcc
    """ % (WPHI, ZERO))
    for t in range(5): a("ds_read_b64_tr_b16 %s, v11 offset:%d" % (q2(WP + 10 * t + 8), t * 8))
    for t in range(5):
        for c in range(2):
            for hf in range(2): a("ds_read_b64_tr_b16 %s, v10 offset:%d" % (q2(WP + 10 * t + 4 * c + 2 * hf), c * 320 + hf * 160 + t * 8))
def set_l2e(): a("s_mov_b32 s64, 0x%08x\ns_mov_b32 s65, 0x%08x" % (f2u(1.4426950408889634), f2u(1.4426950408889634)))
def img_addr(wreg, tau):
    a("""
    s_lshl_b32 s9, %s, 5
    s_add_u32 s9, s9, %d
    v_add_u32 v12, s9, v3
    v_mul_u32_u24 v12, %d, v12
    v_add_u32 v12, %d, v12
    v_mul_u32_u24 v13, 80, v2
    v_add_u32 v126, v13, v12
    v_mad_u32_u24 v127, v2, 48, v12
    s_mul_i32 s9, %s, 3072
    s_add_u32 s9, s9, %d
    v_lshlrev_b32 v13, 4, v1
    v_add_u32 v13, s9, v13
    """ % (wreg, 16 * tau, IMG_RS, IMG, wreg, B_HX))
def preB():
    wphi_load(); img_addr("s8", 0); set_l2e()
gemm_loop('B', B_XB, lambda j: False, BD, areg=(4, 6, 7), pre=preB)
stamp(2)
def pack20(sec, tau, dst, o=None):
    for t in range(5):
        cvt(dst + 2 * t, acc(5 * sec + t, tau), o); cvt(dst + 2 * t + 1, acc(5 * sec + t, tau) + 2, o)
def pmf(P, src, o=None):
    o = o or a
    for t in range(5): o("v_mfma_f32_16x16x16_bf16 %s, %s, %s, 0" % (q4(P + 4 * t), q2(WP + 10 * t + 8), q2(src + 8)))
    for c in range(2):
        for t in range(5): smf(P + 4 * t, WP + 10 * t + 4 * c, src + 4 * c, q4(P + 4 * t), o)
def softmax2(P, dst, tmp, tv, wr=None):
    p = [P + i for i in range(20)]
    A0, B0 = tv, tv + 2
    a("v_max3_f32 v%d, v%d, v%d, v%d" % (A0, p[0], p[1], p[2])); a("v_min3_f32 v%d, v%d, v%d, v%d" % (B0, p[0], p[1], p[2]))
    a("v_max3_f32 v%d, v%d, v%d, v%d" % (A0 + 1, p[3], p[4], p[5])); a("v_min3_f32 v%d, v%d, v%d, v%d" % (B0 + 1, p[3], p[4], p[5]))
    for i in range(6, 20, 4):
        a("v_max3_f32 v%d, v%d, v%d, v%d" % (A0, A0, p[i], p[i + 1])); a("v_min3_f32 v%d, v%d, v%d, v%d" % (B0, B0, p[i], p[i + 1]))
        if i + 2 < 20:
            a("v_max3_f32 v%d, v%d, v%d, v%d" % (A0 + 1, A0 + 1, p[i + 2], p[i + 3])); a("v_min3_f32 v%d, v%d, v%d, v%d" % (B0 + 1, B0 + 1, p[i + 2], p[i + 3]))
    a("v_max_f32 v%d, v%d, v%d\nv_min_f32 v%d, v%d, v%d" % (A0, A0, A0 + 1, B0, B0, B0 + 1))
    a("v_mul_f32 v%d, s64, v%d\nv_mul_f32 v%d, s64, v%d" % (A0, A0, B0, B0))
    for i in range(0, 20, 2):
        a("v_pk_fma_f32 %s, %s, s[64:65], %s op_sel_hi:[1,1,0] neg_lo:[1,0,0] neg_hi:[1,0,0]" % (q2(tmp + i), q2(p[i]), q2(B0)))
        a("v_pk_fma_f32 %s, %s, s[64:65], %s op_sel_hi:[1,1,0] neg_lo:[0,0,1] neg_hi:[0,0,1]" % (q2(p[i]), q2(p[i]), q2(A0)))
    for i in range(20): a("v_exp_f32 v%d, v%d" % (p[i], p[i]))
    for i in range(20):
        a("v_exp_f32 v%d, v%d" % (tmp + i, tmp + i))
        if i == 0: a("v_pk_add_f32 %s, %s, %s" % (q2(A0), q2(p[0]), q2(p[2])))
        elif i <= 8: a("v_pk_add_f32 %s, %s, %s" % (q2(A0), q2(A0), q2(p[2 + 2 * i])))
        elif i == 9: a("v_add_f32 v%d, v%d, v%d" % (A0, A0, A0 + 1))
        elif i == 10: a("v_rcp_f32 v%d, v%d" % (A0, A0))
    a("v_pk_add_f32 %s, %s, %s" % (q2(B0), q2(tmp), q2(tmp + 2)))
    for i in range(10):
        a("v_pk_mul_f32 %s, %s, %s op_sel_hi:[1,0]" % (q2(p[2 * i]), q2(p[2 * i]), q2(A0)))
        if i < 8: a("v_pk_add_f32 %s, %s, %s" % (q2(B0), q2(B0), q2(tmp + 4 + 2 * i)))
        elif i == 8: a("v_add_f32 v%d, v%d, v%d" % (B0, B0, B0 + 1))
        else: a("v_rcp_f32 v%d, v%d" % (B0, B0))
    for i in range(10):
        cvt(dst + i, p[2 * i])
        if wr and i in (3, 7): wr(i // 4, dst + i - 3)
    for i in range(10):
        a("v_pk_mul_f32 %s, %s, %s op_sel_hi:[1,0]" % (q2(tmp + 2 * i), q2(tmp + 2 * i), q2(B0)))
    for i in range(10):
        cvt(dst + 10 + i, tmp + 2 * i)
        if wr and (10 + i) % 4 == 3: wr((10 + i) // 4, dst + 10 + i - 3)
def phi_wr(m, r): a("ds_write_b128 v126, %s offset:%d" % (q4(r), 16 * m))
HK = 16
pack20(1, 1, HK)
lds_wait(F_FREE, 4, "18", 248)
for m in range(2): a("ds_write_b128 v13, %s offset:%d" % (q4(HK + 4 * m), 1024 * m))
a("ds_write_b128 v13, %s offset:2048" % q4(HK + 8))
a("v_mov_b32 v12, 1\nds_write_b32 v14, v12 offset:%d" % (F_HX - F_FREE))
PK = 28; VT = 40
pack20(1, 0, PK)
PP = acc(5, 0)
pmf(PP, PK)
a("v_mov_b32 v%d, 0x3f803f80\nv_mov_b32 v%d, 0x3f803f80\nv_mov_b32 v%d, 0x3f803f80\nv_mov_b32 v%d, 0x3f803f80" % (VT + 10, VT + 11, VT + 22, VT + 23))
for tau in range(2):
    pack20(2, tau, VT + 12 * tau)
    for m in range(3): a("ds_write_b128 v127, %s offset:%d" % (q4(VT + 12 * tau + 4 * m), IMG_V + tau * 16 * IMG_RS + 16 * m))
TM = acc(10, 0)
softmax2(PP, 16, TM, 248, phi_wr)
a("v_mov_b32 v12, 1\nds_write_b32 v14, v12 offset:%d" % (F_XR - F_FREE))
stamp(3)
pack20(0, 1, 40)
pack20(0, 0, 52)
PQ = acc(8, 0)
pmf(PQ, 52)
lds_wait(F_XR + 16 - F_FREE, 1, "1", 248, vz="v14")
for m in range(3): a("ds_write_b128 v13, %s offset:%d" % (q4(40 + 4 * m), 1024 * m))
a("v_mov_b32 v12, 2\nds_write_b32 v14, v12 offset:%d\ns_mov_b32 s78, 1" % (F_HX - F_FREE))
PHQ = 76
def kv_addr(KB):
    a("""
    v_lshrrev_b32 v8, 2, v3
    v_and_b32 v9, 3, v3
    v_mul_u32_u24 v10, 80, v2
    v_add_u32 v10, %d, v10
    v_mul_u32_u24 v11, %d, v9
    v_add_u32 v11, v11, v10
    v_add_u32 v10, %d, v10
    v_mov_b32 v12, %d
    v_cmp_eq_u32 vcc, v8, v2
    v_cndmask_b32 v%d, v12, v10, vcc
    v_cndmask_b32 v%d, v12, v11, vcc
    """ % (IMG, IMG_RS, 20 * IMG_RS, ZERO, KB + 5, KB))
    for t in range(1, 5): a("v_add_u32 v11, %d, v11\nv_cndmask_b32 v%d, v12, v11, vcc" % (4 * IMG_RS, KB + t))
OPK = 232
def o_compute(FR, OA):
    Q = LgkmQ(15)
    its = [(t, c) for c in range(5) for t in (5, 0, 1, 2, 3, 4)]
    def kread(m):
        t, c = its[m]
        a("ds_read_b128 %s, v%d offset:%d" % (q4(FR + (m % 12) * 4), 64 + t, c * 16)); Q.push(m)
    for m in range(11): kread(m)
    for m in range(30):
        t, c = its[m]
        if m % 2 == 0: a("s_waitcnt lgkmcnt(%d)" % Q.wait(m + 1))
        d = OA + 4 * t
        smf(d, FR + (m % 12) * 4, PHQ + 4 * c, "0" if c == 0 else q4(d))
        if m + 11 < 30: kread(m + 11)
    a("v_add_f32 v10, 0x%08x, v%d\nv_rcp_f32 v10, v10" % (f2u(1e-6), OA + 20))
    for i in range(10): a("v_pk_mul_f32 %s, %s, v[10:11] op_sel_hi:[1,0]" % (q2(OA + 2 * i), q2(OA + 2 * i)))
    for i in range(10): cvt(OPK + i, OA + 2 * i)
def o_store(base, regs):
    a("buffer_store_dwordx4 %s, v8, s[44:47], %s offen sc1" % (q4(regs), base))
    a("buffer_store_dwordx4 %s, v8, s[44:47], %s offen offset:1024 sc1" % (q4(regs + 4), base))
    a("buffer_store_dwordx2 %s, v9, s[44:47], %s offen offset:2048 sc1" % (q2(regs + 8), base))
kv_addr(64)
softmax2(PQ, PHQ, 212, 248)
o_addr("s8")
stamp(5)
lds_wait(F_KVR, 4, "1", 248)
stamp(6)
o_compute(16, 128)
o_store("s12", OPK)
a("s_mov_b32 s66, %d\ns_mov_b32 s67, %d\ns_mov_b32 s68, %d\ns_mov_b32 s69, %d\ns_mov_b32 s70, %d\ns_mov_b32 s71, %d\ns_mov_b32 s79, 16" %
  (B_WO[0], B_WO[1], B_WO[2], B_WO[3], 8 * 160, 4 * 160))

a.label("k_P2")
stamp(7)
OF = 88; A2 = 48
a("""
v_bfe_u32 v5, v1, 2, 2
v_and_b32 v6, 3, v1
v_mad_u32_u24 v7, v2, 20, v5
v_mul_u32_u24 v7, 160, v7
v_lshl_add_u32 v252, v6, 3, v7
v_lshl_add_u32 v7, v2, 2, v5
v_mul_u32_u24 v7, 160, v7
v_lshl_add_u32 v253, v6, 3, v7
s_cmp_eq_u32 s5, 0
s_cselect_b64 vcc, -1, 0
v_cndmask_b32 v248, v252, v253, vcc
s_and_b32 s74, s7, 3
s_cmp_eq_u32 s74, 0
s_cbranch_scc1 k_rot_done
k_rot:
s_mov_b32 s9, s66
s_mov_b32 s66, s67
s_mov_b32 s67, s68
s_mov_b32 s68, s69
s_mov_b32 s69, s9
s_sub_u32 s74, s74, 1
s_cmp_lg_u32 s74, 0
s_cbranch_scc1 k_rot
k_rot_done:
s_sub_u32 s69, s69, s68
s_sub_u32 s68, s68, s67
s_sub_u32 s67, s67, s66
s_and_b32 s74, s7, 3
v_add_u32 v248, s66, v248
v_add_u32 v252, s66, v252
v_add_u32 v249, s71, v248
v_add_u32 v250, s70, v248
v_add_u32 v251, s70, v249
""")
for r in range(A2, A2 + 40): a("v_mov_b32 v%d, 0" % r)
a("""
s_lshl_b32 s9, s6, 7
s_lshl_b32 s10, s8, 5
s_add_u32 s9, s9, s10
v_add_u32 v4, s9, v3
v_mul_u32_u24 v4, 2560, v4
s_mul_i32 s9, s5, 1280
s_mul_i32 s10, s7, 160
s_add_u32 s72, s9, s10
s_add_u32 s73, s72, 40960
v_and_b32 v5, 1, v2
v_lshlrev_b32 v5, 5, v5
v_lshrrev_b32 v6, 1, v2
v_lshl_add_u32 v5, v6, 4, v5
v_add_u32 v5, v5, v4
v_lshl_add_u32 v6, v2, 3, v4
v_mov_b32 v12, 1
""")
for P in range(4):
    a("s_add_u32 s9, s74, %d\ns_and_b32 s9, s9, 3\ns_mul_i32 s9, s9, 10240\ns_add_u32 s%d, s9, s15" % (P, 16 + 4 * P))
    for k in range(1, 4): a("s_add_u32 s%d, s%d, %d" % (16 + 4 * P + k, 16 + 4 * P, 2560 * k))
a("s_waitcnt lgkmcnt(0)\ns_cmp_ge_u32 s78, 1\ns_cbranch_scc1 k_zok")
glb_wait('dbg', "s77", "1", 254, vec=True)
a.label("k_zok")
a("s_waitcnt vmcnt(0)\ns_mov_b64 exec, 1\nbuffer_atomic_add v12, v15, s[44:47], s76 offen sc1\ns_mov_b64 exec, -1")
lds_wait0(F_WO, 254)
R2 = 16; RN2 = 8; D2 = 5
Q = LgkmQ(15)
its = [(P, c, t) for P in range(4) for c in range(5) for t in range(5)]
def w2read(m, hf):
    P, c, t = its[m]
    if c < 4:
        G, p = divmod(c, 2)
        reg = 248 + p * 2 + hf; off = G * 80 * 160 + 32 * t
    else:
        reg = 252; off = (80 * hf + 16) * 160 + 32 * t
    a("ds_read_b64_tr_b16 %s, v%d offset:%d" % (q2(R2 + (m % RN2) * 4 + 2 * hf), reg, off)); Q.push((m, hf))
for m in range(D2): w2read(m, 0); w2read(m, 1)
glb_wait('ws', "s76", "s79", 254, sleep=1)
Q.clear()
stamp(8)
VQ = LgkmQ(63)
VQ.push("atom")
def of(P, c, tau): return OF + ((P * 5 + c) * 2 + tau) * 4
olist = []
for P in range(4):
    for c in range(4):
        gg, p = divmod(c, 2)
        for tau in range(2): olist.append(("x4", of(P, c, tau), 16 + 4 * P + 2 * gg + tau, p * 1024, (P, c, tau)))
    for tau in range(2):
        for gg in range(2): olist.append(("x2", of(P, 4, tau) + 2 * gg, 16 + 4 * P + 2 * gg + tau, 2048, (P, 4, tau, gg)))
oi = [0]
def oload():
    if oi[0] >= len(olist): return
    k, r, so, off, tag = olist[oi[0]]; oi[0] += 1
    if k == "x4": a("buffer_load_dwordx4 %s, v8, s[44:47], s%d offen offset:%d sc1" % (q4(r), so, off))
    else: a("buffer_load_dwordx2 %s, v9, s[44:47], s%d offen offset:%d sc1" % (q2(r), so, off))
    VQ.push(tag)
for _ in range(NPRE): oload()
def acc2(t, tau): return A2 + (t * 2 + tau) * 4
for m in range(100):
    P, c, t = its[m]
    if t == 0:
        tg = (P, c, 1) if c < 4 else (P, 4, 1, 1)
        w = VQ.wait(tg)
        assert w is not None or tg not in [x[4] for x in olist[oi[0]:]]
        if w is not None: a("s_waitcnt vmcnt(%d)" % w)
    if m % 2 == 0:
        w = Q.wait((min(m + 1, 99), 1))
        if w is not None: a("s_waitcnt lgkmcnt(%d)" % w)
    for tau in range(2):
        d = acc2(t, tau)
        smf(d, R2 + (m % RN2) * 4, of(P, c, tau), q4(d))
        if m + D2 < 100: w2read(m + D2, tau)
        if tau == 1 and m % 2 == 1: oload()
    mm = m + D2
    if mm < 100:
        Pm, cm, tm = its[mm]
        if Pm < 3 and tm == 4:
            if cm == 2: a("v_add_u32 v248, s%d, v248\nv_add_u32 v249, s%d, v249" % (67 + Pm, 67 + Pm))
            if cm == 3: a("v_add_u32 v250, s%d, v250\nv_add_u32 v251, s%d, v251" % (67 + Pm, 67 + Pm))
            if cm == 4: a("v_add_u32 v252, s%d, v252" % (67 + Pm))
assert oi[0] == len(olist)
OP = 88
for tau in range(2):
    for t in range(5):
        cvt(OP + 12 * tau + 2 * t, acc2(t, tau)); cvt(OP + 12 * tau + 2 * t + 1, acc2(t, tau) + 2)
for tau in range(2):
    for p in range(2):
        a("v_permlane16_swap_b32 v%d, v%d" % (OP + 12 * tau + 4 * p, OP + 12 * tau + 4 * p + 2))
        a("v_permlane16_swap_b32 v%d, v%d" % (OP + 12 * tau + 4 * p + 1, OP + 12 * tau + 4 * p + 3))
if AV("delay", 0):
    a("""
    s_memtime s[84:85]
    s_waitcnt lgkmcnt(0)
    k_dl:
    s_sleep 2
    s_memtime s[86:87]
    s_waitcnt lgkmcnt(0)
    s_sub_u32 s86, s86, s84
    s_cmp_lt_u32 s86, %d
    s_cbranch_scc1 k_dl
    """ % AV("delay", 0))
if AV("rdelay", 0):
    a("""
    s_memrealtime s[84:85]
    s_waitcnt lgkmcnt(0)
    k_dl:
    s_sleep 2
    s_memrealtime s[86:87]
    s_waitcnt lgkmcnt(0)
    s_sub_u32 s86, s86, s84
    s_cmp_lt_u32 s86, %d
    s_cbranch_scc1 k_dl
    """ % AV("rdelay", 0))
OUTFL = " nt" if OPT("outnt") else (" sc1" if OPT("outsc1") else "")
for tau in range(2):
    for p in range(2):
        a("buffer_store_dwordx4 %s, v5, s[60:63], s%d offen offset:%d%s" % (q4(OP + 12 * tau + 4 * p), 72 + tau, 64 * p, OUTFL))
    a("buffer_store_dwordx2 %s, v6, s[60:63], s%d offen offset:128%s" % (q2(OP + 12 * tau + 8), 72 + tau, OUTFL))
stamp(9)
if OPT("diag"):
    a("""
    s_memtime s[84:85]
    s_memrealtime s[86:87]
    s_waitcnt lgkmcnt(0)
    s_sub_u32 s84, s84, s80
    s_sub_u32 s86, s86, s82
    s_cmp_lt_u32 s2, 8
    s_cbranch_scc0 k_nodiag
    s_cmp_eq_u32 s8, 0
    s_cbranch_scc0 k_nodiag
    v_mov_b32 v16, s84
    v_mov_b32 v17, s86
    s_lshl_b32 s9, s2, 3
    s_mov_b64 exec, 1
    buffer_store_dwordx2 v[16:17], v15, s[48:51], s9 offen
    k_nodiag:
    """)
stamp_store()
a("s_endpgm")

section("A")
a.label("k_A")
HT = [(5, 6, 7), (8, 9, 10), (11, 12), (13, 14)]
QOP = 16; KOP = 48; VOP = 96; SS = 128; EE = 192; POP = 208
for w in range(4):
    if w < 3: a("s_cmp_eq_u32 s8, %d\ns_cbranch_scc0 k_A%d" % (w, w + 1))
    halo = {j: HACC + 4 * i for i, j in enumerate(HT[w])}
    gemm_loop('A', A_XB, lambda j: j >= 10, AD, xoff=(16 + 32 * w) * 128, halo=halo)
    stamp(2)
    a("v_lshlrev_b32 v8, 4, v1\nv_lshlrev_b32 v9, 3, v1")
    for i, j in enumerate(HT[w]):
        cvt(16 + 2 * i, halo[j]); cvt(17 + 2 * i, halo[j] + 2)
    lds_wait(F_FREE, 4, "16", 248)
    for i, j in enumerate(HT[w]):
        if j < 9: a("ds_write_b64 v8, %s offset:%d" % (q2(16 + 2 * i), A_EXCH + (j - 5) * 1024))
        elif j == 9:
            for h in range(4): a("ds_write_b64 v8, %s offset:%d" % (q2(16 + 2 * i), A_EXCH + h * 1024 + 8))
        else: a("ds_write_b64 v9, %s offset:%d" % (q2(16 + 2 * i), A_EXCH + 4096 + (j - 10) * 512))
    a("v_mov_b32 v12, 1\ns_mov_b64 exec, 1\nds_add_u32 v0, v12 offset:%d\ns_mov_b64 exec, -1" % F_XR)
    if w < 3:
        a("s_branch k_Aep")
        a.label("k_A%d" % (w + 1))
a.label("k_Aep")
def packK(src, dst):
    for h in range(4):
        cvt(dst + 4 * h, src(h)); cvt(dst + 4 * h + 1, src(h) + 2)
        cvt(dst + 4 * h + 2, src(4)); cvt(dst + 4 * h + 3, src(4) + 2)
a("""
s_load_dword s78, s[32:33], s77
s_mul_i32 s9, s8, 6656
s_add_u32 s9, s9, %d
v_add_u32 v10, s9, v8
v_add_u32 v11, s9, v9
""" % A_EXCH)
packK(lambda t: acc(5 + t, 1), KOP + 32)
for t in range(5):
    cvt(VOP + 6 * t + 4, acc(10 + t, 1)); cvt(VOP + 6 * t + 5, acc(10 + t, 1) + 2)
a("s_cmp_eq_u32 s8, 3\ns_cbranch_scc1 k_A_nw")
for h in range(4): a("ds_write_b128 v10, %s offset:%d" % (q4(KOP + 32 + 4 * h), 6656 + h * 1024))
for t in range(5): a("ds_write_b64 v11, %s offset:%d" % (q2(VOP + 6 * t + 4), 6656 + 4096 + t * 512))
a("v_mov_b32 v12, 4\nds_write_b32 v14, v12 offset:%d" % (F_XR + 4 - F_FREE))
a.label("k_A_nw")
packK(lambda t: acc(5 + t, 0), KOP + 16)
for t in range(5):
    cvt(VOP + 6 * t + 2, acc(10 + t, 0)); cvt(VOP + 6 * t + 3, acc(10 + t, 0) + 2)
a("""
s_mov_b32 s66, 0xffff
s_mov_b32 s67, 0
s_mov_b32 s68, 0xffff0000
s_mov_b32 s69, 0
s_mov_b32 s70, 0
s_mov_b32 s71, 0xffff
s_mov_b32 s72, 0
s_mov_b32 s73, 0xffff0000
v_and_b32 v12, 1, v3
v_cmp_eq_u32 s[74:75], 1, v12
v_lshl_add_u32 v13, v2, 2, v12
v_cmp_ge_u32 s[100:101], v3, v13
v_add_u32 v13, 2, v13
v_cmp_ge_u32 vcc, v3, v13
""")
for tau in (1, 0):
    cvt(6, acc(4, tau)); cvt(7, acc(4, tau) + 2)
    for h in range(4):
        d = QOP + tau * 16 + 4 * h
        cvt(d, acc(h, tau)); cvt(d + 1, acc(h, tau) + 2)
        a("v_cndmask_b32 v%d, 0, v6, s[%d:%d]" % (d + 2, 66 + 2 * h, 67 + 2 * h))
        a("v_cndmask_b32 v%d, 0, v7, s[%d:%d]" % (d + 3, 66 + 2 * h, 67 + 2 * h))
def S(tau, h, p): return SS + ((tau * 4 + h) * 2 + p) * 4
for h in range(4):
    smf(S(1, h, 1), KOP + 32 + 4 * h, QOP + 16 + 4 * h, "0")
    smf(S(1, h, 0), KOP + 16 + 4 * h, QOP + 16 + 4 * h, "0")
for h in range(4): smf(S(0, h, 1), KOP + 16 + 4 * h, QOP + 4 * h, "0")
a("""
v_mov_b32 v12, 0x0c0c0100
v_mov_b32 v13, 0x01000c0c
v_cndmask_b32 v12, v12, v13, s[74:75]
v_mov_b32 v13, 0x0c0c0302
v_mov_b32 v6, 0x03020c0c
v_cndmask_b32 v13, v13, v6, s[74:75]
v_mov_b32 v6, 0x0c0c0c0c
v_cndmask_b32 v240, v12, v6, s[100:101]
v_cndmask_b32 v241, v13, v6, vcc
v_cndmask_b32 v242, v6, v12, s[100:101]
v_cndmask_b32 v243, v6, v13, vcc
s_or_b32 s9, s6, s8
s_cmp_eq_u32 s9, 0
s_cselect_b32 s9, 0xf149f2ca, 0
v_mov_b32 v244, s9
v_mov_b32 v245, s9
v_mov_b32 v246, s9
v_mov_b32 v247, s9
s_mov_b32 s64, 0x%08x
""" % f2u(0.22360679774997896 * 1.4426950408889634))
o_addr("s8")
lds_wait(F_XR - F_FREE, 1, "4", 248, vz="v14")
for h in range(4): a("ds_read_b128 %s, v10 offset:%d" % (q4(KOP + 4 * h), h * 1024))
for t in range(5): a("ds_read_b64 %s, v11 offset:%d" % (q2(VOP + 6 * t), 4096 + t * 512))
a("s_waitcnt lgkmcnt(5)")
for h in range(4): smf(S(0, h, 0), KOP + 4 * h, QOP + 4 * h, "v[244:247]")
def attn_tau(tau):
    o = Asm()
    E = EE + tau * 8; t0, t1, t2, t3 = (248, 249, 250, 251) if tau else (252, 253, 254, 255)
    for h in range(4):
        for i in range(2):
            cu = S(tau, h, 1) + 2 * i; prv = S(tau, h, 0) + 2 * i
            x, y = (t0, t1) if i == 0 else (t2, t3)
            o("v_cndmask_b32 v%d, v%d, v%d, s[74:75]" % (x, cu, cu + 1))
            o("v_cndmask_b32 v%d, v%d, v%d, s[74:75]" % (y, prv, prv + 1))
        for i in range(2):
            x, y = (t0, t1) if i == 0 else (t2, t3)
            o("v_cndmask_b32 v%d, v%d, v%d, %s" % (E + i * 4 + h, y, x, "s[100:101]" if i == 0 else "vcc"))
    for b in (E, E + 4):
        o("v_permlane32_swap_b32 v%d, v%d" % (b, b + 2)); o("v_permlane32_swap_b32 v%d, v%d" % (b + 1, b + 3))
    for b in (E, E + 4):
        o("v_permlane16_swap_b32 v%d, v%d" % (b, b + 1)); o("v_permlane16_swap_b32 v%d, v%d" % (b + 2, b + 3))
    o("v_max3_f32 v%d, v%d, v%d, v%d" % (t0, E, E + 1, E + 2))
    o("v_max3_f32 v%d, v%d, v%d, v%d" % (t1, E + 4, E + 5, E + 3))
    o("v_max3_f32 v%d, v%d, v%d, v%d" % (t0, t0, E + 6, E + 7))
    o("v_max_f32 v%d, v%d, v%d" % (t0, t0, t1))
    o("v_mul_f32 v%d, s64, v%d" % (t0, t0))
    for i in range(8): o("v_fma_f32 v%d, v%d, s64, -v%d" % (E + i, E + i, t0))
    for i in range(8): o("v_exp_f32 v%d, v%d" % (E + i, E + i))
    o("v_add_f32 v%d, v%d, v%d" % (t0, E, E + 1)); o("v_add_f32 v%d, v%d, v%d" % (t1, E + 2, E + 3))
    o("v_add_f32 v%d, v%d, v%d" % (t2, E + 4, E + 5)); o("v_add_f32 v%d, v%d, v%d" % (t3, E + 6, E + 7))
    o("v_add_f32 v%d, v%d, v%d" % (t0, t0, t1)); o("v_add_f32 v%d, v%d, v%d" % (t2, t2, t3))
    o("v_add_f32 v%d, v%d, v%d" % (t0, t0, t2)); o("v_rcp_f32 v%d, v%d" % (t0, t0))
    for i in range(8): o("v_mul_f32 v%d, v%d, v%d" % (E + i, E + i, t0))
    for j in range(4): o("v_cvt_pk_bf16_f32 v%d, v%d, v%d" % (E + j, E + j, E + 4 + j))
    o("v_permlane32_swap_b32 v%d, v%d" % (E, E + 2)); o("v_permlane32_swap_b32 v%d, v%d" % (E + 1, E + 3))
    o("v_permlane16_swap_b32 v%d, v%d" % (E, E + 1)); o("v_permlane16_swap_b32 v%d, v%d" % (E + 2, E + 3))
    P = POP + tau * 16
    for h in range(4):
        for j in range(4): o("v_perm_b32 v%d, v%d, v%d, v%d" % (P + 4 * h + j, E + h, E + h, 240 + j))
    for h in range(4):
        smf(S(tau, h, 0), VOP + 6 * h + 2 * tau, P + 4 * h, "0", o)
        smf(S(tau, h, 1), VOP + 24 + 2 * tau, P + 4 * h, "0", o)
    return o
a("s_waitcnt lgkmcnt(0)")
merge([attn_tau(1), attn_tau(0)])
OA = 208
for tau in (1, 0):
    for h in range(4):
        cvt(OA + 12 * tau + 2 * h, S(tau, h, 0)); cvt(OA + 12 * tau + 2 * h + 1, S(tau, h, 0) + 2)
for h in range(4):
    a("s_mov_b64 exec, s[%d:%d]" % (66 + 2 * h, 67 + 2 * h))
    for tau in range(2):
        cvt(OA + 12 * tau + 8, S(tau, h, 1)); cvt(OA + 12 * tau + 9, S(tau, h, 1) + 2)
a("s_mov_b64 exec, -1")
o_store("s12", OA); o_store("s13", OA + 12)
a("s_mov_b32 s66, %d\ns_mov_b32 s67, %d\ns_mov_b32 s68, %d\ns_mov_b32 s69, %d\ns_mov_b32 s70, %d\ns_mov_b32 s71, %d\ns_mov_b32 s79, 8" %
  (A_WO[0], A_WO[1], A_WO[2], A_WO[3], 40 * 160, 20 * 160))
a("s_branch k_P2")

section("help")
a.label("k_h567")
srd_rest()
a("""
v_mov_b32 v16, 0
v_mov_b32 v17, 0
v_mov_b32 v18, 0
v_mov_b32 v19, 0
v_mov_b32 v20, 1
v_lshlrev_b32 v8, 4, v1
""")
if OPT("pfcode"):
    a("""
    s_cmp_eq_u32 s8, 6
    s_cbranch_scc0 k_nopc
    s_getpc_b64 s[10:11]
    k_pcref:
    s_add_u32 s10, s10, k_pf_start-k_pcref
    s_addc_u32 s11, s11, -1
    s_lshl_b32 s9, s4, 10
    s_add_u32 s10, s10, s9
    s_addc_u32 s11, s11, 0
    v_add_co_u32 v22, vcc, s10, v8
    v_mov_b32 v23, s11
    v_addc_co_u32 v23, vcc, 0, v23, vcc
    global_load_dwordx4 v[24:27], v[22:23], off
    k_nopc:
    """)
if not OPT("nopfwo"):
    a("""
    s_sub_u32 s9, s8, 6
    s_mul_i32 s9, s9, 10
    s_mul_i32 s10, s4, 20
    s_add_u32 s9, s9, s10
    s_mul_i32 s9, s9, 1280
    s_lshr_b32 s10, s7, 2
    s_mul_i32 s10, s10, 640
    s_add_u32 s9, s9, s10
    s_mov_b32 s66, -1
    s_mov_b32 s67, 0xff
    s_mov_b64 exec, s[66:67]
    """)
    for i in range(10):
        a("buffer_load_dwordx4 v[24:27], v8, s[56:59], s9 offen%s\ns_add_u32 s9, s9, 1280" % NT)
    a("s_mov_b64 exec, -1\nk_nopf:")
a("""
s_cmp_eq_u32 s5, 0
s_cbranch_scc0 k_noz
s_cmp_eq_u32 s8, 7
s_cbranch_scc0 k_end
s_cmp_lt_u32 s7, 3
s_cbranch_scc0 k_end
""")
a("""
s_cmp_eq_u32 s7, 2
s_cselect_b32 s9, s6, 0
s_cmp_ge_u32 s9, 8
s_cbranch_scc1 k_end
""")
lds_wait0(F_FULL + 4 * AV("zat", 3), 248, sleep=4)
a("""
s_lshl_b32 s75, s7, 4
s_add_u32 s75, s75, s6
s_lshl_b32 s74, s75, 10
s_add_u32 s74, s74, %d
s_lshl_b32 s75, s75, 2
s_add_u32 s75, s75, %d
v_lshlrev_b32 v9, 8, v1
s_mov_b64 exec, 15
buffer_store_dword v16, v9, s[44:47], s74 offen sc1
s_mov_b64 exec, 1
s_waitcnt vmcnt(0)
buffer_store_dword v20, v15, s[48:51], s75 offen sc1
s_endpgm
k_noz:
""" % (CNT, DG_O))
a("""
s_cmp_eq_u32 s8, 6
s_cbranch_scc1 k_h67Bz
""")
a("s_mov_b32 s66, -1\ns_mov_b32 s67, 0xff\ns_mov_b64 exec, s[66:67]\nv_add_u32 v9, %d, v8\nds_write_b128 v9, v[16:19]\ns_mov_b64 exec, -1" % ZERO)
a.label("k_h67Bz")
a("s_waitcnt vmcnt(%d) lgkmcnt(0)\ns_lshl_b32 s9, s8, 2\nv_add_u32 v9, s9, v0" % (0 if OPT("nopfwo") else 10))
a("v_mov_b32 v12, 0x7ffffff0\nds_write_b32 v9, v12 offset:%d" % (F_AUX - 24))
def hsetup(wphi=True):
    srd_rest(False)
    a("""
    s_sub_u32 s16, s8, 4
    v_mul_u32_u24 v8, 26, v1
    v_lshrrev_b32 v8, 8, v8
    v_mul_u32_u24 v9, 10, v8
    v_sub_u32 v9, v1, v9
    v_lshlrev_b32 v9, 4, v9
    v_mov_b32 v7, 0x7fffff00
    s_mov_b32 s66, -1
    s_mov_b32 s67, 0x0fffffff
    s_mov_b32 s68, -1
    s_mov_b32 s69, 0xff
    s_mul_i32 s70, s7, 160
    s_lshl_b32 s9, s16, 2
    v_add_u32 v14, s9, v0
    """)
    wo_setup()
    if wphi: wphi_load()
    img_addr("s16", 1)
    lane_parts()
    a("""
    s_add_u32 s22, s6, 16
    s_lshl_b32 s21, s22, 2
    s_add_u32 s21, s21, s16
    s_lshl_b32 s21, s21, 8
    s_add_u32 s21, s21, %d
    s_lshl_b32 s22, s22, 2
    s_add_u32 s22, s22, %d
    s_lshl_b32 s18, s7, 2
    s_add_u32 s18, s18, s16
    s_lshl_b32 s17, s18, 15
    s_add_u32 s17, s17, %d
    s_lshl_b32 s18, s18, 8
    s_add_u32 s18, s18, %d
    s_lshl_b32 s19, s7, 2
    s_add_u32 s19, s19, %d
    s_mul_i32 s20, s16, 80
    s_add_u32 s20, s20, %d
    v_mul_u32_u24 v4, %d, v10
    v_lshl_add_u32 v4, v9, 3, v4
    v_add_u32 v5, %d, v4
    v_add_u32 v4, s20, v4
    s_mul_i32 s9, s16, 48
    v_add_u32 v5, s9, v5
    v_mul_u32_u24 v6, %d, v3
    v_lshl_add_u32 v6, v2, 3, v6
    v_add_u32 v6, s20, v6
    """ % (CNT, DG_O, PART, CNT + 128 * 256, DG_K, IMG, IMG_RS, IMG + IMG_V, IMG_RS))
    def unit_addr(dst, ureg, clamp):
        if clamp: a("v_min_u32 v%d, 104, v%d" % (ureg, ureg))
        a("""
        v_mul_u32_u24 v8, 205, v%d
        v_lshrrev_b32 v8, 10, v8
        v_min_u32 v8, 22, v8
        v_mul_u32_u24 v9, 5, v8
        v_sub_u32 v9, v%d, v9
        v_min_u32 v9, 4, v9
        v_mul_u32_u24 v%d, %d, v8
        v_lshl_add_u32 v%d, v9, 4, v%d
        v_add_u32 v%d, s20, v%d
        """ % (ureg, ureg, dst, IMG_RS, dst, dst, dst, dst))
    a("v_mov_b32 v10, v1"); unit_addr(236, 10, True)
    a("v_add_u32 v10, 64, v1"); unit_addr(237, 10, True)
    for k in range(4):
        a("v_lshrrev_b32 v10, 1, v2\nv_lshl_add_u32 v10, v10, 4, v3\nv_add_u32 v10, %d, v10" % (32 * k))
        unit_addr(70 + k, 10, False)
        a("v_and_b32 v10, 1, v2\nv_lshl_add_u32 v%d, v10, 3, v%d" % (70 + k, 70 + k))
    a("""
    v_and_b32 v8, 1, v3
    v_mov_b32 v9, 0x3f80
    v_mov_b32 v10, 0x3f800000
    v_cmp_eq_u32 vcc, 1, v8
    v_cndmask_b32 v9, v9, v10, vcc
    v_lshrrev_b32 v8, 1, v3
    """)
    for hi in range(2):
        for r in range(4):
            a("v_lshl_add_u32 v10, v2, 2, %d\nv_cmp_eq_u32 vcc, v10, v8\nv_cndmask_b32 v%d, v15, v9, vcc" % (r - 8 * hi, 240 + 4 * hi + r))
    kv_addr(64)

hsetup()
a("s_cmp_eq_u32 s8, 6\ns_cbranch_scc1 k_hB2")
lds_wait0(F_FULL + 56, 248, sleep=8)
a("s_load_dword s9, s[32:33], s19\ns_load_dword s10, s[32:33], s22\ns_waitcnt lgkmcnt(0)\ns_and_b32 s9, s9, s10\ns_cmp_ge_u32 s9, 1\ns_cbranch_scc1 k_hB2")
glb_wait('dbg', "s19", "1", 12, vec=True)
glb_wait('dbg', "s22", "1", 12, vec=True)
a.label("k_hB2")
set_l2e()
lds_wait(F_HX, 1, "1", 248, vz="v14")
stamp(1)
for m in range(3): a("ds_read_b128 %s, v13 offset:%d" % (q4(36 + 4 * m), 1024 * m))
a("s_waitcnt lgkmcnt(0)")
pmf(128, 36)
softmax2(128, 36, 148, 248, phi_wr)
a("v_mov_b32 v12, 1\nds_write_b32 v14, v12 offset:%d" % (F_XR + 16))
lds_wait(F_XR, 8, "1", 248)
stamp(3)
KA = 128
for kap in range(4):
    base = 152 + kap * 20
    for ft in range(3):
        for hf in range(2): a("ds_read_b64_tr_b16 %s, v4 offset:%d" % (q2(base + 4 * ft + 2 * hf), (32 * kap + 8 * hf) * IMG_RS + ft * 32))
    for dt in range(2):
        for hf in range(2): a("ds_read_b64_tr_b16 %s, v5 offset:%d" % (q2(base + 12 + 4 * dt + 2 * hf), (32 * kap + 8 * hf) * IMG_RS + dt * 32))
    if kap >= 1:
        a("s_waitcnt lgkmcnt(10)")
        pb = base - 20
        for ft in range(3):
            for dt in range(2):
                d = KA + (ft * 2 + dt) * 4
                smf(d, pb + 4 * ft, pb + 12 + 4 * dt, "0" if kap == 1 else q4(d))
a("s_waitcnt lgkmcnt(0)\nv_mov_b32 v12, 1\nds_write_b32 v14, v12 offset:%d" % F_KVD)
for ft in range(3):
    for dt in range(2):
        d = KA + (ft * 2 + dt) * 4
        smf(d, 212 + 4 * ft, 212 + 12 + 4 * dt, q4(d))
a("s_lshl_b32 s9, s6, 11\ns_add_u32 s9, s9, s17\ns_mov_b32 s100, 0x001f001f\ns_mov_b32 s101, 0x001f001f\nv_lshlrev_b32 v8, 4, v1")
for i in range(12): cvt(36 + i, KA + 2 * i)
for ft, dt in ((0, 0), (1, 0), (0, 1), (1, 1), (2, 1), (2, 0)):
    if (ft, dt) == (0, 1): a("s_mov_b64 exec, s[100:101]")
    if (ft, dt) == (2, 1): a("s_mov_b32 exec_hi, 0")
    if (ft, dt) == (2, 0): a("s_mov_b32 exec_lo, -1")
    a("ds_write_b64 v6, %s offset:%d" % (q2(36 + (ft * 2 + dt) * 2), dt * 16 * IMG_RS + ft * 32))
a("s_mov_b64 exec, -1")
a("ds_read_b128 v[48:51], v236\nds_read_b128 v[52:55], v237\ns_waitcnt lgkmcnt(1)")
a("buffer_store_dwordx4 v[48:51], v8, s[44:47], s9 offen sc1\ns_waitcnt lgkmcnt(0)")
a("buffer_store_dwordx4 v[52:55], v8, s[44:47], s9 offen offset:1024 sc1")
lds_wait(F_HX, 1, "2", 248, vz="v14")
for m in range(3): a("ds_read_b128 %s, v13 offset:%d" % (q4(36 + 4 * m), 1024 * m))
a("v_mov_b32 v12, 1\ns_waitcnt lgkmcnt(0)")
pmf(128, 36)
a("s_mov_b64 exec, 1\ns_waitcnt vmcnt(0)")
stamp(4)
a("buffer_atomic_add v12, v15, s[44:47], s18 offen sc1\ns_mov_b64 exec, -1")
a("s_cmp_eq_u32 s8, 4\ns_cbranch_scc0 k_nowo")
lds_wait(F_FREE, 4, "20", 248)
wo_phase(1, B_WO[1]); wo_phase(2, B_WO[2])
lds_wait(F_KVD, 4, "1", 248)
wo_phase(3, B_WO[3])
wo_done()
a.label("k_nowo")
softmax2(128, PHQ, 148, 248)
glb_wait('ws', "s18", "16", 12)
stamp(5)
a("s_mov_b32 s10, s6")
LB = 16
bufs = [128 + 8 * i for i in range(13)] + [16, 24, 32]
for i in range(16):
    a("s_lshl_b32 s9, s10, 11\ns_add_u32 s9, s9, s17\ns_add_u32 s10, s10, 1\ns_and_b32 s10, s10, 15")
    a("buffer_load_dwordx4 %s, v8, s[44:47], s9 offen sc1" % q4(bufs[i]))
    a("buffer_load_dwordx4 %s, v8, s[44:47], s9 offen offset:1024 sc1" % q4(bufs[i] + 4))
o_addr("s16")
SA = 40
for i in range(16):
    a("s_waitcnt vmcnt(%d)" % (30 - 2 * i))
    for k in range(4):
        smf(SA + 4 * k, 240 + 4 * (k & 1), bufs[i] + 4 * (k >> 1), "0" if i == 0 else q4(SA + 4 * k))
for k in range(4):
    cvt(56 + 2 * k, SA + 4 * k); cvt(57 + 2 * k, SA + 4 * k + 2)
for k in range(4): a("ds_write_b64 v%d, %s" % (70 + k, q2(56 + 2 * k)))
a("v_mov_b32 v12, 1\nds_write_b32 v14, v12 offset:%d" % F_KVR)
stamp(6)
lds_wait(F_KVR, 4, "1", 248)
o_compute(16, 128)
o_store("s13", OPK)
a("v_mov_b32 v12, 1\ns_mov_b64 exec, 1\ns_waitcnt vmcnt(0)\nbuffer_atomic_add v12, v15, s[44:47], s21 offen sc1")
stamp(7)
stamp_store()
a.label("k_end")
a("s_endpgm")

fin = Asm()
hdr = open("cdna_kernels/%s.s.ref" % NAME).read().split("; Override launch")[0]
fin.raw(hdr.rstrip())
fin.raw("; @launch grid=(256,1,1) block=(512,1,1) lds=163840")
fin.raw('.amdgcn_target "amdgcn-amd-amdhsa--gfx950"')
fin.raw(".text")
fin.raw(".set WPHI_ADDR, %d" % WPHI)
section("hs"); hsetup(False)
section("wp"); wphi_load()
for it in secs["entry"].items:
    if it == "@@HSETUP@@": fin.items += secs["hs"].items
    elif it == "@@WPHI@@": fin.items += secs["wp"].items
    else: fin.items.append(it)
fin.raw("k_pf_start:")
for n in ("setup", "A", "help"): fin.items += secs[n].items
fin.raw('.section .rodata,"a"')
fin.raw(""".p2align 6
.amdhsa_kernel %s
  .amdhsa_next_free_vgpr 256
  .amdhsa_next_free_sgpr 102
  .amdhsa_accum_offset 256
  .amdhsa_group_segment_fixed_size 0
  .amdhsa_kernarg_size 80
  .amdhsa_user_sgpr_count 2
  .amdhsa_user_sgpr_kernarg_segment_ptr 1
  .amdhsa_system_sgpr_workgroup_id_x 1
.end_amdhsa_kernel""" % KN)
out = [x for x in sys.argv[1:] if not x.startswith("--")][0]
open(out, "w").write(fin.finish())
```

```python
import sys, struct
from asmlib import Asm, LgkmQ, Ins

NAME = "concat_heads__sliding_local_dilated__linear_kernel_hedgehog__prompt"
KN = NAME + "_kernel"
OPT = lambda o: ("--" + o) in sys.argv
AV = lambda n, d: int([x for x in sys.argv if x.startswith("--%s=" % n)][0].split("=")[1]) if any(x.startswith("--%s=" % n) for x in sys.argv) else d
STAMP = OPT("stamp"); NT = " nt" if OPT("nt") else ""
NSHA = AV("nsha", 0); NSHB = AV("nshb", 0); NPRE = AV("npre", 16); PRE_AT = AV("preat", 4); LSLP = AV("lslp", 0); CSLP = AV("cslp", 0)
def f2u(x): return struct.unpack("<I", struct.pack("<f", x))[0]

FLG = 163584
F_FREE = 16
F_AUX = 32
F_XR = 48
F_HX = 80
F_KVR = 96
F_KVD = 112
F_FULL = 128
F_WO = 216
A_SLOT = 49152; A_XB = 18432; SEC = 10240
A_EXCH = 49152
A_WO = [75776, 101376, 126976, 0]
B_S1 = 47104; B_XB = 16384
IMG = 90112; IMG_RS = 544; IMG_V = 320
WPHI = 159744; ZERO = 162944
B_WO = [51200, 0, 25600, 102624]
B_HX = 76800
B_HQ = 0
O_BR = 64 * 40960
PART = 8 << 20
CNT = 9 << 20
STAMP_OFF = 16 << 20
WS_BYTES = 268435456
SPIN = 0x100000
DG_O = 64; DG_K = 192

class Sec(Asm): pass
cur = [None]
def a(s): cur[0](s)
class _A:
    def __call__(self, s): cur[0](s)
    def raw(self, s): cur[0].raw(s)
    def label(self, s): cur[0].label(s)
    @property
    def items(self): return cur[0].items
a = _A()
secs = {}
def section(n):
    secs[n] = Asm(); cur[0] = secs[n]

def q4(r): return "v[%d:%d]" % (r, r + 3)
def q2(r): return "v[%d:%d]" % (r, r + 1)
def srd(n, lo, nbytes):
    a("s_mov_b32 s%d, s%d\ns_mov_b32 s%d, s%d\ns_mov_b32 s%d, %d\ns_mov_b32 s%d, 0x20000" % (n, lo, n + 1, lo + 1, n + 2, nbytes, n + 3))
def stamp(i):
    if STAMP: a("s_memtime s[%d:%d]" % (80 + 2 * i, 81 + 2 * i))
def stamp_store():
    if not STAMP: return
    a("s_waitcnt lgkmcnt(0)")
    for i in range(1, 10): a("s_sub_u32 s%d, s%d, s80" % (80 + 2 * i, 80 + 2 * i))
    a("s_mov_b64 exec, 1")
    for i in range(10): a("v_mov_b32 v%d, s%d" % (100 + i, 80 + 2 * i))
    a("v_mov_b32 v110, 0\nv_mov_b32 v111, 0")
    a("s_lshl_b32 s9, s2, 3\ns_add_u32 s9, s9, s8\ns_lshl_b32 s9, s9, 6\ns_add_u32 s9, s9, %d" % STAMP_OFF)
    a("v_mov_b32 v112, 0")
    a("buffer_store_dwordx4 v[100:103], v112, s[44:47], s9 offen")
    a("buffer_store_dwordx4 v[104:107], v112, s[44:47], s9 offen offset:16")
    a("buffer_store_dwordx4 v[108:111], v112, s[44:47], s9 offen offset:32")
uid = [0]
def L(p):
    uid[0] += 1; return "%s_%d" % (p, uid[0])
def cvt(d, s, o=None): (o or a)("v_cvt_pk_bf16_f32 v%d, v%d, v%d" % (d, s, s + 1))
def smf(d, A, B, C, o=None): (o or a)("v_mfma_f32_16x16x32_bf16 %s, %s, %s, %s" % (q4(d), q4(A), q4(B), C))
def merge(streams):
    its = [list(s.items) for s in streams]
    while any(its):
        for it in its:
            if it: a.items.append(it.pop(0))
def spin_tail(top, ok, sleep, bound):
    if sleep: a("s_sleep %d" % sleep)
    a("s_add_u32 s14, s14, 1\ns_cmp_lt_u32 s14, %d\ns_cbranch_scc1 %s" % (bound, top))
    a.label(ok)
def lds_wait(off, nwords, thr, vt, vz="v0", sleep=1):
    top = L("lw"); ok = L("lwok")
    a("s_mov_b32 s14, 0")
    a.label(top)
    if nwords == 1: a("ds_read_b32 v%d, %s offset:%d" % (vt, vz, off))
    elif nwords == 2: a("ds_read_b64 %s, %s offset:%d" % (q2(vt), vz, off))
    else: a("ds_read_b128 %s, %s offset:%d" % (q4(vt), vz, off))
    if nwords == 8: a("ds_read_b128 %s, %s offset:%d" % (q4(vt + 4), vz, off + 16))
    a("s_waitcnt lgkmcnt(0)")
    if nwords == 2: a("v_min_u32 v%d, v%d, v%d" % (vt, vt, vt + 1))
    if nwords == 4: a("v_min3_u32 v%d, v%d, v%d, v%d\nv_min_u32 v%d, v%d, v%d" % (vt, vt, vt + 1, vt + 2, vt, vt, vt + 3))
    if nwords == 8:
        a("v_min3_u32 v%d, v%d, v%d, v%d\nv_min3_u32 v%d, v%d, v%d, v%d" % (vt, vt, vt + 1, vt + 2, vt + 3, vt + 3, vt + 4, vt + 5))
        a("v_min3_u32 v%d, v%d, v%d, v%d\nv_min_u32 v%d, v%d, v%d" % (vt, vt, vt + 6, vt + 7, vt, vt, vt + 3))
    a("v_readfirstlane_b32 s9, v%d\ns_cmp_ge_u32 s9, %s\ns_cbranch_scc1 %s" % (vt, thr, ok))
    spin_tail(top, ok, sleep, SPIN)
def lds_wait0(off, vt, vz="v0", sleep=1):
    top = L("lz"); ok = L("lzok")
    a("s_mov_b32 s14, 0")
    a.label(top)
    a("ds_read_b32 v%d, %s offset:%d\ns_waitcnt lgkmcnt(0)\nv_readfirstlane_b32 s9, v%d\ns_cmp_eq_u32 s9, 0\ns_cbranch_scc1 %s" % (vt, vz, off, vt, ok))
    spin_tail(top, ok, sleep, SPIN)
def glb_wait(which, soff, thr, vt, sleep=1, vec=False):
    top = L("gw"); ok = L("gwok")
    a("s_mov_b32 s14, 0")
    a.label(top)
    if vec:
        a("buffer_load_dword v%d, v15, %s, %s offen sc1" % (vt, "s[44:47]" if which == 'ws' else "s[48:51]", soff))
        a("s_waitcnt vmcnt(0)\nv_readfirstlane_b32 s9, v%d" % vt)
    else:
        a("s_load_dword s9, %s, %s glc\ns_waitcnt lgkmcnt(0)" % ("s[34:35]" if which == 'ws' else "s[32:33]", soff))
    a("s_cmp_ge_u32 s9, %s\ns_cbranch_scc1 %s" % (thr, ok))
    spin_tail(top, ok, sleep, SPIN // 16)
def srd_xw():
    a("""
    s_mov_b32 s38, 2621440
    s_mov_b32 s39, 0x20000
    s_mov_b32 s42, 2457600
    s_mov_b32 s43, 0x20000
    s_cmp_eq_u32 s5, 0
    s_waitcnt lgkmcnt(0)
    s_cselect_b32 s36, s16, s22
    s_cselect_b32 s37, s17, s23
    s_cselect_b32 s40, s18, s24
    s_cselect_b32 s41, s19, s25
    """)
def srd_rest(wait=True):
    if wait: a("s_waitcnt lgkmcnt(0)")
    a("""
    s_cmp_eq_u32 s5, 0
    s_cselect_b32 s56, s20, s28
    s_cselect_b32 s57, s21, s29
    s_mov_b32 s58, 819200
    s_mov_b32 s59, 0x20000
    """)
    srd(44, 34, WS_BYTES); srd(48, 32, 256); srd(52, 26, 25600); srd(60, 30, 2048 * 2560)
def lane_parts():
    a("""
    v_bfe_u32 v8, v1, 2, 2
    v_and_b32 v9, 3, v1
    v_lshrrev_b32 v10, 1, v2
    v_lshlrev_b32 v10, 4, v10
    v_and_b32 v11, 1, v2
    v_lshl_add_u32 v10, v11, 2, v10
    v_add_u32 v10, v10, v8
    """)
AD = (A_SLOT, A_SLOT, -2 * A_SLOT); BD = (B_S1, B_S1, -2 * B_S1)

section("entry")
a.raw(".globl %s\n.p2align 8\n.type %s,@function" % (KN, KN))
a.label(KN)
a("s_cmp_ge_u32 s2, 256\ns_cbranch_scc1 k_end")
a("s_load_dwordx16 s[16:31], s[0:1], 0\ns_load_dwordx4 s[32:35], s[0:1], 64")
if STAMP:
    for i in range(10): a("s_mov_b64 s[%d:%d], 0" % (80 + 2 * i, 81 + 2 * i))
if OPT("diag"): a("s_memtime s[80:81]\ns_memrealtime s[82:83]")
stamp(0)
a("""
v_lshrrev_b32 v4, 6, v0
v_and_b32 v1, 63, v0
v_readfirstlane_b32 s8, v4
s_and_b32 s3, s2, 7
s_lshr_b32 s5, s3, 2
s_lshr_b32 s4, s2, 3
s_and_b32 s6, s3, 1
s_lshl_b32 s6, s6, 3
s_and_b32 s9, s4, 7
s_add_u32 s6, s6, s9
s_bfe_u32 s7, s3, 0x10001
s_lshl_b32 s7, s7, 2
s_lshr_b32 s10, s4, 3
s_add_u32 s7, s7, s10
v_lshrrev_b32 v2, 4, v1
v_and_b32 v3, 15, v1
v_mov_b32 v15, 0
v_mov_b32 v0, %d
s_and_b32 s11, s8, 6
s_cmp_eq_u32 s11, 4
s_cbranch_scc1 k_ld
s_cmp_eq_u32 s8, 6
s_cselect_b32 s11, s5, 0
s_cmp_eq_u32 s11, 1
s_cbranch_scc0 k_nost
v_lshlrev_b32 v8, 4, v1
s_mul_i32 s9, s7, 3200
s_mov_b32 s54, 25600
s_mov_b32 s55, 0x20000
s_mov_b32 m0, WPHI_ADDR
s_waitcnt lgkmcnt(0)
s_mov_b32 s52, s26
s_mov_b32 s53, s27
buffer_load_dwordx4 v8, s[52:55], s9 offen lds
buffer_load_dwordx4 v8, s[52:55], s9 offen offset:1024 lds
buffer_load_dwordx4 v8, s[52:55], s9 offen offset:2048 lds
s_mov_b64 exec, 0xff
buffer_load_dwordx4 v8, s[52:55], s9 offen offset:3072 lds
s_mov_b64 exec, -1
k_nost:
s_barrier
s_branch k_notld
k_ld:
s_lshl_b32 s10, s10, 1
s_add_u32 s12, s9, s10
s_cmp_ge_u32 s12, 10
s_cselect_b32 s9, 10, 0
s_sub_u32 s12, s12, s9
v_lshrrev_b32 v8, 3, v1
v_mul_u32_u24 v8, 1280, v8
v_and_b32 v9, 7, v1
v_xor_b32 v9, v9, v2
v_lshl_add_u32 v24, v9, 4, v8
v_xor_b32 v25, 64, v24
v_add_u32 v25, 9216, v25
v_add_u32 v26, 18432, v24
v_add_u32 v27, 18432, v25
v_mul_u32_u24 v8, 26, v1
v_lshrrev_b32 v8, 8, v8
v_mul_u32_u24 v9, 10, v8
v_sub_u32 v9, v1, v9
v_lshlrev_b32 v9, 4, v9
v_mul_u32_u24 v32, 3840, v8
v_add_u32 v32, v32, v9
v_add_u32 v33, %d, v32
v_add_u32 v34, %d, v32
v_add_u32 v35, %d, v32
s_cmp_eq_u32 s5, 0
s_cselect_b32 s9, 0x7ffffff0, 0
v_mov_b32 v4, s9
v_lshrrev_b32 v5, 1, v1
v_cmp_eq_u32 vcc, 4, v5
v_cndmask_b32 v6, v15, v4, vcc
s_mov_b32 s10, 0
s_mov_b32 s11, 0x4fffff
v_cndmask_b32 v6, v6, 1, s[10:11]
v_lshl_add_u32 v4, v1, 2, v0
s_and_b32 s10, s8, 1
s_cbranch_scc1 k_noinit
ds_write_b32 v4, v6
k_noinit:
s_mul_i32 s73, s10, 5120
s_mul_i32 s75, s10, 122880
s_mul_i32 s64, s6, 163840
s_sub_u32 s65, s64, 20480
s_cmp_eq_u32 s6, 0
s_cselect_b32 s65, 0, s65
s_mov_b32 s66, -1
s_mov_b32 s67, 0x0fffffff
s_mov_b32 s68, -1
s_mov_b32 s69, 0xff
s_mul_i32 s70, s7, 160
s_add_u32 s75, s75, s70
s_lshl_b32 s77, s10, 2
s_add_u32 s77, s77, %d
v_mov_b32 v7, 0x7fffff00
""" % (FLG, 2 * 15360 - 640, 15360 - 1280, 3 * 15360 - 1920, FLG + F_FULL))
srd_xw()
a("s_barrier")
srd(48, 32, 256)
stamp(8)
def issue_x(xs, halo):
    so = None; m0 = None
    for i in xs:
        if halo: base, k, j = ("s65", 0, i) if i < 2 else ("s64", (i - 2) // 4 * 4, (i - 2) % 4)
        else: base, k, j = "s64", i // 4 * 4, i % 4
        if m0 != i - j: a("s_add_u32 m0, s11, %d" % ((i - j) * 1024)); m0 = i - j
        if so != (base, k):
            if k: a("s_add_u32 s15, s74, %d" % (k * 10240))
            else: a("s_add_u32 s15, %s, s13" % base)
            so = (base, k)
        if not OPT("nodma"): a("buffer_load_dwordx4 v%d, s[36:39], s15 offen offset:%d%s lds" % (24 + j, j * 1024, NT))
def issue_w(xb):
    a("s_mov_b64 exec, s[68:69]\ns_add_u32 s76, s11, s73")
    for sec in range(3):
        for m in range(2):
            a("s_add_u32 m0, s76, %d\ns_add_u32 s15, s71, %d" % (xb + sec * SEC + m * 2560, sec * 1280 + m * 61440))
            for i in range(4):
                if not OPT("nodma"): a("buffer_load_dwordx4 v%d, s[40:43], s15 offen offset:%d%s lds" % (32 + i, i * 640, NT))
    a("""
    s_mov_b32 m0, s77
    s_mov_b64 exec, 1
    buffer_load_dword v7, s[48:51], 0 offen lds
    s_mov_b64 exec, -1
    s_add_u32 s77, s77, 8
    s_add_u32 s10, s10, 2
    """)
def free_wait():
    top = L("lp"); ok = L("lpok")
    early = L("le")
    a("s_mov_b32 s14, 0\ns_cmp_lt_u32 s10, 6\ns_cbranch_scc0 %s" % top)
    if OPT("nogate"): a("s_branch %s" % ok)
    else:
        a("s_cmp_lt_u32 s10, 3\ns_cbranch_scc1 %s\ns_bitcmp0_b32 s10, 0\ns_cbranch_scc1 %s\ns_sub_u32 s9, s77, 12\nv_mov_b32 v22, s9" % (ok, ok))
        lds_wait0(0, 16, vz="v22")
        a("s_branch %s" % ok)
    a.label(top)
    a("""
    ds_read_b128 v[16:19], v0 offset:%d
    ds_read_b64 v[20:21], v0 offset:%d
    s_waitcnt lgkmcnt(0)
    v_min3_u32 v16, v16, v17, v18
    v_min3_u32 v16, v16, v19, v20
    v_min_u32 v16, v16, v21
    v_readfirstlane_b32 s9, v16
    s_add_u32 s9, s9, 5
    s_cmp_ge_u32 s9, s10
    s_cbranch_scc1 %s
    """ % (F_FREE, F_AUX, ok))
    spin_tail(top, ok, LSLP, SPIN)
    if OPT("cnt"): a("s_add_u32 s98, s98, s14\ns_cmp_gt_u32 s14, 0\ns_cselect_b32 s9, 0x10000, 0\ns_add_u32 s98, s98, s9")
def load_loop(xs, xb, halo, deltas, nsh, first=True, end=20):
    lbl = L("ld"); nx = L("nx")
    if nsh and first: a("s_cmp_ge_u32 s12, %d\ns_cselect_b32 s9, %d, 0\ns_sub_u32 s79, s12, s9\ns_add_u32 s79, s79, %d\ns_mov_b32 s12, 0" % (10 - nsh, 10 - nsh, nsh))
    if first: a("s_mov_b32 s11, 0\ns_mov_b32 s100, %d\ns_mov_b32 s101, %d\ns_mov_b32 s72, %d" % deltas)
    a.label(lbl)
    a("""
    s_lshl_b32 s13, s12, 7
    s_mul_i32 s71, s12, %d
    s_add_u32 s71, s71, s75
    s_add_u32 s74, s64, s13
    """ % (64 * 3840))
    if end > 2: free_wait()
    a("s_cmp_eq_u32 s8, 4\ns_cbranch_scc0 %s" % nx)
    issue_x(xs, halo)
    a.label(nx)
    issue_w(xb)
    a("s_add_u32 s12, s12, 1\ns_cmp_eq_u32 s12, 10\ns_cselect_b32 s12, %d, s12" % nsh)
    if nsh: a("s_lshr_b32 s9, s10, 1\ns_cmp_eq_u32 s9, %d\ns_cselect_b32 s12, s79, s12" % nsh)
    a("""
    s_add_u32 s11, s11, s100
    s_mov_b32 s9, s100
    s_mov_b32 s100, s101
    s_mov_b32 s101, s72
    s_mov_b32 s72, s9
    s_cmp_lt_u32 s10, %d
    s_cbranch_scc1 %s
    """ % (end, lbl))
def wo_setup():
    a("v_mul_u32_u24 v28, 1280, v8\nv_add_u32 v28, v28, v9")
    for e in range(1, 4): a("v_add_u32 v%d, %d, v28" % (28 + e, e * (6 * 1280 - 960)))
def wo_phase(P, base):
    a("s_mov_b64 exec, s[66:67]")
    for q in range(27):
        if q % 4 == 0: a("s_mov_b32 m0, %d\ns_add_u32 s15, s70, %d" % (base + q * 960, (160 * P + 6 * q) * 1280))
        if q == 26: a("s_mov_b64 exec, s[68:69]")
        a("buffer_load_dwordx4 v%d, s[56:59], s15 offen offset:%d lds" % (28 + q % 4, (q % 4) * 960))
    a("s_mov_b64 exec, -1")
def wo_done():
    a("s_mov_b32 m0, %d\ns_mov_b64 exec, 1\nbuffer_load_dword v7, s[48:51], 0 offen lds\ns_mov_b64 exec, -1" % (FLG + F_WO))
a("s_cmp_eq_u32 s5, 0\ns_cbranch_scc1 k_lA")
load_loop(range(16), B_XB, False, BD, NSHB, end=2)
a.raw("@@HSETUP@@")
load_loop(range(16), B_XB, False, BD, NSHB, first=False)
stamp(2)
a.raw("@@WPHI@@")
a("s_cmp_eq_u32 s8, 4\ns_cbranch_scc0 k_hB2")
lds_wait(F_FREE, 4, "16", 16)
wo_phase(0, B_WO[0])
a("s_branch k_hB2")
a.label("k_lA")
load_loop(range(18), A_XB, True, AD, NSHA)
stamp(2)
a("s_cmp_eq_u32 s8, 4\ns_cbranch_scc0 k_end")
srd_rest(False)
wo_setup()
lds_wait(F_FREE, 4, "18", 16)
for P in range(3): wo_phase(P, A_WO[P])
lds_wait(F_FREE, 4, "20", 16)
wo_phase(3, A_WO[3])
wo_done()
if STAMP: a("s_waitcnt vmcnt(0)")
stamp(3)
stamp_store()
a("s_endpgm")

ACC = 128
def acc(j, t): return ACC + j * 8 + t * 4
RING = 16; XF = 56; XH = 76; HACC = 84
def gemm_loop(br, secbase, flip, deltas, xoff=0, halo=None, D=5, areg=(4, 5, 6, 7), pre=None):
    halo = halo or {}
    tiles = [(j // 5, j % 5, j) for j in range(15)]
    items = [(kap, tl) for kap in range(2) for tl in tiles]; N = len(items)
    RN = 10
    Q = LgkmQ(15)
    nx = 3 if halo else 2
    def xr(kap, t):
        if t < 2: return (Ins("ds_read_b128 %s, v%d offset:%d" % (q4(XF + kap * 8 + t * 4), 6 + kap, xoff + t * 2048)), ("x", kap, t))
        return (Ins("ds_read_b128 %s, v%d" % (q4(XH + kap * 4), 6 + kap)), ("x", kap, t))
    def wreg(m):
        kap, (sec, t, j) = items[m]
        if br == 'B': return 4, 8 * t
        return (5, 40 * t) if t < 4 else (4, 32)
    def ir(m, hf):
        kap, (sec, t, j) = items[m]
        reg, toff = wreg(m)
        off = secbase + sec * SEC + (32 * kap + 8 * hf) * 160 + toff
        if OPT("noread"): return (Ins("s_nop 0"), None)
        return (Ins("ds_read_b64_tr_b16 %s, v%d offset:%d" % (q2(RING + (m % RN) * 4 + 2 * hf), reg, off)), ("w", m, hf))
    def emit(lst):
        for ins, tag in lst:
            a.items.append(ins)
            if tag is not None: Q.push(tag)
    lbl = L("gl")
    a("s_mov_b32 s10, 0\nv_mov_b32 v74, 0\nv_add_u32 v73, %d, v0" % (F_FULL + 4))
    a("s_mov_b32 s100, %d\ns_mov_b32 s101, %d\ns_mov_b32 s11, %d" % deltas)
    if pre: pre()
    lds_wait0(F_FULL, 72)
    stamp(1)
    emit([xr(0, t) for t in range(nx)] + [ir(m, hf) for m in range(D) for hf in range(2)])
    a.raw(".p2align 3")
    a.label(lbl)
    slow = L("slow"); back = L("back")
    mf = []; g0 = []
    for m in range(N):
        kap, (sec, t, j) = items[m]
        g0.append(len(mf))
        for t2 in range(2): mf.append((m, XF + kap * 8 + t2 * 4, acc(j, t2)))
        if j in halo: mf.append((m, XH + kap * 4, halo[j]))
    G = len(mf); g0.append(G)
    gaps = [[] for _ in range(G)]; load = [0] * G
    for m in range(2, N + 1, 2): load[g0[m] - 1] += 1
    sw = N - D
    for m in range(N):
        for hf in range(2):
            g = g0[m] + hf
            gaps[g].append(ir((m + D) % N, hf)); load[g] += 1
    def place(ins, lo, hi, tag=None):
        hi = max(lo, hi)
        g = min(range(lo, hi + 1), key=lambda x: (load[x], x))
        if isinstance(ins, str): ins = Ins(ins)
        gaps[g].append((ins, tag)); load[g] += 1
        return g
    gsw = g0[sw]; half = g0[N // 2]
    g = 0
    for t in range(nx):
        i, tg = xr(1, t); g = place(i, g, min(g0[N // 2 - D], g + 2), tg)
    g7 = g
    H = N // 2
    g = place("v_add_u32 v74, 1, v74", 4, g0[H - 1] - 1)
    gaps[g0[H - 1]].append((Ins("ds_write_b32 v14, v74"), ("fw", 0))); load[g0[H - 1]] += 1
    g = place("v_add_u32 v74, 1, v74", g0[H], g0[N - 2] - 1)
    gaps[g0[N - 2]].append((Ins("ds_write_b32 v14, v74"), ("fw", 1))); load[g0[N - 2]] += 1
    slow2 = L("slowb"); back2 = L("backb")
    gm = g0[H - D]; chk2 = H - D - 1 if (H - D - 1) % 2 == 0 else H - D - 2
    place("ds_read_b32 v75, v73", g0[chk2 - D + 1], g0[chk2 - D + 1] + 1, ("f2",))
    place("v_readfirstlane_b32 s12, v75", g0[chk2], min(g0[chk2] + 1, gm - 2))
    gaps[gm - 1] += [(Ins("s_cmp_eq_u32 s12, 0"), None), (Ins("s_cbranch_scc0 %s" % slow2), None), (back2 + ":", None)]
    load[gm - 1] += 2
    g = 0
    for t_ in ("s_mov_b32 s13, s100", "s_mov_b32 s100, s101", "s_mov_b32 s101, s11", "s_mov_b32 s11, s13"):
        g = place(t_, g, g + 3)
    grot = g
    chkm = sw - 1 if (sw - 1) % 2 == 0 else sw - 2
    gf = g0[chkm - D + 1]
    place("ds_read_b32 v72, v73 offset:4", gf, gf + 1, ("f",))
    place("v_readfirstlane_b32 s9, v72", g0[chkm], min(g0[chkm] + 1, gsw - 2))
    lastuse = {}
    for m in range(N - D): lastuse[wreg(m + D)[0]] = g0[m] + 1
    firstnext = {}
    for m in range(sw, N): firstnext.setdefault(wreg((m + D) % N)[0], g0[m])
    for r in areg:
        if r == 6: place("v_add_u32 v6, s13, v6", grot + 1, gsw - 1)
        elif r == 7: place("v_add_u32 v7, s13, v7", max(grot, g7) + 1, G - 1)
        else: place("v_add_u32 v%d, s13, v%d" % (r, r), max(lastuse.get(r, 0), grot), firstnext.get(r, G) - 1)
    gaps[gsw - 1] += [(Ins("s_cmp_eq_u32 s9, 0"), None), (Ins("s_cbranch_scc0 %s" % slow), None), (back + ":", None)]
    load[gsw - 1] += 2
    g = max(gsw, half)
    for t in range(nx):
        i, tg = xr(0, t); g = place(i, g, min(g + 1, G - 1), tg)
    place("v_add_u32 v73, 8, v73", gsw, G - 1)
    place("s_add_u32 s10, s10, 1", gsw, G - 2)
    if OPT("prof"):
        gaps[gsw].append((Ins("s_memtime s[96:97]"), None))
        gaps[7].append((Ins("s_mov_b32 m0, s10"), None)); gaps[8].append((Ins("v_writelane_b32 v255, s96, m0"), None))
    gaps[G - 1].append((Ins("s_cmp_lt_u32 s10, 10"), None))
    def body(dry):
        ws = []
        for gi, (m, xf, d) in enumerate(mf):
            kap, (sec, t, j) = items[m]
            if gi == g0[m] and m % 2 == 0:
                needs = [("w", m + 1, 1), ("w", m + 1, 0)] + [("x", items[m + 1][0], t2) for t2 in range(nx)]
                if m == chkm: needs.append(("f",))
                if m == chk2: needs.append(("f2",))
                cs = [(Q.count_after(tg), tg) for tg in needs if Q.count_after(tg) is not None]
                if cs:
                    c, tg = min(cs)
                    w = Q.wait(tg); ws.append(w)
                    if not dry: a("s_waitcnt lgkmcnt(%d)" % w)
                else: ws.append(99)
            wf = RING + (m % RN) * 4
            if dry:
                for ins, tag in gaps[gi]:
                    if tag is not None: Q.push(tag)
                continue
            if OPT("nomfma"): pass
            elif flip(j): smf(d, xf, wf, q4(d))
            else: smf(d, wf, xf, q4(d))
            emit(gaps[gi])
        return ws
    w1 = body(False); w2 = body(True)
    assert all(x <= y for x, y in zip(w1, w2)), (w1, w2)
    a("s_cbranch_scc1 %s" % lbl)
    a("s_waitcnt lgkmcnt(0)")
    if OPT("prof"):
        a("v_writelane_b32 v255, s96, 10\nv_subrev_u32 v255, s80, v255\ns_lshl_b32 s9, s2, 3\ns_add_u32 s9, s9, s8\ns_lshl_b32 s9, s9, 8\ns_add_u32 s9, s9, %d\nv_lshlrev_b32 v72, 2, v1\nbuffer_store_dword v255, v72, s[44:47], s9 offen" % (20 << 20))
    done = L("gd")
    a("s_branch %s" % done)
    a.label(slow)
    lds_wait0(4, 72, vz="v73", sleep=CSLP)
    if OPT("cnt"): a("s_add_u32 s88, s88, 0x10000\ns_add_u32 s88, s88, s14")
    a("s_branch %s" % back)
    a.label(slow2)
    lds_wait0(0, 72, vz="v73", sleep=CSLP)
    if OPT("cnt"): a("s_add_u32 s88, s88, 0x1000000\ns_add_u32 s88, s88, s14")
    a("s_branch %s" % back2)
    a.label(done)

section("setup")
a.label("k_notld")
a("s_cmp_ge_u32 s8, 6\ns_cbranch_scc1 k_h567")
lane_parts()
a("""
v_mul_u32_u24 v11, 160, v10
v_mad_u32_u24 v4, v9, 40, v11
v_lshl_add_u32 v5, v9, 3, v11
s_lshl_b32 s9, s8, 5
s_cmp_eq_u32 s5, 0
s_cselect_b32 s9, 0, s9
v_lshrrev_b32 v11, 1, v3
v_xor_b32 v11, v11, v2
v_lshlrev_b32 v11, 4, v11
v_add_u32 v12, s9, v3
v_lshl_add_u32 v6, v12, 7, v11
v_xor_b32 v7, 64, v6
s_lshl_b32 s9, s8, 2
s_add_u32 s9, s9, %d
v_add_u32 v14, s9, v0
""" % F_FREE)
for r in range(ACC, ACC + 120): a("v_mov_b32 v%d, 0" % r)
for r in range(HACC, HACC + 12): a("v_mov_b32 v%d, 0" % r)
srd_rest()
def ocnt_addr(wreg):
    a("""
    s_lshl_b32 s77, s5, 4
    s_add_u32 s77, s77, s6
    s_lshl_b32 s76, s77, 2
    s_add_u32 s76, s76, %s
    s_lshl_b32 s76, s76, 8
    s_add_u32 s76, s76, %d
    s_lshl_b32 s77, s77, 2
    s_add_u32 s77, s77, %d
    """ % (wreg, CNT, DG_O))
def o_addr(wreg):
    a("""
    v_lshlrev_b32 v8, 4, v1
    v_lshlrev_b32 v9, 3, v1
    s_lshl_b32 s9, s6, 2
    s_add_u32 s9, s9, %s
    s_mul_i32 s9, s9, 40960
    s_mul_i32 s10, s5, %d
    s_add_u32 s15, s9, s10
    s_mul_i32 s10, s7, 5120
    s_add_u32 s12, s15, s10
    s_add_u32 s13, s12, 2560
    """ % (wreg, O_BR))
ocnt_addr("s8")
a("s_cmp_eq_u32 s5, 0\ns_cbranch_scc1 k_A")

WP = 76
def wphi_load():
    lds_wait(F_AUX, 2, "1", 248)
    a("""
    v_bfe_u32 v8, v1, 2, 2
    v_and_b32 v9, 3, v1
    v_mul_u32_u24 v10, 800, v2
    v_mad_u32_u24 v10, v8, 40, v10
    v_add_u32 v10, %d, v10
    v_mov_b32 v11, %d
    v_cmp_eq_u32 vcc, v9, v2
    v_add_u32 v12, 640, v10
    v_cndmask_b32 v10, v11, v10, vcc
    v_cndmask_b32 v11, v11, v12, vcc
    """ % (WPHI, ZERO))
    for t in range(5): a("ds_read_b64_tr_b16 %s, v11 offset:%d" % (q2(WP + 10 * t + 8), t * 8))
    for t in range(5):
        for c in range(2):
            for hf in range(2): a("ds_read_b64_tr_b16 %s, v10 offset:%d" % (q2(WP + 10 * t + 4 * c + 2 * hf), c * 320 + hf * 160 + t * 8))
def set_l2e(): a("s_mov_b32 s64, 0x%08x\ns_mov_b32 s65, 0x%08x" % (f2u(1.4426950408889634), f2u(1.4426950408889634)))
def img_addr(wreg, tau):
    a("""
    s_lshl_b32 s9, %s, 5
    s_add_u32 s9, s9, %d
    v_add_u32 v12, s9, v3
    v_mul_u32_u24 v12, %d, v12
    v_add_u32 v12, %d, v12
    v_mul_u32_u24 v13, 80, v2
    v_add_u32 v126, v13, v12
    v_mad_u32_u24 v127, v2, 48, v12
    s_mul_i32 s9, %s, 3072
    s_add_u32 s9, s9, %d
    v_lshlrev_b32 v13, 4, v1
    v_add_u32 v13, s9, v13
    """ % (wreg, 16 * tau, IMG_RS, IMG, wreg, B_HX))
def preB():
    wphi_load(); img_addr("s8", 0); set_l2e()
gemm_loop('B', B_XB, lambda j: False, BD, areg=(4, 6, 7), pre=preB)
stamp(2)
def pack20(sec, tau, dst, o=None):
    for t in range(5):
        cvt(dst + 2 * t, acc(5 * sec + t, tau), o); cvt(dst + 2 * t + 1, acc(5 * sec + t, tau) + 2, o)
def pmf(P, src, o=None):
    o = o or a
    for t in range(5): o("v_mfma_f32_16x16x16_bf16 %s, %s, %s, 0" % (q4(P + 4 * t), q2(WP + 10 * t + 8), q2(src + 8)))
    for c in range(2):
        for t in range(5): smf(P + 4 * t, WP + 10 * t + 4 * c, src + 4 * c, q4(P + 4 * t), o)
def softmax2(P, dst, tmp, tv, wr=None):
    p = [P + i for i in range(20)]
    A0, B0 = tv, tv + 2
    a("v_max3_f32 v%d, v%d, v%d, v%d" % (A0, p[0], p[1], p[2])); a("v_min3_f32 v%d, v%d, v%d, v%d" % (B0, p[0], p[1], p[2]))
    a("v_max3_f32 v%d, v%d, v%d, v%d" % (A0 + 1, p[3], p[4], p[5])); a("v_min3_f32 v%d, v%d, v%d, v%d" % (B0 + 1, p[3], p[4], p[5]))
    for i in range(6, 20, 4):
        a("v_max3_f32 v%d, v%d, v%d, v%d" % (A0, A0, p[i], p[i + 1])); a("v_min3_f32 v%d, v%d, v%d, v%d" % (B0, B0, p[i], p[i + 1]))
        if i + 2 < 20:
            a("v_max3_f32 v%d, v%d, v%d, v%d" % (A0 + 1, A0 + 1, p[i + 2], p[i + 3])); a("v_min3_f32 v%d, v%d, v%d, v%d" % (B0 + 1, B0 + 1, p[i + 2], p[i + 3]))
    a("v_max_f32 v%d, v%d, v%d\nv_min_f32 v%d, v%d, v%d" % (A0, A0, A0 + 1, B0, B0, B0 + 1))
    a("v_mul_f32 v%d, s64, v%d\nv_mul_f32 v%d, s64, v%d" % (A0, A0, B0, B0))
    for i in range(0, 20, 2):
        a("v_pk_fma_f32 %s, %s, s[64:65], %s op_sel_hi:[1,1,0] neg_lo:[1,0,0] neg_hi:[1,0,0]" % (q2(tmp + i), q2(p[i]), q2(B0)))
        a("v_pk_fma_f32 %s, %s, s[64:65], %s op_sel_hi:[1,1,0] neg_lo:[0,0,1] neg_hi:[0,0,1]" % (q2(p[i]), q2(p[i]), q2(A0)))
    for i in range(20): a("v_exp_f32 v%d, v%d" % (p[i], p[i]))
    for i in range(20):
        a("v_exp_f32 v%d, v%d" % (tmp + i, tmp + i))
        if i == 0: a("v_pk_add_f32 %s, %s, %s" % (q2(A0), q2(p[0]), q2(p[2])))
        elif i <= 8: a("v_pk_add_f32 %s, %s, %s" % (q2(A0), q2(A0), q2(p[2 + 2 * i])))
        elif i == 9: a("v_add_f32 v%d, v%d, v%d" % (A0, A0, A0 + 1))
        elif i == 10: a("v_rcp_f32 v%d, v%d" % (A0, A0))
    a("v_pk_add_f32 %s, %s, %s" % (q2(B0), q2(tmp), q2(tmp + 2)))
    for i in range(10):
        a("v_pk_mul_f32 %s, %s, %s op_sel_hi:[1,0]" % (q2(p[2 * i]), q2(p[2 * i]), q2(A0)))
        if i < 8: a("v_pk_add_f32 %s, %s, %s" % (q2(B0), q2(B0), q2(tmp + 4 + 2 * i)))
        elif i == 8: a("v_add_f32 v%d, v%d, v%d" % (B0, B0, B0 + 1))
        else: a("v_rcp_f32 v%d, v%d" % (B0, B0))
    for i in range(10):
        cvt(dst + i, p[2 * i])
        if wr and i in (3, 7): wr(i // 4, dst + i - 3)
    for i in range(10):
        a("v_pk_mul_f32 %s, %s, %s op_sel_hi:[1,0]" % (q2(tmp + 2 * i), q2(tmp + 2 * i), q2(B0)))
    for i in range(10):
        cvt(dst + 10 + i, tmp + 2 * i)
        if wr and (10 + i) % 4 == 3: wr((10 + i) // 4, dst + 10 + i - 3)
def phi_wr(m, r): a("ds_write_b128 v126, %s offset:%d" % (q4(r), 16 * m))
HK = 16
pack20(1, 1, HK)
lds_wait(F_FREE, 4, "18", 248)
for m in range(2): a("ds_write_b128 v13, %s offset:%d" % (q4(HK + 4 * m), 1024 * m))
a("ds_write_b128 v13, %s offset:2048" % q4(HK + 8))
a("v_mov_b32 v12, 1\nds_write_b32 v14, v12 offset:%d" % (F_HX - F_FREE))
PK = 28; VT = 40
pack20(1, 0, PK)
PP = acc(5, 0)
pmf(PP, PK)
a("v_mov_b32 v%d, 0x3f803f80\nv_mov_b32 v%d, 0x3f803f80\nv_mov_b32 v%d, 0x3f803f80\nv_mov_b32 v%d, 0x3f803f80" % (VT + 10, VT + 11, VT + 22, VT + 23))
for tau in range(2):
    pack20(2, tau, VT + 12 * tau)
    for m in range(3): a("ds_write_b128 v127, %s offset:%d" % (q4(VT + 12 * tau + 4 * m), IMG_V + tau * 16 * IMG_RS + 16 * m))
TM = acc(10, 0)
softmax2(PP, 16, TM, 248, phi_wr)
a("v_mov_b32 v12, 1\nds_write_b32 v14, v12 offset:%d" % (F_XR - F_FREE))
stamp(3)
pack20(0, 1, 40)
pack20(0, 0, 52)
PQ = acc(8, 0)
pmf(PQ, 52)
lds_wait(F_XR + 16 - F_FREE, 1, "1", 248, vz="v14")
for m in range(3): a("ds_write_b128 v13, %s offset:%d" % (q4(40 + 4 * m), 1024 * m))
a("v_mov_b32 v12, 2\nds_write_b32 v14, v12 offset:%d\ns_mov_b32 s78, 1" % (F_HX - F_FREE))
PHQ = 76
def kv_addr(KB):
    a("""
    v_lshrrev_b32 v8, 2, v3
    v_and_b32 v9, 3, v3
    v_mul_u32_u24 v10, 80, v2
    v_add_u32 v10, %d, v10
    v_mul_u32_u24 v11, %d, v9
    v_add_u32 v11, v11, v10
    v_add_u32 v10, %d, v10
    v_mov_b32 v12, %d
    v_cmp_eq_u32 vcc, v8, v2
    v_cndmask_b32 v%d, v12, v10, vcc
    v_cndmask_b32 v%d, v12, v11, vcc
    """ % (IMG, IMG_RS, 20 * IMG_RS, ZERO, KB + 5, KB))
    for t in range(1, 5): a("v_add_u32 v11, %d, v11\nv_cndmask_b32 v%d, v12, v11, vcc" % (4 * IMG_RS, KB + t))
OPK = 232
def o_compute(FR, OA):
    Q = LgkmQ(15)
    its = [(t, c) for c in range(5) for t in (5, 0, 1, 2, 3, 4)]
    def kread(m):
        t, c = its[m]
        a("ds_read_b128 %s, v%d offset:%d" % (q4(FR + (m % 12) * 4), 64 + t, c * 16)); Q.push(m)
    for m in range(11): kread(m)
    for m in range(30):
        t, c = its[m]
        if m % 2 == 0: a("s_waitcnt lgkmcnt(%d)" % Q.wait(m + 1))
        d = OA + 4 * t
        smf(d, FR + (m % 12) * 4, PHQ + 4 * c, "0" if c == 0 else q4(d))
        if m + 11 < 30: kread(m + 11)
    a("v_add_f32 v10, 0x%08x, v%d\nv_rcp_f32 v10, v10" % (f2u(1e-6), OA + 20))
    for i in range(10): a("v_pk_mul_f32 %s, %s, v[10:11] op_sel_hi:[1,0]" % (q2(OA + 2 * i), q2(OA + 2 * i)))
    for i in range(10): cvt(OPK + i, OA + 2 * i)
def o_store(base, regs):
    a("buffer_store_dwordx4 %s, v8, s[44:47], %s offen sc1" % (q4(regs), base))
    a("buffer_store_dwordx4 %s, v8, s[44:47], %s offen offset:1024 sc1" % (q4(regs + 4), base))
    a("buffer_store_dwordx2 %s, v9, s[44:47], %s offen offset:2048 sc1" % (q2(regs + 8), base))
kv_addr(64)
softmax2(PQ, PHQ, 212, 248)
o_addr("s8")
stamp(5)
lds_wait(F_KVR, 4, "1", 248)
stamp(6)
o_compute(16, 128)
o_store("s12", OPK)
a("s_mov_b32 s66, %d\ns_mov_b32 s67, %d\ns_mov_b32 s68, %d\ns_mov_b32 s69, %d\ns_mov_b32 s70, %d\ns_mov_b32 s71, %d\ns_mov_b32 s79, 16" %
  (B_WO[0], B_WO[1], B_WO[2], B_WO[3], 8 * 160, 4 * 160))

a.label("k_P2")
stamp(7)
OF = 88; A2 = 48
a("""
v_bfe_u32 v5, v1, 2, 2
v_and_b32 v6, 3, v1
v_mad_u32_u24 v7, v2, 20, v5
v_mul_u32_u24 v7, 160, v7
v_lshl_add_u32 v252, v6, 3, v7
v_lshl_add_u32 v7, v2, 2, v5
v_mul_u32_u24 v7, 160, v7
v_lshl_add_u32 v253, v6, 3, v7
s_cmp_eq_u32 s5, 0
s_cselect_b64 vcc, -1, 0
v_cndmask_b32 v248, v252, v253, vcc
s_and_b32 s74, s7, 3
s_cmp_eq_u32 s74, 0
s_cbranch_scc1 k_rot_done
k_rot:
s_mov_b32 s9, s66
s_mov_b32 s66, s67
s_mov_b32 s67, s68
s_mov_b32 s68, s69
s_mov_b32 s69, s9
s_sub_u32 s74, s74, 1
s_cmp_lg_u32 s74, 0
s_cbranch_scc1 k_rot
k_rot_done:
s_sub_u32 s69, s69, s68
s_sub_u32 s68, s68, s67
s_sub_u32 s67, s67, s66
s_and_b32 s74, s7, 3
v_add_u32 v248, s66, v248
v_add_u32 v252, s66, v252
v_add_u32 v249, s71, v248
v_add_u32 v250, s70, v248
v_add_u32 v251, s70, v249
""")
for r in range(A2, A2 + 40): a("v_mov_b32 v%d, 0" % r)
a("""
s_lshl_b32 s9, s6, 7
s_lshl_b32 s10, s8, 5
s_add_u32 s9, s9, s10
v_add_u32 v4, s9, v3
v_mul_u32_u24 v4, 2560, v4
s_mul_i32 s9, s5, 1280
s_mul_i32 s10, s7, 160
s_add_u32 s72, s9, s10
s_add_u32 s73, s72, 40960
v_and_b32 v5, 1, v2
v_lshlrev_b32 v5, 5, v5
v_lshrrev_b32 v6, 1, v2
v_lshl_add_u32 v5, v6, 4, v5
v_add_u32 v5, v5, v4
v_lshl_add_u32 v6, v2, 3, v4
v_mov_b32 v12, 1
""")
for P in range(4):
    a("s_add_u32 s9, s74, %d\ns_and_b32 s9, s9, 3\ns_mul_i32 s9, s9, 10240\ns_add_u32 s%d, s9, s15" % (P, 16 + 4 * P))
    for k in range(1, 4): a("s_add_u32 s%d, s%d, %d" % (16 + 4 * P + k, 16 + 4 * P, 2560 * k))
a("s_waitcnt lgkmcnt(0)\ns_cmp_ge_u32 s78, 1\ns_cbranch_scc1 k_zok")
glb_wait('dbg', "s77", "1", 254, vec=True)
a.label("k_zok")
a("s_waitcnt vmcnt(0)\ns_mov_b64 exec, 1\nbuffer_atomic_add v12, v15, s[44:47], s76 offen sc1\ns_mov_b64 exec, -1")
lds_wait0(F_WO, 254)
R2 = 16; RN2 = 8; D2 = 5
Q = LgkmQ(15)
its = [(P, c, t) for P in range(4) for c in range(5) for t in range(5)]
def w2read(m, hf):
    P, c, t = its[m]
    if c < 4:
        G, p = divmod(c, 2)
        reg = 248 + p * 2 + hf; off = G * 80 * 160 + 32 * t
    else:
        reg = 252; off = (80 * hf + 16) * 160 + 32 * t
    a("ds_read_b64_tr_b16 %s, v%d offset:%d" % (q2(R2 + (m % RN2) * 4 + 2 * hf), reg, off)); Q.push((m, hf))
for m in range(D2): w2read(m, 0); w2read(m, 1)
glb_wait('ws', "s76", "s79", 254, sleep=1)
Q.clear()
stamp(8)
VQ = LgkmQ(63)
VQ.push("atom")
def of(P, c, tau): return OF + ((P * 5 + c) * 2 + tau) * 4
olist = []
for P in range(4):
    for c in range(4):
        gg, p = divmod(c, 2)
        for tau in range(2): olist.append(("x4", of(P, c, tau), 16 + 4 * P + 2 * gg + tau, p * 1024, (P, c, tau)))
    for tau in range(2):
        for gg in range(2): olist.append(("x2", of(P, 4, tau) + 2 * gg, 16 + 4 * P + 2 * gg + tau, 2048, (P, 4, tau, gg)))
oi = [0]
def oload():
    if oi[0] >= len(olist): return
    k, r, so, off, tag = olist[oi[0]]; oi[0] += 1
    if k == "x4": a("buffer_load_dwordx4 %s, v8, s[44:47], s%d offen offset:%d sc1" % (q4(r), so, off))
    else: a("buffer_load_dwordx2 %s, v9, s[44:47], s%d offen offset:%d sc1" % (q2(r), so, off))
    VQ.push(tag)
for _ in range(NPRE): oload()
def acc2(t, tau): return A2 + (t * 2 + tau) * 4
for m in range(100):
    P, c, t = its[m]
    if t == 0:
        tg = (P, c, 1) if c < 4 else (P, 4, 1, 1)
        w = VQ.wait(tg)
        assert w is not None or tg not in [x[4] for x in olist[oi[0]:]]
        if w is not None: a("s_waitcnt vmcnt(%d)" % w)
    if m % 2 == 0:
        w = Q.wait((min(m + 1, 99), 1))
        if w is not None: a("s_waitcnt lgkmcnt(%d)" % w)
    for tau in range(2):
        d = acc2(t, tau)
        smf(d, R2 + (m % RN2) * 4, of(P, c, tau), q4(d))
        if m + D2 < 100: w2read(m + D2, tau)
        if tau == 1 and m % 2 == 1: oload()
    mm = m + D2
    if mm < 100:
        Pm, cm, tm = its[mm]
        if Pm < 3 and tm == 4:
            if cm == 2: a("v_add_u32 v248, s%d, v248\nv_add_u32 v249, s%d, v249" % (67 + Pm, 67 + Pm))
            if cm == 3: a("v_add_u32 v250, s%d, v250\nv_add_u32 v251, s%d, v251" % (67 + Pm, 67 + Pm))
            if cm == 4: a("v_add_u32 v252, s%d, v252" % (67 + Pm))
assert oi[0] == len(olist)
OP = 88
for tau in range(2):
    for t in range(5):
        cvt(OP + 12 * tau + 2 * t, acc2(t, tau)); cvt(OP + 12 * tau + 2 * t + 1, acc2(t, tau) + 2)
for tau in range(2):
    for p in range(2):
        a("v_permlane16_swap_b32 v%d, v%d" % (OP + 12 * tau + 4 * p, OP + 12 * tau + 4 * p + 2))
        a("v_permlane16_swap_b32 v%d, v%d" % (OP + 12 * tau + 4 * p + 1, OP + 12 * tau + 4 * p + 3))
if AV("delay", 0):
    a("""
    s_memtime s[84:85]
    s_waitcnt lgkmcnt(0)
    k_dl:
    s_sleep 2
    s_memtime s[86:87]
    s_waitcnt lgkmcnt(0)
    s_sub_u32 s86, s86, s84
    s_cmp_lt_u32 s86, %d
    s_cbranch_scc1 k_dl
    """ % AV("delay", 0))
if AV("rdelay", 0):
    a("""
    s_memrealtime s[84:85]
    s_waitcnt lgkmcnt(0)
    k_dl:
    s_sleep 2
    s_memrealtime s[86:87]
    s_waitcnt lgkmcnt(0)
    s_sub_u32 s86, s86, s84
    s_cmp_lt_u32 s86, %d
    s_cbranch_scc1 k_dl
    """ % AV("rdelay", 0))
if AV("adelay", 0):
    a("""
    k_dl:
    s_sleep 2
    s_memrealtime s[86:87]
    s_waitcnt lgkmcnt(0)
    s_sub_u32 s86, s86, s82
    s_cmp_lt_u32 s86, %d
    s_cbranch_scc1 k_dl
    """ % AV("adelay", 0))
OUTFL = " nt" if OPT("outnt") else (" sc1" if OPT("outsc1") else "")
for tau in range(2):
    for p in range(2):
        a("buffer_store_dwordx4 %s, v5, s[60:63], s%d offen offset:%d%s" % (q4(OP + 12 * tau + 4 * p), 72 + tau, 64 * p, OUTFL))
    a("buffer_store_dwordx2 %s, v6, s[60:63], s%d offen offset:128%s" % (q2(OP + 12 * tau + 8), 72 + tau, OUTFL))
stamp(9)
if OPT("diag"):
    a("""
    s_memtime s[84:85]
    s_memrealtime s[86:87]
    s_waitcnt lgkmcnt(0)
    s_sub_u32 s84, s84, s80
    s_sub_u32 s86, s86, s82
    s_cmp_lt_u32 s2, 8
    s_cbranch_scc0 k_nodiag
    s_cmp_eq_u32 s8, 0
    s_cbranch_scc0 k_nodiag
    v_mov_b32 v16, s84
    v_mov_b32 v17, s86
    s_lshl_b32 s9, s2, 3
    s_mov_b64 exec, 1
    buffer_store_dwordx2 v[16:17], v15, s[48:51], s9 offen
    k_nodiag:
    """)
stamp_store()
a("s_endpgm")

section("A")
a.label("k_A")
HT = [(5, 6, 7), (8, 9, 10), (11, 12), (13, 14)]
QOP = 16; KOP = 48; VOP = 96; SS = 128; EE = 192; POP = 208
for w in range(4):
    if w < 3: a("s_cmp_eq_u32 s8, %d\ns_cbranch_scc0 k_A%d" % (w, w + 1))
    halo = {j: HACC + 4 * i for i, j in enumerate(HT[w])}
    gemm_loop('A', A_XB, lambda j: j >= 10, AD, xoff=(16 + 32 * w) * 128, halo=halo)
    stamp(2)
    a("v_lshlrev_b32 v8, 4, v1\nv_lshlrev_b32 v9, 3, v1")
    for i, j in enumerate(HT[w]):
        cvt(16 + 2 * i, halo[j]); cvt(17 + 2 * i, halo[j] + 2)
    lds_wait(F_FREE, 4, "16", 248)
    for i, j in enumerate(HT[w]):
        if j < 9: a("ds_write_b64 v8, %s offset:%d" % (q2(16 + 2 * i), A_EXCH + (j - 5) * 1024))
        elif j == 9:
            for h in range(4): a("ds_write_b64 v8, %s offset:%d" % (q2(16 + 2 * i), A_EXCH + h * 1024 + 8))
        else: a("ds_write_b64 v9, %s offset:%d" % (q2(16 + 2 * i), A_EXCH + 4096 + (j - 10) * 512))
    a("v_mov_b32 v12, 1\ns_mov_b64 exec, 1\nds_add_u32 v0, v12 offset:%d\ns_mov_b64 exec, -1" % F_XR)
    if w < 3:
        a("s_branch k_Aep")
        a.label("k_A%d" % (w + 1))
a.label("k_Aep")
def packK(src, dst):
    for h in range(4):
        cvt(dst + 4 * h, src(h)); cvt(dst + 4 * h + 1, src(h) + 2)
        cvt(dst + 4 * h + 2, src(4)); cvt(dst + 4 * h + 3, src(4) + 2)
a("""
s_load_dword s78, s[32:33], s77
s_mul_i32 s9, s8, 6656
s_add_u32 s9, s9, %d
v_add_u32 v10, s9, v8
v_add_u32 v11, s9, v9
""" % A_EXCH)
packK(lambda t: acc(5 + t, 1), KOP + 32)
for t in range(5):
    cvt(VOP + 6 * t + 4, acc(10 + t, 1)); cvt(VOP + 6 * t + 5, acc(10 + t, 1) + 2)
a("s_cmp_eq_u32 s8, 3\ns_cbranch_scc1 k_A_nw")
for h in range(4): a("ds_write_b128 v10, %s offset:%d" % (q4(KOP + 32 + 4 * h), 6656 + h * 1024))
for t in range(5): a("ds_write_b64 v11, %s offset:%d" % (q2(VOP + 6 * t + 4), 6656 + 4096 + t * 512))
a("v_mov_b32 v12, 4\nds_write_b32 v14, v12 offset:%d" % (F_XR + 4 - F_FREE))
a.label("k_A_nw")
packK(lambda t: acc(5 + t, 0), KOP + 16)
for t in range(5):
    cvt(VOP + 6 * t + 2, acc(10 + t, 0)); cvt(VOP + 6 * t + 3, acc(10 + t, 0) + 2)
a("""
s_mov_b32 s66, 0xffff
s_mov_b32 s67, 0
s_mov_b32 s68, 0xffff0000
s_mov_b32 s69, 0
s_mov_b32 s70, 0
s_mov_b32 s71, 0xffff
s_mov_b32 s72, 0
s_mov_b32 s73, 0xffff0000
v_and_b32 v12, 1, v3
v_cmp_eq_u32 s[74:75], 1, v12
v_lshl_add_u32 v13, v2, 2, v12
v_cmp_ge_u32 s[100:101], v3, v13
v_add_u32 v13, 2, v13
v_cmp_ge_u32 vcc, v3, v13
""")
for tau in (1, 0):
    cvt(6, acc(4, tau)); cvt(7, acc(4, tau) + 2)
    for h in range(4):
        d = QOP + tau * 16 + 4 * h
        cvt(d, acc(h, tau)); cvt(d + 1, acc(h, tau) + 2)
        a("v_cndmask_b32 v%d, 0, v6, s[%d:%d]" % (d + 2, 66 + 2 * h, 67 + 2 * h))
        a("v_cndmask_b32 v%d, 0, v7, s[%d:%d]" % (d + 3, 66 + 2 * h, 67 + 2 * h))
def S(tau, h, p): return SS + ((tau * 4 + h) * 2 + p) * 4
for h in range(4):
    smf(S(1, h, 1), KOP + 32 + 4 * h, QOP + 16 + 4 * h, "0")
    smf(S(1, h, 0), KOP + 16 + 4 * h, QOP + 16 + 4 * h, "0")
for h in range(4): smf(S(0, h, 1), KOP + 16 + 4 * h, QOP + 4 * h, "0")
a("""
v_mov_b32 v12, 0x0c0c0100
v_mov_b32 v13, 0x01000c0c
v_cndmask_b32 v12, v12, v13, s[74:75]
v_mov_b32 v13, 0x0c0c0302
v_mov_b32 v6, 0x03020c0c
v_cndmask_b32 v13, v13, v6, s[74:75]
v_mov_b32 v6, 0x0c0c0c0c
v_cndmask_b32 v240, v12, v6, s[100:101]
v_cndmask_b32 v241, v13, v6, vcc
v_cndmask_b32 v242, v6, v12, s[100:101]
v_cndmask_b32 v243, v6, v13, vcc
s_or_b32 s9, s6, s8
s_cmp_eq_u32 s9, 0
s_cselect_b32 s9, 0xf149f2ca, 0
v_mov_b32 v244, s9
v_mov_b32 v245, s9
v_mov_b32 v246, s9
v_mov_b32 v247, s9
s_mov_b32 s64, 0x%08x
""" % f2u(0.22360679774997896 * 1.4426950408889634))
o_addr("s8")
lds_wait(F_XR - F_FREE, 1, "4", 248, vz="v14")
for h in range(4): a("ds_read_b128 %s, v10 offset:%d" % (q4(KOP + 4 * h), h * 1024))
for t in range(5): a("ds_read_b64 %s, v11 offset:%d" % (q2(VOP + 6 * t), 4096 + t * 512))
a("s_waitcnt lgkmcnt(5)")
for h in range(4): smf(S(0, h, 0), KOP + 4 * h, QOP + 4 * h, "v[244:247]")
def attn_tau(tau):
    o = Asm()
    E = EE + tau * 8; t0, t1, t2, t3 = (248, 249, 250, 251) if tau else (252, 253, 254, 255)
    for h in range(4):
        for i in range(2):
            cu = S(tau, h, 1) + 2 * i; prv = S(tau, h, 0) + 2 * i
            x, y = (t0, t1) if i == 0 else (t2, t3)
            o("v_cndmask_b32 v%d, v%d, v%d, s[74:75]" % (x, cu, cu + 1))
            o("v_cndmask_b32 v%d, v%d, v%d, s[74:75]" % (y, prv, prv + 1))
        for i in range(2):
            x, y = (t0, t1) if i == 0 else (t2, t3)
            o("v_cndmask_b32 v%d, v%d, v%d, %s" % (E + i * 4 + h, y, x, "s[100:101]" if i == 0 else "vcc"))
    for b in (E, E + 4):
        o("v_permlane32_swap_b32 v%d, v%d" % (b, b + 2)); o("v_permlane32_swap_b32 v%d, v%d" % (b + 1, b + 3))
    for b in (E, E + 4):
        o("v_permlane16_swap_b32 v%d, v%d" % (b, b + 1)); o("v_permlane16_swap_b32 v%d, v%d" % (b + 2, b + 3))
    o("v_max3_f32 v%d, v%d, v%d, v%d" % (t0, E, E + 1, E + 2))
    o("v_max3_f32 v%d, v%d, v%d, v%d" % (t1, E + 4, E + 5, E + 3))
    o("v_max3_f32 v%d, v%d, v%d, v%d" % (t0, t0, E + 6, E + 7))
    o("v_max_f32 v%d, v%d, v%d" % (t0, t0, t1))
    o("v_mul_f32 v%d, s64, v%d" % (t0, t0))
    for i in range(8): o("v_fma_f32 v%d, v%d, s64, -v%d" % (E + i, E + i, t0))
    for i in range(8): o("v_exp_f32 v%d, v%d" % (E + i, E + i))
    o("v_add_f32 v%d, v%d, v%d" % (t0, E, E + 1)); o("v_add_f32 v%d, v%d, v%d" % (t1, E + 2, E + 3))
    o("v_add_f32 v%d, v%d, v%d" % (t2, E + 4, E + 5)); o("v_add_f32 v%d, v%d, v%d" % (t3, E + 6, E + 7))
    o("v_add_f32 v%d, v%d, v%d" % (t0, t0, t1)); o("v_add_f32 v%d, v%d, v%d" % (t2, t2, t3))
    o("v_add_f32 v%d, v%d, v%d" % (t0, t0, t2)); o("v_rcp_f32 v%d, v%d" % (t0, t0))
    for i in range(8): o("v_mul_f32 v%d, v%d, v%d" % (E + i, E + i, t0))
    for j in range(4): o("v_cvt_pk_bf16_f32 v%d, v%d, v%d" % (E + j, E + j, E + 4 + j))
    o("v_permlane32_swap_b32 v%d, v%d" % (E, E + 2)); o("v_permlane32_swap_b32 v%d, v%d" % (E + 1, E + 3))
    o("v_permlane16_swap_b32 v%d, v%d" % (E, E + 1)); o("v_permlane16_swap_b32 v%d, v%d" % (E + 2, E + 3))
    P = POP + tau * 16
    for h in range(4):
        for j in range(4): o("v_perm_b32 v%d, v%d, v%d, v%d" % (P + 4 * h + j, E + h, E + h, 240 + j))
    for h in range(4):
        smf(S(tau, h, 0), VOP + 6 * h + 2 * tau, P + 4 * h, "0", o)
        smf(S(tau, h, 1), VOP + 24 + 2 * tau, P + 4 * h, "0", o)
    return o
a("s_waitcnt lgkmcnt(0)")
merge([attn_tau(1), attn_tau(0)])
OA = 208
for tau in (1, 0):
    for h in range(4):
        cvt(OA + 12 * tau + 2 * h, S(tau, h, 0)); cvt(OA + 12 * tau + 2 * h + 1, S(tau, h, 0) + 2)
for h in range(4):
    a("s_mov_b64 exec, s[%d:%d]" % (66 + 2 * h, 67 + 2 * h))
    for tau in range(2):
        cvt(OA + 12 * tau + 8, S(tau, h, 1)); cvt(OA + 12 * tau + 9, S(tau, h, 1) + 2)
a("s_mov_b64 exec, -1")
o_store("s12", OA); o_store("s13", OA + 12)
a("s_mov_b32 s66, %d\ns_mov_b32 s67, %d\ns_mov_b32 s68, %d\ns_mov_b32 s69, %d\ns_mov_b32 s70, %d\ns_mov_b32 s71, %d\ns_mov_b32 s79, 8" %
  (A_WO[0], A_WO[1], A_WO[2], A_WO[3], 40 * 160, 20 * 160))
a("s_branch k_P2")

section("help")
a.label("k_h567")
srd_rest()
a("""
v_mov_b32 v16, 0
v_mov_b32 v17, 0
v_mov_b32 v18, 0
v_mov_b32 v19, 0
v_mov_b32 v20, 1
v_lshlrev_b32 v8, 4, v1
""")
if OPT("pfcode"):
    a("""
    s_cmp_eq_u32 s8, 6
    s_cbranch_scc0 k_nopc
    s_getpc_b64 s[10:11]
    k_pcref:
    s_add_u32 s10, s10, k_pf_start-k_pcref
    s_addc_u32 s11, s11, -1
    s_lshl_b32 s9, s4, 10
    s_add_u32 s10, s10, s9
    s_addc_u32 s11, s11, 0
    v_add_co_u32 v22, vcc, s10, v8
    v_mov_b32 v23, s11
    v_addc_co_u32 v23, vcc, 0, v23, vcc
    global_load_dwordx4 v[24:27], v[22:23], off
    k_nopc:
    """)
if not OPT("nopfwo"):
    a("""
    s_sub_u32 s9, s8, 6
    s_mul_i32 s9, s9, 10
    s_mul_i32 s10, s4, 20
    s_add_u32 s9, s9, s10
    s_mul_i32 s9, s9, 1280
    s_lshr_b32 s10, s7, 2
    s_mul_i32 s10, s10, 640
    s_add_u32 s9, s9, s10
    s_mov_b32 s66, -1
    s_mov_b32 s67, 0xff
    s_mov_b64 exec, s[66:67]
    """)
    for i in range(10):
        a("buffer_load_dwordx4 v[24:27], v8, s[56:59], s9 offen%s\ns_add_u32 s9, s9, 1280" % NT)
    a("s_mov_b64 exec, -1\nk_nopf:")
a("""
s_cmp_eq_u32 s5, 0
s_cbranch_scc0 k_noz
s_cmp_eq_u32 s8, 7
s_cbranch_scc0 k_end
s_cmp_lt_u32 s7, 3
s_cbranch_scc0 k_end
""")
a("""
s_cmp_eq_u32 s7, 2
s_cselect_b32 s9, s6, 0
s_cmp_ge_u32 s9, 8
s_cbranch_scc1 k_end
""")
lds_wait0(F_FULL + 4 * AV("zat", 3), 248, sleep=4)
a("""
s_lshl_b32 s75, s7, 4
s_add_u32 s75, s75, s6
s_lshl_b32 s74, s75, 10
s_add_u32 s74, s74, %d
s_lshl_b32 s75, s75, 2
s_add_u32 s75, s75, %d
v_lshlrev_b32 v9, 8, v1
s_mov_b64 exec, 15
buffer_store_dword v16, v9, s[44:47], s74 offen sc1
s_mov_b64 exec, 1
s_waitcnt vmcnt(0)
buffer_store_dword v20, v15, s[48:51], s75 offen sc1
s_endpgm
k_noz:
""" % (CNT, DG_O))
a("""
s_cmp_eq_u32 s8, 6
s_cbranch_scc1 k_h67Bz
""")
a("s_mov_b32 s66, -1\ns_mov_b32 s67, 0xff\ns_mov_b64 exec, s[66:67]\nv_add_u32 v9, %d, v8\nds_write_b128 v9, v[16:19]\ns_mov_b64 exec, -1" % ZERO)
a.label("k_h67Bz")
a("s_waitcnt vmcnt(%d) lgkmcnt(0)\ns_lshl_b32 s9, s8, 2\nv_add_u32 v9, s9, v0" % (0 if OPT("nopfwo") else 10))
a("v_mov_b32 v12, 0x7ffffff0\nds_write_b32 v9, v12 offset:%d" % (F_AUX - 24))
def hsetup(wphi=True):
    srd_rest(False)
    a("""
    s_sub_u32 s16, s8, 4
    v_mul_u32_u24 v8, 26, v1
    v_lshrrev_b32 v8, 8, v8
    v_mul_u32_u24 v9, 10, v8
    v_sub_u32 v9, v1, v9
    v_lshlrev_b32 v9, 4, v9
    v_mov_b32 v7, 0x7fffff00
    s_mov_b32 s66, -1
    s_mov_b32 s67, 0x0fffffff
    s_mov_b32 s68, -1
    s_mov_b32 s69, 0xff
    s_mul_i32 s70, s7, 160
    s_lshl_b32 s9, s16, 2
    v_add_u32 v14, s9, v0
    """)
    wo_setup()
    if wphi: wphi_load()
    img_addr("s16", 1)
    lane_parts()
    a("""
    s_add_u32 s22, s6, 16
    s_lshl_b32 s21, s22, 2
    s_add_u32 s21, s21, s16
    s_lshl_b32 s21, s21, 8
    s_add_u32 s21, s21, %d
    s_lshl_b32 s22, s22, 2
    s_add_u32 s22, s22, %d
    s_lshl_b32 s18, s7, 2
    s_add_u32 s18, s18, s16
    s_lshl_b32 s17, s18, 15
    s_add_u32 s17, s17, %d
    s_lshl_b32 s18, s18, 8
    s_add_u32 s18, s18, %d
    s_lshl_b32 s19, s7, 2
    s_add_u32 s19, s19, %d
    s_mul_i32 s20, s16, 80
    s_add_u32 s20, s20, %d
    v_mul_u32_u24 v4, %d, v10
    v_lshl_add_u32 v4, v9, 3, v4
    v_add_u32 v5, %d, v4
    v_add_u32 v4, s20, v4
    s_mul_i32 s9, s16, 48
    v_add_u32 v5, s9, v5
    v_mul_u32_u24 v6, %d, v3
    v_lshl_add_u32 v6, v2, 3, v6
    v_add_u32 v6, s20, v6
    """ % (CNT, DG_O, PART, CNT + 128 * 256, DG_K, IMG, IMG_RS, IMG + IMG_V, IMG_RS))
    def unit_addr(dst, ureg, clamp):
        if clamp: a("v_min_u32 v%d, 104, v%d" % (ureg, ureg))
        a("""
        v_mul_u32_u24 v8, 205, v%d
        v_lshrrev_b32 v8, 10, v8
        v_min_u32 v8, 22, v8
        v_mul_u32_u24 v9, 5, v8
        v_sub_u32 v9, v%d, v9
        v_min_u32 v9, 4, v9
        v_mul_u32_u24 v%d, %d, v8
        v_lshl_add_u32 v%d, v9, 4, v%d
        v_add_u32 v%d, s20, v%d
        """ % (ureg, ureg, dst, IMG_RS, dst, dst, dst, dst))
    a("v_mov_b32 v10, v1"); unit_addr(236, 10, True)
    a("v_add_u32 v10, 64, v1"); unit_addr(237, 10, True)
    for k in range(4):
        a("v_lshrrev_b32 v10, 1, v2\nv_lshl_add_u32 v10, v10, 4, v3\nv_add_u32 v10, %d, v10" % (32 * k))
        unit_addr(70 + k, 10, False)
        a("v_and_b32 v10, 1, v2\nv_lshl_add_u32 v%d, v10, 3, v%d" % (70 + k, 70 + k))
    a("""
    v_and_b32 v8, 1, v3
    v_mov_b32 v9, 0x3f80
    v_mov_b32 v10, 0x3f800000
    v_cmp_eq_u32 vcc, 1, v8
    v_cndmask_b32 v9, v9, v10, vcc
    v_lshrrev_b32 v8, 1, v3
    """)
    for hi in range(2):
        for r in range(4):
            a("v_lshl_add_u32 v10, v2, 2, %d\nv_cmp_eq_u32 vcc, v10, v8\nv_cndmask_b32 v%d, v15, v9, vcc" % (r - 8 * hi, 240 + 4 * hi + r))
    kv_addr(64)

hsetup()
a("s_cmp_eq_u32 s8, 6\ns_cbranch_scc1 k_hB2")
lds_wait0(F_FULL + 56, 248, sleep=8)
a("s_load_dword s9, s[32:33], s19\ns_load_dword s10, s[32:33], s22\ns_waitcnt lgkmcnt(0)\ns_and_b32 s9, s9, s10\ns_cmp_ge_u32 s9, 1\ns_cbranch_scc1 k_hB2")
glb_wait('dbg', "s19", "1", 12, vec=True)
glb_wait('dbg', "s22", "1", 12, vec=True)
a.label("k_hB2")
set_l2e()
lds_wait(F_HX, 1, "1", 248, vz="v14")
stamp(1)
for m in range(3): a("ds_read_b128 %s, v13 offset:%d" % (q4(36 + 4 * m), 1024 * m))
a("s_waitcnt lgkmcnt(0)")
pmf(128, 36)
softmax2(128, 36, 148, 248, phi_wr)
a("v_mov_b32 v12, 1\nds_write_b32 v14, v12 offset:%d" % (F_XR + 16))
lds_wait(F_XR, 8, "1", 248)
stamp(3)
KA = 128
for kap in range(4):
    base = 152 + kap * 20
    for ft in range(3):
        for hf in range(2): a("ds_read_b64_tr_b16 %s, v4 offset:%d" % (q2(base + 4 * ft + 2 * hf), (32 * kap + 8 * hf) * IMG_RS + ft * 32))
    for dt in range(2):
        for hf in range(2): a("ds_read_b64_tr_b16 %s, v5 offset:%d" % (q2(base + 12 + 4 * dt + 2 * hf), (32 * kap + 8 * hf) * IMG_RS + dt * 32))
    if kap >= 1:
        a("s_waitcnt lgkmcnt(10)")
        pb = base - 20
        for ft in range(3):
            for dt in range(2):
                d = KA + (ft * 2 + dt) * 4
                smf(d, pb + 4 * ft, pb + 12 + 4 * dt, "0" if kap == 1 else q4(d))
a("s_waitcnt lgkmcnt(0)\nv_mov_b32 v12, 1\nds_write_b32 v14, v12 offset:%d" % F_KVD)
for ft in range(3):
    for dt in range(2):
        d = KA + (ft * 2 + dt) * 4
        smf(d, 212 + 4 * ft, 212 + 12 + 4 * dt, q4(d))
a("s_lshl_b32 s9, s6, 11\ns_add_u32 s9, s9, s17\ns_mov_b32 s100, 0x001f001f\ns_mov_b32 s101, 0x001f001f\nv_lshlrev_b32 v8, 4, v1")
for i in range(12): cvt(36 + i, KA + 2 * i)
for ft, dt in ((0, 0), (1, 0), (0, 1), (1, 1), (2, 1), (2, 0)):
    if (ft, dt) == (0, 1): a("s_mov_b64 exec, s[100:101]")
    if (ft, dt) == (2, 1): a("s_mov_b32 exec_hi, 0")
    if (ft, dt) == (2, 0): a("s_mov_b32 exec_lo, -1")
    a("ds_write_b64 v6, %s offset:%d" % (q2(36 + (ft * 2 + dt) * 2), dt * 16 * IMG_RS + ft * 32))
a("s_mov_b64 exec, -1")
a("ds_read_b128 v[48:51], v236\nds_read_b128 v[52:55], v237\ns_waitcnt lgkmcnt(1)")
a("buffer_store_dwordx4 v[48:51], v8, s[44:47], s9 offen sc1\ns_waitcnt lgkmcnt(0)")
a("buffer_store_dwordx4 v[52:55], v8, s[44:47], s9 offen offset:1024 sc1")
lds_wait(F_HX, 1, "2", 248, vz="v14")
for m in range(3): a("ds_read_b128 %s, v13 offset:%d" % (q4(36 + 4 * m), 1024 * m))
a("v_mov_b32 v12, 1\ns_waitcnt lgkmcnt(0)")
pmf(128, 36)
a("s_mov_b64 exec, 1\ns_waitcnt vmcnt(0)")
stamp(4)
a("buffer_atomic_add v12, v15, s[44:47], s18 offen sc1\ns_mov_b64 exec, -1")
a("s_cmp_eq_u32 s8, 4\ns_cbranch_scc0 k_nowo")
lds_wait(F_FREE, 4, "20", 248)
wo_phase(1, B_WO[1]); wo_phase(2, B_WO[2])
lds_wait(F_KVD, 4, "1", 248)
wo_phase(3, B_WO[3])
wo_done()
a.label("k_nowo")
softmax2(128, PHQ, 148, 248)
glb_wait('ws', "s18", "16", 12)
stamp(5)
a("s_mov_b32 s10, s6")
LB = 16
bufs = [128 + 8 * i for i in range(13)] + [16, 24, 32]
for i in range(16):
    a("s_lshl_b32 s9, s10, 11\ns_add_u32 s9, s9, s17\ns_add_u32 s10, s10, 1\ns_and_b32 s10, s10, 15")
    a("buffer_load_dwordx4 %s, v8, s[44:47], s9 offen sc1" % q4(bufs[i]))
    a("buffer_load_dwordx4 %s, v8, s[44:47], s9 offen offset:1024 sc1" % q4(bufs[i] + 4))
o_addr("s16")
SA = 40
for i in range(16):
    a("s_waitcnt vmcnt(%d)" % (30 - 2 * i))
    for k in range(4):
        smf(SA + 4 * k, 240 + 4 * (k & 1), bufs[i] + 4 * (k >> 1), "0" if i == 0 else q4(SA + 4 * k))
for k in range(4):
    cvt(56 + 2 * k, SA + 4 * k); cvt(57 + 2 * k, SA + 4 * k + 2)
for k in range(4): a("ds_write_b64 v%d, %s" % (70 + k, q2(56 + 2 * k)))
a("v_mov_b32 v12, 1\nds_write_b32 v14, v12 offset:%d" % F_KVR)
stamp(6)
lds_wait(F_KVR, 4, "1", 248)
o_compute(16, 128)
o_store("s13", OPK)
a("v_mov_b32 v12, 1\ns_mov_b64 exec, 1\ns_waitcnt vmcnt(0)\nbuffer_atomic_add v12, v15, s[44:47], s21 offen sc1")
stamp(7)
stamp_store()
a.label("k_end")
a("s_endpgm")

fin = Asm()
hdr = open("cdna_kernels/%s.s.ref" % NAME).read().split("; Override launch")[0]
fin.raw(hdr.rstrip())
fin.raw("; @launch grid=(256,1,1) block=(512,1,1) lds=163840")
fin.raw('.amdgcn_target "amdgcn-amd-amdhsa--gfx950"')
fin.raw(".text")
fin.raw(".set WPHI_ADDR, %d" % WPHI)
section("hs"); hsetup(False)
section("wp"); wphi_load()
for it in secs["entry"].items:
    if it == "@@HSETUP@@": fin.items += secs["hs"].items
    elif it == "@@WPHI@@": fin.items += secs["wp"].items
    else: fin.items.append(it)
fin.raw("k_pf_start:")
for n in ("setup", "A", "help"): fin.items += secs[n].items
fin.raw('.section .rodata,"a"')
fin.raw(""".p2align 6
.amdhsa_kernel %s
  .amdhsa_next_free_vgpr 256
  .amdhsa_next_free_sgpr 102
  .amdhsa_accum_offset 256
  .amdhsa_group_segment_fixed_size 0
  .amdhsa_kernarg_size 80
  .amdhsa_user_sgpr_count 2
  .amdhsa_user_sgpr_kernarg_segment_ptr 1
  .amdhsa_system_sgpr_workgroup_id_x 1
.end_amdhsa_kernel""" % KN)
out = [x for x in sys.argv[1:] if not x.startswith("--")][0]
open(out, "w").write(fin.finish())
```

```python
import sys, struct
from asmlib import Asm, LgkmQ, Ins

NAME = "concat_heads__sliding_local_dilated__linear_kernel_hedgehog__prompt"
KN = NAME + "_kernel"
OPT = lambda o: ("--" + o) in sys.argv
AV = lambda n, d: int([x for x in sys.argv if x.startswith("--%s=" % n)][0].split("=")[1]) if any(x.startswith("--%s=" % n) for x in sys.argv) else d
STAMP = OPT("stamp"); NT = " nt" if OPT("nt") else ""
NSHA = AV("nsha", 0); NSHB = AV("nshb", 0); NPRE = AV("npre", 16); NPRE1 = AV("npre1", 10); PRE_AT = AV("preat", 4); LSLP = AV("lslp", 0); CSLP = AV("cslp", 0)
def f2u(x): return struct.unpack("<I", struct.pack("<f", x))[0]

FLG = 163584
F_FREE = 16
F_AUX = 32
F_XR = 48
F_HX = 80
F_KVR = 96
F_KVD = 112
F_FULL = 128
F_WO = 216
F_WO2 = 220
F_P2P = 0
A_SLOT = 49152; A_XB = 18432; SEC = 10240
A_EXCH = 49152
A_WO = [75776, 101376, 126976, 0]
B_S1 = 47104; B_XB = 16384
IMG = 90112; IMG_RS = 544; IMG_V = 320
WPHI = 159744; ZERO = 162944
B_WO = [51200, 0, 25600, 102624]
B_HX = 76800
B_HQ = 0
O_BR = 64 * 40960
PART = 8 << 20
CNT = 9 << 20
STAMP_OFF = 16 << 20
WS_BYTES = 268435456
SPIN = 0x100000
DG_O = 0; DG_K = 128

class Sec(Asm): pass
cur = [None]
def a(s): cur[0](s)
class _A:
    def __call__(self, s): cur[0](s)
    def raw(self, s): cur[0].raw(s)
    def label(self, s): cur[0].label(s)
    @property
    def items(self): return cur[0].items
a = _A()
secs = {}
def section(n):
    secs[n] = Asm(); cur[0] = secs[n]

def q4(r): return "v[%d:%d]" % (r, r + 3)
def q2(r): return "v[%d:%d]" % (r, r + 1)
def srd(n, lo, nbytes):
    a("s_mov_b32 s%d, s%d\ns_mov_b32 s%d, s%d\ns_mov_b32 s%d, %d\ns_mov_b32 s%d, 0x20000" % (n, lo, n + 1, lo + 1, n + 2, nbytes, n + 3))
def stamp(i):
    if STAMP: a("s_memtime s[%d:%d]" % (80 + 2 * i, 81 + 2 * i))
def stamp_store():
    if not STAMP: return
    a("s_waitcnt lgkmcnt(0)")
    for i in range(1, 10): a("s_sub_u32 s%d, s%d, s80" % (80 + 2 * i, 80 + 2 * i))
    a("s_mov_b64 exec, 1")
    for i in range(10): a("v_mov_b32 v%d, s%d" % (100 + i, 80 + 2 * i))
    a("v_mov_b32 v110, 0\nv_mov_b32 v111, 0")
    a("s_lshl_b32 s9, s2, 3\ns_add_u32 s9, s9, s8\ns_lshl_b32 s9, s9, 6\ns_add_u32 s9, s9, %d" % STAMP_OFF)
    a("v_mov_b32 v112, 0")
    a("buffer_store_dwordx4 v[100:103], v112, s[44:47], s9 offen")
    a("buffer_store_dwordx4 v[104:107], v112, s[44:47], s9 offen offset:16")
    a("buffer_store_dwordx4 v[108:111], v112, s[44:47], s9 offen offset:32")
uid = [0]
def L(p):
    uid[0] += 1; return "%s_%d" % (p, uid[0])
def cvt(d, s, o=None): (o or a)("v_cvt_pk_bf16_f32 v%d, v%d, v%d" % (d, s, s + 1))
def smf(d, A, B, C, o=None): (o or a)("v_mfma_f32_16x16x32_bf16 %s, %s, %s, %s" % (q4(d), q4(A), q4(B), C))
def merge(streams):
    its = [list(s.items) for s in streams]
    while any(its):
        for it in its:
            if it: a.items.append(it.pop(0))
def spin_tail(top, ok, sleep, bound):
    if sleep: a("s_sleep %d" % sleep)
    a("s_add_u32 s14, s14, 1\ns_cmp_lt_u32 s14, %d\ns_cbranch_scc1 %s" % (bound, top))
    a.label(ok)
def lds_wait(off, nwords, thr, vt, vz="v0", sleep=1):
    top = L("lw"); ok = L("lwok")
    a("s_mov_b32 s14, 0")
    a.label(top)
    if nwords == 1: a("ds_read_b32 v%d, %s offset:%d" % (vt, vz, off))
    elif nwords == 2: a("ds_read_b64 %s, %s offset:%d" % (q2(vt), vz, off))
    else: a("ds_read_b128 %s, %s offset:%d" % (q4(vt), vz, off))
    if nwords == 8: a("ds_read_b128 %s, %s offset:%d" % (q4(vt + 4), vz, off + 16))
    a("s_waitcnt lgkmcnt(0)")
    if nwords == 2: a("v_min_u32 v%d, v%d, v%d" % (vt, vt, vt + 1))
    if nwords == 4: a("v_min3_u32 v%d, v%d, v%d, v%d\nv_min_u32 v%d, v%d, v%d" % (vt, vt, vt + 1, vt + 2, vt, vt, vt + 3))
    if nwords == 8:
        a("v_min3_u32 v%d, v%d, v%d, v%d\nv_min3_u32 v%d, v%d, v%d, v%d" % (vt, vt, vt + 1, vt + 2, vt + 3, vt + 3, vt + 4, vt + 5))
        a("v_min3_u32 v%d, v%d, v%d, v%d\nv_min_u32 v%d, v%d, v%d" % (vt, vt, vt + 6, vt + 7, vt, vt, vt + 3))
    a("v_readfirstlane_b32 s9, v%d\ns_cmp_ge_u32 s9, %s\ns_cbranch_scc1 %s" % (vt, thr, ok))
    spin_tail(top, ok, sleep, SPIN)
def lds_wait0(off, vt, vz="v0", sleep=1):
    if off == "@WT@": off, vz = 0, "v11"
    top = L("lz"); ok = L("lzok")
    a("s_mov_b32 s14, 0")
    a.label(top)
    a("ds_read_b32 v%d, %s offset:%d\ns_waitcnt lgkmcnt(0)\nv_readfirstlane_b32 s9, v%d\ns_cmp_eq_u32 s9, 0\ns_cbranch_scc1 %s" % (vt, vz, off, vt, ok))
    spin_tail(top, ok, sleep, SPIN)
def glb_wait(which, soff, thr, vt, sleep=1, vec=False):
    top = L("gw"); ok = L("gwok")
    a("s_mov_b32 s14, 0")
    a.label(top)
    if vec:
        a("buffer_load_dword v%d, v15, %s, %s offen sc1" % (vt, "s[44:47]" if which == 'ws' else "s[48:51]", soff))
        a("s_waitcnt vmcnt(0)\nv_readfirstlane_b32 s9, v%d" % vt)
    else:
        a("s_load_dword s9, %s, %s glc\ns_waitcnt lgkmcnt(0)" % ("s[34:35]" if which == 'ws' else "s[32:33]", soff))
    a("s_cmp_ge_u32 s9, %s\ns_cbranch_scc1 %s" % (thr, ok))
    spin_tail(top, ok, sleep, SPIN // 16)
def srd_xw():
    a("""
    s_mov_b32 s38, 2621440
    s_mov_b32 s39, 0x20000
    s_mov_b32 s42, 2457600
    s_mov_b32 s43, 0x20000
    s_cmp_eq_u32 s5, 0
    s_waitcnt lgkmcnt(0)
    s_cselect_b32 s36, s16, s22
    s_cselect_b32 s37, s17, s23
    s_cselect_b32 s40, s18, s24
    s_cselect_b32 s41, s19, s25
    """)
def srd_rest(wait=True):
    if wait: a("s_waitcnt lgkmcnt(0)")
    a("""
    s_cmp_eq_u32 s5, 0
    s_cselect_b32 s56, s20, s28
    s_cselect_b32 s57, s21, s29
    s_mov_b32 s58, 819200
    s_mov_b32 s59, 0x20000
    """)
    srd(44, 34, WS_BYTES); srd(48, 32, 256); srd(52, 26, 25600); srd(60, 30, 2048 * 2560)
def lane_parts():
    a("""
    v_bfe_u32 v8, v1, 2, 2
    v_and_b32 v9, 3, v1
    v_lshrrev_b32 v10, 1, v2
    v_lshlrev_b32 v10, 4, v10
    v_and_b32 v11, 1, v2
    v_lshl_add_u32 v10, v11, 2, v10
    v_add_u32 v10, v10, v8
    """)
AD = (A_SLOT, A_SLOT, -2 * A_SLOT); BD = (B_S1, B_S1, -2 * B_S1)

section("entry")
a.raw(".globl %s\n.p2align 8\n.type %s,@function" % (KN, KN))
a.label(KN)
a("s_cmp_ge_u32 s2, 256\ns_cbranch_scc1 k_end")
a("s_load_dwordx16 s[16:31], s[0:1], 0\ns_load_dwordx4 s[32:35], s[0:1], 64")
if STAMP:
    for i in range(10): a("s_mov_b64 s[%d:%d], 0" % (80 + 2 * i, 81 + 2 * i))
if OPT("diag"): a("s_memtime s[80:81]\ns_memrealtime s[82:83]")
stamp(0)
a("""
v_lshrrev_b32 v4, 6, v0
v_and_b32 v1, 63, v0
v_readfirstlane_b32 s8, v4
s_and_b32 s3, s2, 7
s_lshr_b32 s5, s3, 2
s_lshr_b32 s4, s2, 3
s_and_b32 s6, s3, 1
s_lshl_b32 s6, s6, 3
s_and_b32 s9, s4, 7
s_add_u32 s6, s6, s9
s_bfe_u32 s7, s3, 0x10001
s_lshl_b32 s7, s7, 2
s_lshr_b32 s10, s4, 3
s_add_u32 s7, s7, s10
v_lshrrev_b32 v2, 4, v1
v_and_b32 v3, 15, v1
v_mov_b32 v15, 0
v_mov_b32 v0, %d
s_and_b32 s11, s8, 6
s_cmp_eq_u32 s11, 4
s_cbranch_scc1 k_ld
s_cmp_eq_u32 s8, 6
s_cselect_b32 s11, s5, 0
s_cmp_eq_u32 s11, 1
s_cbranch_scc0 k_nost
v_lshlrev_b32 v8, 4, v1
s_mul_i32 s9, s7, 3200
s_mov_b32 s54, 25600
s_mov_b32 s55, 0x20000
s_mov_b32 m0, WPHI_ADDR
s_waitcnt lgkmcnt(0)
s_mov_b32 s52, s26
s_mov_b32 s53, s27
buffer_load_dwordx4 v8, s[52:55], s9 offen lds
buffer_load_dwordx4 v8, s[52:55], s9 offen offset:1024 lds
buffer_load_dwordx4 v8, s[52:55], s9 offen offset:2048 lds
s_mov_b64 exec, 0xff
buffer_load_dwordx4 v8, s[52:55], s9 offen offset:3072 lds
s_mov_b64 exec, -1
k_nost:
@@PFC@@
s_barrier
s_branch k_notld
k_ld:
s_mul_i32 s10, s10, 5
s_lshr_b32 s10, s10, 1
s_add_u32 s12, s9, s10
s_lshr_b32 s9, s9, 2
s_add_u32 s12, s12, s9
s_cmp_ge_u32 s12, 10
s_cselect_b32 s9, 10, 0
s_sub_u32 s12, s12, s9
v_lshrrev_b32 v8, 3, v1
v_mul_u32_u24 v8, 1280, v8
v_and_b32 v9, 7, v1
v_xor_b32 v9, v9, v2
v_lshl_add_u32 v24, v9, 4, v8
v_xor_b32 v25, 64, v24
v_add_u32 v25, 9216, v25
v_add_u32 v26, 18432, v24
v_add_u32 v27, 18432, v25
v_mul_u32_u24 v8, 26, v1
v_lshrrev_b32 v8, 8, v8
v_mul_u32_u24 v9, 10, v8
v_sub_u32 v9, v1, v9
v_lshlrev_b32 v9, 4, v9
v_mul_u32_u24 v32, 3840, v8
v_add_u32 v32, v32, v9
v_add_u32 v33, %d, v32
v_add_u32 v34, %d, v32
v_add_u32 v35, %d, v32
s_cmp_eq_u32 s5, 0
s_cselect_b32 s9, 0x7ffffff0, 0
v_mov_b32 v4, s9
v_lshrrev_b32 v5, 1, v1
v_cmp_eq_u32 vcc, 4, v5
v_cndmask_b32 v6, v15, v4, vcc
s_mov_b32 s10, 0
s_mov_b32 s11, 0xcfffff
v_cndmask_b32 v6, v6, 1, s[10:11]
v_lshl_add_u32 v4, v1, 2, v0
s_and_b32 s10, s8, 1
s_cbranch_scc1 k_noinit
ds_write_b32 v4, v6
k_noinit:
s_mul_i32 s73, s10, 5120
s_mul_i32 s75, s10, 122880
s_mul_i32 s64, s6, 163840
s_sub_u32 s65, s64, 20480
s_cmp_eq_u32 s6, 0
s_cselect_b32 s65, 0, s65
s_mov_b32 s66, -1
s_mov_b32 s67, 0x0fffffff
s_mov_b32 s68, -1
s_mov_b32 s69, 0xff
s_mul_i32 s70, s7, 160
s_add_u32 s75, s75, s70
s_lshl_b32 s77, s10, 2
s_add_u32 s77, s77, %d
v_mov_b32 v7, 0x7fffff00
""" % (FLG, 2 * 15360 - 640, 15360 - 1280, 3 * 15360 - 1920, FLG + F_FULL))
PFC = """
s_cmp_eq_u32 s8, 7
s_cbranch_scc0 k_nopc
s_getpc_b64 s[10:11]
s_lshl_b32 s9, s4, 10
s_add_u32 s9, s9, 1024
s_add_u32 s10, s10, s9
s_addc_u32 s11, s11, 0
v_lshlrev_b32 v8, 4, v1
v_add_co_u32 v22, vcc, s10, v8
v_mov_b32 v23, s11
v_addc_co_u32 v23, vcc, 0, v23, vcc
global_load_dwordx4 v[24:27], v[22:23], off
v_add_co_u32 v22, vcc, 0x8000, v22
v_addc_co_u32 v23, vcc, 0, v23, vcc
s_cmp_lt_u32 s4, PF_EXTRA
s_cbranch_scc0 k_nopc
global_load_dwordx4 v[24:27], v[22:23], off
k_nopc:
"""
tmp = Asm(); tmp(PFC if OPT("pfcode") else "")
its = cur[0].items
k = [i for i, x in enumerate(its) if isinstance(x, Ins) and x.text == "@@PFC@@"][0]
its[k:k + 1] = tmp.items
srd_xw()
a("s_barrier")
srd(48, 32, 256)
stamp(8)
def issue_x(xs, halo):
    so = None; m0 = None
    for i in xs:
        if halo: base, k, j = ("s65", 0, i) if i < 2 else ("s64", (i - 2) // 4 * 4, (i - 2) % 4)
        else: base, k, j = "s64", i // 4 * 4, i % 4
        if m0 != i - j: a("s_add_u32 m0, s11, %d" % ((i - j) * 1024)); m0 = i - j
        if so != (base, k):
            if k: a("s_add_u32 s15, s74, %d" % (k * 10240))
            else: a("s_add_u32 s15, %s, s13" % base)
            so = (base, k)
        if not OPT("nodma"): a("buffer_load_dwordx4 v%d, s[36:39], s15 offen offset:%d%s lds" % (24 + j, j * 1024, NT))
def issue_w(xb):
    a("s_mov_b64 exec, s[68:69]\ns_add_u32 s76, s11, s73")
    for sec in range(3):
        for m in range(2):
            a("s_add_u32 m0, s76, %d\ns_add_u32 s15, s71, %d" % (xb + sec * SEC + m * 2560, sec * 1280 + m * 61440))
            for i in range(4):
                if not OPT("nodma"): a("buffer_load_dwordx4 v%d, s[40:43], s15 offen offset:%d%s lds" % (32 + i, i * 640, NT))
    a("""
    s_mov_b32 m0, s77
    s_mov_b64 exec, 1
    buffer_load_dword v7, s[48:51], 0 offen lds
    s_mov_b64 exec, -1
    s_add_u32 s77, s77, 8
    s_add_u32 s10, s10, 2
    """)
def free_wait():
    top = L("lp"); ok = L("lpok")
    early = L("le")
    a("s_mov_b32 s14, 0\ns_cmp_lt_u32 s10, 6\ns_cbranch_scc0 %s" % top)
    if OPT("nogate"): a("s_branch %s" % ok)
    else:
        a("s_cmp_lt_u32 s10, 3\ns_cbranch_scc1 %s\ns_bitcmp0_b32 s10, 0\ns_cbranch_scc1 %s\ns_sub_u32 s9, s77, 12\nv_mov_b32 v22, s9" % (ok, ok))
        lds_wait0(0, 16, vz="v22")
        a("s_branch %s" % ok)
    a.label(top)
    a("""
    ds_read_b128 v[16:19], v0 offset:%d
    ds_read_b64 v[20:21], v0 offset:%d
    s_waitcnt lgkmcnt(0)
    v_min3_u32 v16, v16, v17, v18
    v_min3_u32 v16, v16, v19, v20
    v_min_u32 v16, v16, v21
    v_readfirstlane_b32 s9, v16
    s_add_u32 s9, s9, 5
    s_cmp_ge_u32 s9, s10
    s_cbranch_scc1 %s
    """ % (F_FREE, F_AUX, ok))
    spin_tail(top, ok, LSLP, SPIN)
    if OPT("cnt"): a("s_add_u32 s98, s98, s14\ns_cmp_gt_u32 s14, 0\ns_cselect_b32 s9, 0x10000, 0\ns_add_u32 s98, s98, s9")
def load_loop(xs, xb, halo, deltas, nsh, first=True, end=20):
    lbl = L("ld"); nx = L("nx")
    if nsh and first: a("s_cmp_ge_u32 s12, %d\ns_cselect_b32 s9, %d, 0\ns_sub_u32 s79, s12, s9\ns_add_u32 s79, s79, %d\ns_mov_b32 s12, 0" % (10 - nsh, 10 - nsh, nsh))
    if first: a("s_mov_b32 s11, 0\ns_mov_b32 s100, %d\ns_mov_b32 s101, %d\ns_mov_b32 s72, %d" % deltas)
    a.label(lbl)
    a("""
    s_lshl_b32 s13, s12, 7
    s_mul_i32 s71, s12, %d
    s_add_u32 s71, s71, s75
    s_add_u32 s74, s64, s13
    """ % (64 * 3840))
    if end > 2: free_wait()
    a("s_cmp_eq_u32 s8, 4\ns_cbranch_scc0 %s" % nx)
    issue_x(xs, halo)
    a.label(nx)
    issue_w(xb)
    a("s_add_u32 s12, s12, 1\ns_cmp_eq_u32 s12, 10\ns_cselect_b32 s12, %d, s12" % nsh)
    if nsh: a("s_lshr_b32 s9, s10, 1\ns_cmp_eq_u32 s9, %d\ns_cselect_b32 s12, s79, s12" % nsh)
    a("""
    s_add_u32 s11, s11, s100
    s_mov_b32 s9, s100
    s_mov_b32 s100, s101
    s_mov_b32 s101, s72
    s_mov_b32 s72, s9
    s_cmp_lt_u32 s10, %d
    s_cbranch_scc1 %s
    """ % (end, lbl))
def wo_setup():
    a("v_mul_u32_u24 v28, 1280, v8\nv_add_u32 v28, v28, v9")
    for e in range(1, 4): a("v_add_u32 v%d, %d, v28" % (28 + e, e * (6 * 1280 - 960)))
def wo_phase(P, base):
    a("s_mov_b64 exec, s[66:67]")
    for q in range(27):
        if q % 4 == 0: a("s_mov_b32 m0, %d\ns_add_u32 s15, s70, %d" % (base + q * 960, (160 * P + 6 * q) * 1280))
        if q == 26: a("s_mov_b64 exec, s[68:69]")
        a("buffer_load_dwordx4 v%d, s[56:59], s15 offen offset:%d lds" % (28 + q % 4, (q % 4) * 960))
    a("s_mov_b64 exec, -1")
def wo_done():
    a("s_mov_b32 m0, %d\ns_mov_b64 exec, 1\nbuffer_load_dword v7, s[48:51], 0 offen lds\ns_mov_b64 exec, -1" % (FLG + F_WO))
a("s_cmp_eq_u32 s5, 0\ns_cbranch_scc1 k_lA")
load_loop(range(16), B_XB, False, BD, NSHB, end=2)
a.raw("@@HSETUP@@")
load_loop(range(16), B_XB, False, BD, NSHB, first=False)
stamp(2)
a.raw("@@WPHI@@")
a("s_cmp_eq_u32 s8, 4\ns_cbranch_scc0 k_hB2")
lds_wait(F_FREE, 4, "16", 16)
wo_phase(0, B_WO[0])
a("s_branch k_hB2")
a.label("k_lA")
load_loop(range(18), A_XB, True, AD, NSHA)
stamp(2)
a("s_cmp_eq_u32 s8, 4\ns_cbranch_scc0 k_end")
srd_rest(False)
wo_setup()
lds_wait(F_FREE, 4, "18", 16)
for P in range(3): wo_phase(P, A_WO[P])
lds_wait(F_FREE, 4, "20", 16)
wo_phase(3, A_WO[3])
wo_done()
a("s_mov_b32 s56, s28\ns_mov_b32 s57, s29\ns_and_b32 s10, s7, 3\ns_mov_b32 s11, 1")
a.label("k_wb")
lds_wait(F_P2P, 4, "s11", 16, sleep=2)
a("s_mul_i32 s12, s10, 25600\ns_add_u32 s12, s12, %d\ns_cmp_eq_u32 s10, 3\ns_cselect_b32 s12, 0, s12\ns_mul_i32 s13, s10, %d\ns_add_u32 s13, s13, s70" % (A_WO[0], 160 * 1280))
a("s_mov_b64 exec, s[66:67]")
for q in range(27):
    if q % 4 == 0: a("s_add_u32 m0, s12, %d\ns_add_u32 s15, s13, %d" % (q * 960, 6 * q * 1280))
    if q == 26: a("s_mov_b64 exec, s[68:69]")
    a("buffer_load_dwordx4 v%d, s[56:59], s15 offen offset:%d lds" % (28 + q % 4, (q % 4) * 960))
a("s_mov_b64 exec, -1\ns_add_u32 s10, s10, 1\ns_and_b32 s10, s10, 3\ns_add_u32 s11, s11, 1\ns_cmp_lt_u32 s11, 5\ns_cbranch_scc1 k_wb")
a("s_mov_b32 m0, %d\ns_mov_b64 exec, 1\nbuffer_load_dword v7, s[48:51], 0 offen lds" % (FLG + F_WO2))
if STAMP: a("s_waitcnt vmcnt(0)")
stamp(3)
stamp_store()
a("s_endpgm")

ACC = 128
def acc(j, t): return ACC + j * 8 + t * 4
RING = 16; XF = 56; XH = 76; HACC = 84
def gemm_loop(br, secbase, flip, deltas, xoff=0, halo=None, D=5, areg=(4, 5, 6, 7), pre=None):
    halo = halo or {}
    tiles = [(j // 5, j % 5, j) for j in range(15)]
    items = [(kap, tl) for kap in range(2) for tl in tiles]; N = len(items)
    RN = 10
    Q = LgkmQ(15)
    nx = 3 if halo else 2
    def xr(kap, t):
        if t < 2: return (Ins("ds_read_b128 %s, v%d offset:%d" % (q4(XF + kap * 8 + t * 4), 6 + kap, xoff + t * 2048)), ("x", kap, t))
        return (Ins("ds_read_b128 %s, v%d" % (q4(XH + kap * 4), 6 + kap)), ("x", kap, t))
    def wreg(m):
        kap, (sec, t, j) = items[m]
        if br == 'B': return 4, 8 * t
        return (5, 40 * t) if t < 4 else (4, 32)
    def ir(m, hf):
        kap, (sec, t, j) = items[m]
        reg, toff = wreg(m)
        off = secbase + sec * SEC + (32 * kap + 8 * hf) * 160 + toff
        if OPT("noread"): return (Ins("s_nop 0"), None)
        return (Ins("ds_read_b64_tr_b16 %s, v%d offset:%d" % (q2(RING + (m % RN) * 4 + 2 * hf), reg, off)), ("w", m, hf))
    def emit(lst):
        for ins, tag in lst:
            a.items.append(ins)
            if tag is not None: Q.push(tag)
    lbl = L("gl")
    a("s_mov_b32 s10, 0\nv_mov_b32 v74, 0\nv_add_u32 v73, %d, v0" % (F_FULL + 4))
    a("s_mov_b32 s100, %d\ns_mov_b32 s101, %d\ns_mov_b32 s11, %d" % deltas)
    if pre: pre()
    lds_wait0(F_FULL, 72)
    stamp(1)
    emit([xr(0, t) for t in range(nx)] + [ir(m, hf) for m in range(D) for hf in range(2)])
    a.raw(".p2align 3")
    a.label(lbl)
    slow = L("slow"); back = L("back")
    mf = []; g0 = []
    for m in range(N):
        kap, (sec, t, j) = items[m]
        g0.append(len(mf))
        for t2 in range(2): mf.append((m, XF + kap * 8 + t2 * 4, acc(j, t2)))
        if j in halo: mf.append((m, XH + kap * 4, halo[j]))
    G = len(mf); g0.append(G)
    gaps = [[] for _ in range(G)]; load = [0] * G
    for m in range(2, N + 1, 2): load[g0[m] - 1] += 1
    sw = N - D
    for m in range(N):
        for hf in range(2):
            g = g0[m] + hf
            gaps[g].append(ir((m + D) % N, hf)); load[g] += 1
    def place(ins, lo, hi, tag=None):
        hi = max(lo, hi)
        g = min(range(lo, hi + 1), key=lambda x: (load[x], x))
        if isinstance(ins, str): ins = Ins(ins)
        gaps[g].append((ins, tag)); load[g] += 1
        return g
    gsw = g0[sw]; half = g0[N // 2]
    g = 0
    for t in range(nx):
        i, tg = xr(1, t); g = place(i, g, min(g0[N // 2 - D], g + 2), tg)
    g7 = g
    H = N // 2
    g = place("v_add_u32 v74, 1, v74", 4, g0[H - 1] - 1)
    gaps[g0[H - 1]].append((Ins("ds_write_b32 v14, v74"), ("fw", 0))); load[g0[H - 1]] += 1
    g = place("v_add_u32 v74, 1, v74", g0[H], g0[N - 2] - 1)
    gaps[g0[N - 2]].append((Ins("ds_write_b32 v14, v74"), ("fw", 1))); load[g0[N - 2]] += 1
    slow2 = L("slowb"); back2 = L("backb")
    gm = g0[H - D]; chk2 = H - D - 1 if (H - D - 1) % 2 == 0 else H - D - 2
    place("ds_read_b32 v75, v73", g0[chk2 - D + 1], g0[chk2 - D + 1] + 1, ("f2",))
    place("v_readfirstlane_b32 s12, v75", g0[chk2], min(g0[chk2] + 1, gm - 2))
    gaps[gm - 1] += [(Ins("s_cmp_eq_u32 s12, 0"), None), (Ins("s_cbranch_scc0 %s" % slow2), None), (back2 + ":", None)]
    load[gm - 1] += 2
    g = 0
    for t_ in ("s_mov_b32 s13, s100", "s_mov_b32 s100, s101", "s_mov_b32 s101, s11", "s_mov_b32 s11, s13"):
        g = place(t_, g, g + 3)
    grot = g
    chkm = sw - 1 if (sw - 1) % 2 == 0 else sw - 2
    gf = g0[chkm - D + 1]
    place("ds_read_b32 v72, v73 offset:4", gf, gf + 1, ("f",))
    place("v_readfirstlane_b32 s9, v72", g0[chkm], min(g0[chkm] + 1, gsw - 2))
    lastuse = {}
    for m in range(N - D): lastuse[wreg(m + D)[0]] = g0[m] + 1
    firstnext = {}
    for m in range(sw, N): firstnext.setdefault(wreg((m + D) % N)[0], g0[m])
    for r in areg:
        if r == 6: place("v_add_u32 v6, s13, v6", grot + 1, gsw - 1)
        elif r == 7: place("v_add_u32 v7, s13, v7", max(grot, g7) + 1, G - 1)
        else: place("v_add_u32 v%d, s13, v%d" % (r, r), max(lastuse.get(r, 0), grot), firstnext.get(r, G) - 1)
    gaps[gsw - 1] += [(Ins("s_cmp_eq_u32 s9, 0"), None), (Ins("s_cbranch_scc0 %s" % slow), None), (back + ":", None)]
    load[gsw - 1] += 2
    g = max(gsw, half)
    for t in range(nx):
        i, tg = xr(0, t); g = place(i, g, min(g + 1, G - 1), tg)
    place("v_add_u32 v73, 8, v73", gsw, G - 1)
    place("s_add_u32 s10, s10, 1", gsw, G - 2)
    if OPT("prof"):
        gaps[gsw].append((Ins("s_memtime s[96:97]"), None))
        gaps[7].append((Ins("s_mov_b32 m0, s10"), None)); gaps[8].append((Ins("v_writelane_b32 v255, s96, m0"), None))
    gaps[G - 1].append((Ins("s_cmp_lt_u32 s10, 10"), None))
    def body(dry):
        ws = []
        for gi, (m, xf, d) in enumerate(mf):
            kap, (sec, t, j) = items[m]
            if gi == g0[m] and m % 2 == 0:
                needs = [("w", m + 1, 1), ("w", m + 1, 0)] + [("x", items[m + 1][0], t2) for t2 in range(nx)]
                if m == chkm: needs.append(("f",))
                if m == chk2: needs.append(("f2",))
                cs = [(Q.count_after(tg), tg) for tg in needs if Q.count_after(tg) is not None]
                if cs:
                    c, tg = min(cs)
                    w = Q.wait(tg); ws.append(w)
                    if not dry: a("s_waitcnt lgkmcnt(%d)" % w)
                else: ws.append(99)
            wf = RING + (m % RN) * 4
            if dry:
                for ins, tag in gaps[gi]:
                    if tag is not None: Q.push(tag)
                continue
            if OPT("nomfma"): pass
            elif flip(j): smf(d, xf, wf, q4(d))
            else: smf(d, wf, xf, q4(d))
            emit(gaps[gi])
        return ws
    w1 = body(False); w2 = body(True)
    assert all(x <= y for x, y in zip(w1, w2)), (w1, w2)
    a("s_cbranch_scc1 %s" % lbl)
    a("s_waitcnt lgkmcnt(0)")
    if OPT("prof"):
        a("v_writelane_b32 v255, s96, 10\nv_subrev_u32 v255, s80, v255\ns_lshl_b32 s9, s2, 3\ns_add_u32 s9, s9, s8\ns_lshl_b32 s9, s9, 8\ns_add_u32 s9, s9, %d\nv_lshlrev_b32 v72, 2, v1\nbuffer_store_dword v255, v72, s[44:47], s9 offen" % (20 << 20))
    done = L("gd")
    a("s_branch %s" % done)
    a.label(slow)
    lds_wait0(4, 72, vz="v73", sleep=CSLP)
    if OPT("cnt"): a("s_add_u32 s88, s88, 0x10000\ns_add_u32 s88, s88, s14")
    a("s_branch %s" % back)
    a.label(slow2)
    lds_wait0(0, 72, vz="v73", sleep=CSLP)
    if OPT("cnt"): a("s_add_u32 s88, s88, 0x1000000\ns_add_u32 s88, s88, s14")
    a("s_branch %s" % back2)
    a.label(done)

section("setup")
a.label("k_notld")
a("s_cmp_ge_u32 s8, 6\ns_cbranch_scc1 k_h567")
lane_parts()
a("""
v_mul_u32_u24 v11, 160, v10
v_mad_u32_u24 v4, v9, 40, v11
v_lshl_add_u32 v5, v9, 3, v11
s_lshl_b32 s9, s8, 5
s_cmp_eq_u32 s5, 0
s_cselect_b32 s9, 0, s9
v_lshrrev_b32 v11, 1, v3
v_xor_b32 v11, v11, v2
v_lshlrev_b32 v11, 4, v11
v_add_u32 v12, s9, v3
v_lshl_add_u32 v6, v12, 7, v11
v_xor_b32 v7, 64, v6
s_lshl_b32 s9, s8, 2
s_add_u32 s9, s9, %d
v_add_u32 v14, s9, v0
""" % F_FREE)
for r in range(ACC, ACC + 120): a("v_mov_b32 v%d, 0" % r)
for r in range(HACC, HACC + 12): a("v_mov_b32 v%d, 0" % r)
srd_rest()
def ocnt_addr(wreg):
    a("""
    s_lshl_b32 s77, s5, 4
    s_add_u32 s77, s77, s6
    s_lshl_b32 s76, s77, 2
    s_add_u32 s76, s76, %s
    s_lshl_b32 s76, s76, 8
    s_add_u32 s76, s76, %d
    s_lshl_b32 s77, s77, 2
    s_add_u32 s77, s77, %d
    """ % (wreg, CNT, DG_O))
def o_addr(wreg):
    a("""
    v_lshlrev_b32 v8, 4, v1
    v_lshlrev_b32 v9, 3, v1
    s_lshl_b32 s9, s6, 2
    s_add_u32 s9, s9, %s
    s_mul_i32 s9, s9, 40960
    s_mul_i32 s10, s5, %d
    s_add_u32 s15, s9, s10
    s_mul_i32 s10, s7, 5120
    s_add_u32 s12, s15, s10
    s_add_u32 s13, s12, 2560
    """ % (wreg, O_BR))
ocnt_addr("s8")
a("s_cmp_eq_u32 s5, 0\ns_cbranch_scc1 k_A")

WP = 76
def wphi_load():
    lds_wait(F_AUX, 2, "1", 248)
    a("""
    v_bfe_u32 v8, v1, 2, 2
    v_and_b32 v9, 3, v1
    v_mul_u32_u24 v10, 800, v2
    v_mad_u32_u24 v10, v8, 40, v10
    v_add_u32 v10, %d, v10
    v_mov_b32 v11, %d
    v_cmp_eq_u32 vcc, v9, v2
    v_add_u32 v12, 640, v10
    v_cndmask_b32 v10, v11, v10, vcc
    v_cndmask_b32 v11, v11, v12, vcc
    """ % (WPHI, ZERO))
    for t in range(5): a("ds_read_b64_tr_b16 %s, v11 offset:%d" % (q2(WP + 10 * t + 8), t * 8))
    for t in range(5):
        for c in range(2):
            for hf in range(2): a("ds_read_b64_tr_b16 %s, v10 offset:%d" % (q2(WP + 10 * t + 4 * c + 2 * hf), c * 320 + hf * 160 + t * 8))
def set_l2e(): a("s_mov_b32 s64, 0x%08x\ns_mov_b32 s65, 0x%08x" % (f2u(1.4426950408889634), f2u(1.4426950408889634)))
def img_addr(wreg, tau):
    a("""
    s_lshl_b32 s9, %s, 5
    s_add_u32 s9, s9, %d
    v_add_u32 v12, s9, v3
    v_mul_u32_u24 v12, %d, v12
    v_add_u32 v12, %d, v12
    v_mul_u32_u24 v13, 80, v2
    v_add_u32 v126, v13, v12
    v_mad_u32_u24 v127, v2, 48, v12
    s_mul_i32 s9, %s, 3072
    s_add_u32 s9, s9, %d
    v_lshlrev_b32 v13, 4, v1
    v_add_u32 v13, s9, v13
    """ % (wreg, 16 * tau, IMG_RS, IMG, wreg, B_HX))
def preB():
    wphi_load(); img_addr("s8", 0); set_l2e()
gemm_loop('B', B_XB, lambda j: False, BD, areg=(4, 6, 7), pre=preB)
stamp(2)
def pack20(sec, tau, dst, o=None):
    for t in range(5):
        cvt(dst + 2 * t, acc(5 * sec + t, tau), o); cvt(dst + 2 * t + 1, acc(5 * sec + t, tau) + 2, o)
def pmf(P, src, o=None):
    o = o or a
    for t in range(5): o("v_mfma_f32_16x16x16_bf16 %s, %s, %s, 0" % (q4(P + 4 * t), q2(WP + 10 * t + 8), q2(src + 8)))
    for c in range(2):
        for t in range(5): smf(P + 4 * t, WP + 10 * t + 4 * c, src + 4 * c, q4(P + 4 * t), o)
def softmax2(P, dst, tmp, tv, wr=None):
    p = [P + i for i in range(20)]
    A0, B0 = tv, tv + 2
    a("v_max3_f32 v%d, v%d, v%d, v%d" % (A0, p[0], p[1], p[2])); a("v_min3_f32 v%d, v%d, v%d, v%d" % (B0, p[0], p[1], p[2]))
    a("v_max3_f32 v%d, v%d, v%d, v%d" % (A0 + 1, p[3], p[4], p[5])); a("v_min3_f32 v%d, v%d, v%d, v%d" % (B0 + 1, p[3], p[4], p[5]))
    for i in range(6, 20, 4):
        a("v_max3_f32 v%d, v%d, v%d, v%d" % (A0, A0, p[i], p[i + 1])); a("v_min3_f32 v%d, v%d, v%d, v%d" % (B0, B0, p[i], p[i + 1]))
        if i + 2 < 20:
            a("v_max3_f32 v%d, v%d, v%d, v%d" % (A0 + 1, A0 + 1, p[i + 2], p[i + 3])); a("v_min3_f32 v%d, v%d, v%d, v%d" % (B0 + 1, B0 + 1, p[i + 2], p[i + 3]))
    a("v_max_f32 v%d, v%d, v%d\nv_min_f32 v%d, v%d, v%d" % (A0, A0, A0 + 1, B0, B0, B0 + 1))
    a("v_mul_f32 v%d, s64, v%d\nv_mul_f32 v%d, s64, v%d" % (A0, A0, B0, B0))
    for i in range(0, 20, 2):
        a("v_pk_fma_f32 %s, %s, s[64:65], %s op_sel_hi:[1,1,0] neg_lo:[1,0,0] neg_hi:[1,0,0]" % (q2(tmp + i), q2(p[i]), q2(B0)))
        a("v_pk_fma_f32 %s, %s, s[64:65], %s op_sel_hi:[1,1,0] neg_lo:[0,0,1] neg_hi:[0,0,1]" % (q2(p[i]), q2(p[i]), q2(A0)))
    for i in range(20): a("v_exp_f32 v%d, v%d" % (p[i], p[i]))
    for i in range(20):
        a("v_exp_f32 v%d, v%d" % (tmp + i, tmp + i))
        if i == 0: a("v_pk_add_f32 %s, %s, %s" % (q2(A0), q2(p[0]), q2(p[2])))
        elif i <= 8: a("v_pk_add_f32 %s, %s, %s" % (q2(A0), q2(A0), q2(p[2 + 2 * i])))
        elif i == 9: a("v_add_f32 v%d, v%d, v%d" % (A0, A0, A0 + 1))
        elif i == 10: a("v_rcp_f32 v%d, v%d" % (A0, A0))
    a("v_pk_add_f32 %s, %s, %s" % (q2(B0), q2(tmp), q2(tmp + 2)))
    for i in range(10):
        a("v_pk_mul_f32 %s, %s, %s op_sel_hi:[1,0]" % (q2(p[2 * i]), q2(p[2 * i]), q2(A0)))
        if i < 8: a("v_pk_add_f32 %s, %s, %s" % (q2(B0), q2(B0), q2(tmp + 4 + 2 * i)))
        elif i == 8: a("v_add_f32 v%d, v%d, v%d" % (B0, B0, B0 + 1))
        else: a("v_rcp_f32 v%d, v%d" % (B0, B0))
    for i in range(10):
        cvt(dst + i, p[2 * i])
        if wr and i in (3, 7): wr(i // 4, dst + i - 3)
    for i in range(10):
        a("v_pk_mul_f32 %s, %s, %s op_sel_hi:[1,0]" % (q2(tmp + 2 * i), q2(tmp + 2 * i), q2(B0)))
    for i in range(10):
        cvt(dst + 10 + i, tmp + 2 * i)
        if wr and (10 + i) % 4 == 3: wr((10 + i) // 4, dst + 10 + i - 3)
def phi_wr(m, r): a("ds_write_b128 v126, %s offset:%d" % (q4(r), 16 * m))
HK = 16
pack20(1, 1, HK)
lds_wait(F_FREE, 4, "18", 248)
for m in range(2): a("ds_write_b128 v13, %s offset:%d" % (q4(HK + 4 * m), 1024 * m))
a("ds_write_b128 v13, %s offset:2048" % q4(HK + 8))
a("v_mov_b32 v12, 1\nds_write_b32 v14, v12 offset:%d" % (F_HX - F_FREE))
PK = 28; VT = 40
pack20(1, 0, PK)
PP = acc(5, 0)
pmf(PP, PK)
a("v_mov_b32 v%d, 0x3f803f80\nv_mov_b32 v%d, 0x3f803f80\nv_mov_b32 v%d, 0x3f803f80\nv_mov_b32 v%d, 0x3f803f80" % (VT + 10, VT + 11, VT + 22, VT + 23))
for tau in range(2):
    pack20(2, tau, VT + 12 * tau)
    for m in range(3): a("ds_write_b128 v127, %s offset:%d" % (q4(VT + 12 * tau + 4 * m), IMG_V + tau * 16 * IMG_RS + 16 * m))
TM = acc(10, 0)
softmax2(PP, 16, TM, 248, phi_wr)
a("v_mov_b32 v12, 1\nds_write_b32 v14, v12 offset:%d" % (F_XR - F_FREE))
stamp(3)
pack20(0, 1, 40)
pack20(0, 0, 52)
PQ = acc(8, 0)
pmf(PQ, 52)
lds_wait(F_XR + 16 - F_FREE, 1, "1", 248, vz="v14")
for m in range(3): a("ds_write_b128 v13, %s offset:%d" % (q4(40 + 4 * m), 1024 * m))
a("v_mov_b32 v12, 2\nds_write_b32 v14, v12 offset:%d\ns_mov_b32 s78, 1" % (F_HX - F_FREE))
PHQ = 76
def kv_addr(KB):
    a("""
    v_lshrrev_b32 v8, 2, v3
    v_and_b32 v9, 3, v3
    v_mul_u32_u24 v10, 80, v2
    v_add_u32 v10, %d, v10
    v_mul_u32_u24 v11, %d, v9
    v_add_u32 v11, v11, v10
    v_add_u32 v10, %d, v10
    v_mov_b32 v12, %d
    v_cmp_eq_u32 vcc, v8, v2
    v_cndmask_b32 v%d, v12, v10, vcc
    v_cndmask_b32 v%d, v12, v11, vcc
    """ % (IMG, IMG_RS, 20 * IMG_RS, ZERO, KB + 5, KB))
    for t in range(1, 5): a("v_add_u32 v11, %d, v11\nv_cndmask_b32 v%d, v12, v11, vcc" % (4 * IMG_RS, KB + t))
OPK = 232
def o_compute(FR, OA):
    Q = LgkmQ(15)
    its = [(t, c) for c in range(5) for t in (5, 0, 1, 2, 3, 4)]
    def kread(m):
        t, c = its[m]
        a("ds_read_b128 %s, v%d offset:%d" % (q4(FR + (m % 12) * 4), 64 + t, c * 16)); Q.push(m)
    for m in range(11): kread(m)
    for m in range(30):
        t, c = its[m]
        if m % 2 == 0: a("s_waitcnt lgkmcnt(%d)" % Q.wait(m + 1))
        d = OA + 4 * t
        smf(d, FR + (m % 12) * 4, PHQ + 4 * c, "0" if c == 0 else q4(d))
        if m + 11 < 30: kread(m + 11)
    a("v_add_f32 v10, 0x%08x, v%d\nv_rcp_f32 v10, v10" % (f2u(1e-6), OA + 20))
    for i in range(10): a("v_pk_mul_f32 %s, %s, v[10:11] op_sel_hi:[1,0]" % (q2(OA + 2 * i), q2(OA + 2 * i)))
    for i in range(10): cvt(OPK + i, OA + 2 * i)
def o_store(base, regs):
    a("buffer_store_dwordx4 %s, v8, s[44:47], %s offen sc1" % (q4(regs), base))
    a("buffer_store_dwordx4 %s, v8, s[44:47], %s offen offset:1024 sc1" % (q4(regs + 4), base))
    a("buffer_store_dwordx2 %s, v9, s[44:47], %s offen offset:2048 sc1" % (q2(regs + 8), base))
kv_addr(64)
softmax2(PQ, PHQ, 212, 248)
o_addr("s8")
stamp(5)
lds_wait(F_KVR, 4, "1", 248)
stamp(6)
o_compute(16, 128)
o_store("s12", OPK)
a("s_mov_b32 s66, %d\ns_mov_b32 s67, %d\ns_mov_b32 s68, %d\ns_mov_b32 s69, %d\ns_mov_b32 s70, %d\ns_mov_b32 s71, %d" %
  (B_WO[0], B_WO[1], B_WO[2], B_WO[3], 8 * 160, 4 * 160))

def p2(tag, ntau, own_add, wotag, progress, fin):
    OF = 88; A2 = 48
    a("""
    v_bfe_u32 v5, v1, 2, 2
    v_and_b32 v6, 3, v1
    v_mad_u32_u24 v7, v2, 20, v5
    v_mul_u32_u24 v7, 160, v7
    v_lshl_add_u32 v252, v6, 3, v7
    v_lshl_add_u32 v7, v2, 2, v5
    v_mul_u32_u24 v7, 160, v7
    v_lshl_add_u32 v253, v6, 3, v7
    s_cmp_eq_u32 s78, 0
    s_cselect_b64 vcc, -1, 0
    v_cndmask_b32 v248, v252, v253, vcc
    s_and_b32 s74, s7, 3
    s_cmp_eq_u32 s74, 0
    s_cbranch_scc1 k_rot_done%s
    k_rot%s:
    s_mov_b32 s9, s66
    s_mov_b32 s66, s67
    s_mov_b32 s67, s68
    s_mov_b32 s68, s69
    s_mov_b32 s69, s9
    s_sub_u32 s74, s74, 1
    s_cmp_lg_u32 s74, 0
    s_cbranch_scc1 k_rot%s
    k_rot_done%s:
    s_sub_u32 s69, s69, s68
    s_sub_u32 s68, s68, s67
    s_sub_u32 s67, s67, s66
    s_and_b32 s74, s7, 3
    v_add_u32 v248, s66, v248
    v_add_u32 v252, s66, v252
    v_add_u32 v249, s71, v248
    v_add_u32 v250, s70, v248
    v_add_u32 v251, s70, v249
    """ % (tag, tag, tag, tag))
    for r in range(A2, A2 + 20 * ntau): a("v_mov_b32 v%d, 0" % r)
    a("""
    s_lshl_b32 s9, s6, 7
    s_lshl_b32 s10, s8, 5
    s_add_u32 s9, s9, s10
    v_add_u32 v4, s9, v3
    v_mul_u32_u24 v4, 2560, v4
    s_mul_i32 s10, s7, 160
    s_add_u32 s72, s72, s10
    s_add_u32 s73, s72, 40960
    v_and_b32 v5, 1, v2
    v_lshlrev_b32 v5, 5, v5
    v_lshrrev_b32 v6, 1, v2
    v_lshl_add_u32 v5, v6, 4, v5
    v_add_u32 v5, v5, v4
    v_lshl_add_u32 v6, v2, 3, v4
    v_mov_b32 v12, 1
    """)
    for P in range(4):
        a("s_add_u32 s9, s74, %d\ns_and_b32 s9, s9, 3\ns_mul_i32 s9, s9, 10240\ns_add_u32 s%d, s9, s15" % (P, 16 + 4 * P))
        for k in range(1, 4):
            if ntau == 2 or k == 2: a("s_add_u32 s%d, s%d, %d" % (16 + 4 * P + k, 16 + 4 * P, 2560 * k))
    if own_add: a("s_waitcnt vmcnt(0)\ns_mov_b64 exec, 1\nbuffer_atomic_add v12, v15, s[44:47], s76 offen sc1\ns_mov_b64 exec, -1")
    lds_wait0(wotag, 254)
    R2 = 16; RN2 = 8; D2 = 5 if ntau == 2 else 6
    Q = LgkmQ(15)
    its = [(P, c, t) for P in range(4) for c in range(5) for t in range(5)]
    def w2read(m, hf):
        P, c, t = its[m]
        if c < 4:
            G, p = divmod(c, 2)
            reg = 248 + p * 2 + hf; off = G * 80 * 160 + 32 * t
        else:
            reg = 252; off = (80 * hf + 16) * 160 + 32 * t
        a("ds_read_b64_tr_b16 %s, v%d offset:%d" % (q2(R2 + (m % RN2) * 4 + 2 * hf), reg, off)); Q.push((m, hf))
    for m in range(D2): w2read(m, 0); w2read(m, 1)
    glb_wait('ws', "s76", "8", 254, sleep=1)
    Q.clear()
    stamp(8 if own_add else 3)
    VQ = LgkmQ(63)
    VQ.push("atom")
    def of(P, c, tau): return OF + ((P * 5 + c) * ntau + tau) * 4
    olist = []
    for P in range(4):
        for c in range(4):
            gg, p = divmod(c, 2)
            for tau in range(ntau): olist.append(("x4", of(P, c, tau), 16 + 4 * P + 2 * gg + tau, p * 1024, (P, c, tau)))
        for tau in range(ntau):
            for gg in range(2): olist.append(("x2", of(P, 4, tau) + 2 * gg, 16 + 4 * P + 2 * gg + tau, 2048, (P, 4, tau, gg)))
    oi = [0]
    def oload():
        if oi[0] >= len(olist): return
        k, r, so, off, tg = olist[oi[0]]; oi[0] += 1
        if k == "x4": a("buffer_load_dwordx4 %s, v8, s[44:47], s%d offen offset:%d sc1" % (q4(r), so, off))
        else: a("buffer_load_dwordx2 %s, v9, s[44:47], s%d offen offset:%d sc1" % (q2(r), so, off))
        VQ.push(tg)
    for _ in range(NPRE if ntau == 2 else NPRE1): oload()
    def acc2(t, tau): return A2 + (t * ntau + tau) * 4
    for m in range(100):
        P, c, t = its[m]
        if t == 0:
            tg = (P, c, ntau - 1) if c < 4 else (P, 4, ntau - 1, 1)
            w = VQ.wait(tg)
            assert w is not None or tg not in [x[4] for x in olist[oi[0]:]]
            if w is not None: a("s_waitcnt vmcnt(%d)" % w)
        if m % 2 == 0:
            w = Q.wait((min(m + 1, 99), 1))
            if w is not None: a("s_waitcnt lgkmcnt(%d)" % w)
            if progress and m % 25 in (23, 24) and m < 90:
                a("v_mov_b32 v13, %d\nds_write_b32 v14, v13 offset:%d" % (m // 25 + 1, 256 + F_P2P - F_FREE - 256) if False else "")
        for tau in range(ntau):
            d = acc2(t, tau)
            smf(d, R2 + (m % RN2) * 4, of(P, c, tau), q4(d))
            if m + D2 < 100:
                if ntau == 2: w2read(m + D2, tau)
                else: w2read(m + D2, 0); w2read(m + D2, 1)
            if tau == ntau - 1 and m % 2 == 1: oload()
        if progress and m in (24, 50, 74, 98):
            a("v_mov_b32 v13, %d\nds_write_b32 v10, v13" % {24: 1, 50: 2, 74: 3, 98: 4}[m]); Q.push(("pg", m))
        mm = m + D2
        if mm < 100:
            Pm, cm, tm = its[mm]
            if Pm < 3 and tm == 4:
                if cm == 2: a("v_add_u32 v248, s%d, v248\nv_add_u32 v249, s%d, v249" % (67 + Pm, 67 + Pm))
                if cm == 3: a("v_add_u32 v250, s%d, v250\nv_add_u32 v251, s%d, v251" % (67 + Pm, 67 + Pm))
                if cm == 4: a("v_add_u32 v252, s%d, v252" % (67 + Pm))
    assert oi[0] == len(olist)
    OP = 88
    for tau in range(ntau):
        for t in range(5):
            cvt(OP + 12 * tau + 2 * t, acc2(t, tau)); cvt(OP + 12 * tau + 2 * t + 1, acc2(t, tau) + 2)
    for tau in range(ntau):
        for p in range(2):
            a("v_permlane16_swap_b32 v%d, v%d" % (OP + 12 * tau + 4 * p, OP + 12 * tau + 4 * p + 2))
            a("v_permlane16_swap_b32 v%d, v%d" % (OP + 12 * tau + 4 * p + 1, OP + 12 * tau + 4 * p + 3))
    for tau in range(ntau):
        for p in range(2):
            a("buffer_store_dwordx4 %s, v5, s[60:63], s%d offen offset:%d" % (q4(OP + 12 * tau + 4 * p), 72 + tau, 64 * p))
        a("buffer_store_dwordx2 %s, v6, s[60:63], s%d offen offset:128" % (q2(OP + 12 * tau + 8), 72 + tau))
    fin()
stamp(7)
a("s_mov_b32 s78, 1\ns_mov_b32 s72, 1280\ns_waitcnt vmcnt(0)\nv_mov_b32 v12, 1\ns_mov_b64 exec, 1\nbuffer_atomic_add v12, v15, s[44:47], s76 offen sc1\ns_mov_b64 exec, -1\nv_add_u32 v11, %d, v0" % F_WO)
a.label("k_P2h")
def finh():
    stamp(9); stamp_store(); a("s_endpgm")
p2h_marker = len(cur[0].items)
p2("h", 1, False, "@WT@", False, finh)

section("A")
a.label("k_A")
HT = [(5, 6, 7), (8, 9, 10), (11, 12), (13, 14)]
QOP = 16; KOP = 48; VOP = 96; SS = 128; EE = 192; POP = 208
for w in range(4):
    if w < 3: a("s_cmp_eq_u32 s8, %d\ns_cbranch_scc0 k_A%d" % (w, w + 1))
    halo = {j: HACC + 4 * i for i, j in enumerate(HT[w])}
    gemm_loop('A', A_XB, lambda j: j >= 10, AD, xoff=(16 + 32 * w) * 128, halo=halo)
    stamp(2)
    a("v_lshlrev_b32 v8, 4, v1\nv_lshlrev_b32 v9, 3, v1")
    for i, j in enumerate(HT[w]):
        cvt(16 + 2 * i, halo[j]); cvt(17 + 2 * i, halo[j] + 2)
    lds_wait(F_FREE, 4, "16", 248)
    for i, j in enumerate(HT[w]):
        if j < 9: a("ds_write_b64 v8, %s offset:%d" % (q2(16 + 2 * i), A_EXCH + (j - 5) * 1024))
        elif j == 9:
            for h in range(4): a("ds_write_b64 v8, %s offset:%d" % (q2(16 + 2 * i), A_EXCH + h * 1024 + 8))
        else: a("ds_write_b64 v9, %s offset:%d" % (q2(16 + 2 * i), A_EXCH + 4096 + (j - 10) * 512))
    a("v_mov_b32 v12, 1\ns_mov_b64 exec, 1\nds_add_u32 v0, v12 offset:%d\ns_mov_b64 exec, -1" % F_XR)
    if w < 3:
        a("s_branch k_Aep")
        a.label("k_A%d" % (w + 1))
a.label("k_Aep")
def packK(src, dst):
    for h in range(4):
        cvt(dst + 4 * h, src(h)); cvt(dst + 4 * h + 1, src(h) + 2)
        cvt(dst + 4 * h + 2, src(4)); cvt(dst + 4 * h + 3, src(4) + 2)
a("""
s_load_dword s78, s[32:33], s77
s_add_u32 s9, s77, 192
s_load_dword s79, s[32:33], s9
s_mul_i32 s9, s8, 6656
s_add_u32 s9, s9, %d
v_add_u32 v10, s9, v8
v_add_u32 v11, s9, v9
""" % A_EXCH)
packK(lambda t: acc(5 + t, 1), KOP + 32)
for t in range(5):
    cvt(VOP + 6 * t + 4, acc(10 + t, 1)); cvt(VOP + 6 * t + 5, acc(10 + t, 1) + 2)
a("s_cmp_eq_u32 s8, 3\ns_cbranch_scc1 k_A_nw")
for h in range(4): a("ds_write_b128 v10, %s offset:%d" % (q4(KOP + 32 + 4 * h), 6656 + h * 1024))
for t in range(5): a("ds_write_b64 v11, %s offset:%d" % (q2(VOP + 6 * t + 4), 6656 + 4096 + t * 512))
a("v_mov_b32 v12, 4\nds_write_b32 v14, v12 offset:%d" % (F_XR + 4 - F_FREE))
a.label("k_A_nw")
packK(lambda t: acc(5 + t, 0), KOP + 16)
for t in range(5):
    cvt(VOP + 6 * t + 2, acc(10 + t, 0)); cvt(VOP + 6 * t + 3, acc(10 + t, 0) + 2)
a("""
s_mov_b32 s66, 0xffff
s_mov_b32 s67, 0
s_mov_b32 s68, 0xffff0000
s_mov_b32 s69, 0
s_mov_b32 s70, 0
s_mov_b32 s71, 0xffff
s_mov_b32 s72, 0
s_mov_b32 s73, 0xffff0000
v_and_b32 v12, 1, v3
v_cmp_eq_u32 s[74:75], 1, v12
v_lshl_add_u32 v13, v2, 2, v12
v_cmp_ge_u32 s[100:101], v3, v13
v_add_u32 v13, 2, v13
v_cmp_ge_u32 vcc, v3, v13
""")
for tau in (1, 0):
    cvt(6, acc(4, tau)); cvt(7, acc(4, tau) + 2)
    for h in range(4):
        d = QOP + tau * 16 + 4 * h
        cvt(d, acc(h, tau)); cvt(d + 1, acc(h, tau) + 2)
        a("v_cndmask_b32 v%d, 0, v6, s[%d:%d]" % (d + 2, 66 + 2 * h, 67 + 2 * h))
        a("v_cndmask_b32 v%d, 0, v7, s[%d:%d]" % (d + 3, 66 + 2 * h, 67 + 2 * h))
def S(tau, h, p): return SS + ((tau * 4 + h) * 2 + p) * 4
for h in range(4):
    smf(S(1, h, 1), KOP + 32 + 4 * h, QOP + 16 + 4 * h, "0")
    smf(S(1, h, 0), KOP + 16 + 4 * h, QOP + 16 + 4 * h, "0")
for h in range(4): smf(S(0, h, 1), KOP + 16 + 4 * h, QOP + 4 * h, "0")
a("""
v_mov_b32 v12, 0x0c0c0100
v_mov_b32 v13, 0x01000c0c
v_cndmask_b32 v12, v12, v13, s[74:75]
v_mov_b32 v13, 0x0c0c0302
v_mov_b32 v6, 0x03020c0c
v_cndmask_b32 v13, v13, v6, s[74:75]
v_mov_b32 v6, 0x0c0c0c0c
v_cndmask_b32 v240, v12, v6, s[100:101]
v_cndmask_b32 v241, v13, v6, vcc
v_cndmask_b32 v242, v6, v12, s[100:101]
v_cndmask_b32 v243, v6, v13, vcc
s_or_b32 s9, s6, s8
s_cmp_eq_u32 s9, 0
s_cselect_b32 s9, 0xf149f2ca, 0
v_mov_b32 v244, s9
v_mov_b32 v245, s9
v_mov_b32 v246, s9
v_mov_b32 v247, s9
s_mov_b32 s64, 0x%08x
""" % f2u(0.22360679774997896 * 1.4426950408889634))
o_addr("s8")
lds_wait(F_XR - F_FREE, 1, "4", 248, vz="v14")
for h in range(4): a("ds_read_b128 %s, v10 offset:%d" % (q4(KOP + 4 * h), h * 1024))
for t in range(5): a("ds_read_b64 %s, v11 offset:%d" % (q2(VOP + 6 * t), 4096 + t * 512))
a("s_waitcnt lgkmcnt(5)")
for h in range(4): smf(S(0, h, 0), KOP + 4 * h, QOP + 4 * h, "v[244:247]")
def attn_tau(tau):
    o = Asm()
    E = EE + tau * 8; t0, t1, t2, t3 = (248, 249, 250, 251) if tau else (252, 253, 254, 255)
    for h in range(4):
        for i in range(2):
            cu = S(tau, h, 1) + 2 * i; prv = S(tau, h, 0) + 2 * i
            x, y = (t0, t1) if i == 0 else (t2, t3)
            o("v_cndmask_b32 v%d, v%d, v%d, s[74:75]" % (x, cu, cu + 1))
            o("v_cndmask_b32 v%d, v%d, v%d, s[74:75]" % (y, prv, prv + 1))
        for i in range(2):
            x, y = (t0, t1) if i == 0 else (t2, t3)
            o("v_cndmask_b32 v%d, v%d, v%d, %s" % (E + i * 4 + h, y, x, "s[100:101]" if i == 0 else "vcc"))
    for b in (E, E + 4):
        o("v_permlane32_swap_b32 v%d, v%d" % (b, b + 2)); o("v_permlane32_swap_b32 v%d, v%d" % (b + 1, b + 3))
    for b in (E, E + 4):
        o("v_permlane16_swap_b32 v%d, v%d" % (b, b + 1)); o("v_permlane16_swap_b32 v%d, v%d" % (b + 2, b + 3))
    o("v_max3_f32 v%d, v%d, v%d, v%d" % (t0, E, E + 1, E + 2))
    o("v_max3_f32 v%d, v%d, v%d, v%d" % (t1, E + 4, E + 5, E + 3))
    o("v_max3_f32 v%d, v%d, v%d, v%d" % (t0, t0, E + 6, E + 7))
    o("v_max_f32 v%d, v%d, v%d" % (t0, t0, t1))
    o("v_mul_f32 v%d, s64, v%d" % (t0, t0))
    for i in range(8): o("v_fma_f32 v%d, v%d, s64, -v%d" % (E + i, E + i, t0))
    for i in range(8): o("v_exp_f32 v%d, v%d" % (E + i, E + i))
    o("v_add_f32 v%d, v%d, v%d" % (t0, E, E + 1)); o("v_add_f32 v%d, v%d, v%d" % (t1, E + 2, E + 3))
    o("v_add_f32 v%d, v%d, v%d" % (t2, E + 4, E + 5)); o("v_add_f32 v%d, v%d, v%d" % (t3, E + 6, E + 7))
    o("v_add_f32 v%d, v%d, v%d" % (t0, t0, t1)); o("v_add_f32 v%d, v%d, v%d" % (t2, t2, t3))
    o("v_add_f32 v%d, v%d, v%d" % (t0, t0, t2)); o("v_rcp_f32 v%d, v%d" % (t0, t0))
    for i in range(8): o("v_mul_f32 v%d, v%d, v%d" % (E + i, E + i, t0))
    for j in range(4): o("v_cvt_pk_bf16_f32 v%d, v%d, v%d" % (E + j, E + j, E + 4 + j))
    o("v_permlane32_swap_b32 v%d, v%d" % (E, E + 2)); o("v_permlane32_swap_b32 v%d, v%d" % (E + 1, E + 3))
    o("v_permlane16_swap_b32 v%d, v%d" % (E, E + 1)); o("v_permlane16_swap_b32 v%d, v%d" % (E + 2, E + 3))
    P = POP + tau * 16
    for h in range(4):
        for j in range(4): o("v_perm_b32 v%d, v%d, v%d, v%d" % (P + 4 * h + j, E + h, E + h, 240 + j))
    for h in range(4):
        smf(S(tau, h, 0), VOP + 6 * h + 2 * tau, P + 4 * h, "0", o)
        smf(S(tau, h, 1), VOP + 24 + 2 * tau, P + 4 * h, "0", o)
    return o
a("s_waitcnt lgkmcnt(0)")
merge([attn_tau(1), attn_tau(0)])
OA = 208
for tau in (1, 0):
    for h in range(4):
        cvt(OA + 12 * tau + 2 * h, S(tau, h, 0)); cvt(OA + 12 * tau + 2 * h + 1, S(tau, h, 0) + 2)
for h in range(4):
    a("s_mov_b64 exec, s[%d:%d]" % (66 + 2 * h, 67 + 2 * h))
    for tau in range(2):
        cvt(OA + 12 * tau + 8, S(tau, h, 1)); cvt(OA + 12 * tau + 9, S(tau, h, 1) + 2)
a("s_mov_b64 exec, -1")
o_store("s12", OA); o_store("s13", OA + 12)
a("s_mov_b32 s66, %d\ns_mov_b32 s67, %d\ns_mov_b32 s68, %d\ns_mov_b32 s69, %d\ns_mov_b32 s70, %d\ns_mov_b32 s71, %d" %
  (A_WO[0], A_WO[1], A_WO[2], A_WO[3], 40 * 160, 20 * 160))
stamp(7)
a("s_waitcnt lgkmcnt(0)\ns_and_b32 s78, s78, s79\ns_cmp_ge_u32 s78, 1\ns_cbranch_scc1 k_zok")
glb_wait('dbg', "s77", "1", 254, vec=True)
a("s_add_u32 s77, s77, 192")
glb_wait('dbg', "s77", "1", 254, vec=True)
a.label("k_zok")
a("s_mov_b32 s78, 0\ns_mov_b32 s72, 0\nv_subrev_u32 v10, %d, v14" % (F_FREE - F_P2P))
def finA():
    stamp(4)
    a("s_mov_b32 s66, %d\ns_mov_b32 s67, %d\ns_mov_b32 s68, %d\ns_mov_b32 s69, %d\ns_mov_b32 s70, %d\ns_mov_b32 s71, %d" %
      (A_WO[0], A_WO[1], A_WO[2], A_WO[3], 8 * 160, 4 * 160))
    a("s_mov_b32 s78, 1\ns_mov_b32 s72, %d\ns_add_u32 s15, s15, %d\ns_add_u32 s76, s76, %d\nv_add_u32 v11, %d, v0\ns_branch k_P2h" % (1280 + 40960, O_BR + 2560, 48 * 1024, F_WO2))
p2("A", 2, True, F_WO, True, finA)

section("help")
a.label("k_h567")
srd_rest()
a("""
v_mov_b32 v16, 0
v_mov_b32 v17, 0
v_mov_b32 v18, 0
v_mov_b32 v19, 0
v_mov_b32 v20, 1
v_lshlrev_b32 v8, 4, v1
""")
a("""
s_cmp_eq_u32 s5, 0
s_cbranch_scc0 k_noz
s_cmp_eq_u32 s8, 7
s_cbranch_scc0 k_noz
s_cmp_lt_u32 s7, 4
s_cbranch_scc0 k_noz
""")
a("""
s_cmp_eq_u32 s7, 2
s_cselect_b32 s9, s6, 0
s_cmp_ge_u32 s9, 8
s_cbranch_scc1 k_noz
""")
lds_wait0(F_FULL + 4 * AV("zat", 3), 248, sleep=4)
a("""
s_lshl_b32 s75, s7, 4
s_add_u32 s75, s75, s6
s_lshl_b32 s74, s75, 10
s_add_u32 s74, s74, %d
s_lshl_b32 s75, s75, 2
s_add_u32 s75, s75, %d
v_lshlrev_b32 v9, 8, v1
s_mov_b64 exec, 15
buffer_store_dword v16, v9, s[44:47], s74 offen sc1
s_mov_b64 exec, 1
s_waitcnt vmcnt(0)
buffer_store_dword v20, v15, s[48:51], s75 offen sc1
s_mov_b64 exec, -1
k_noz:
""" % (CNT, DG_O))
PFAT = AV("pfat", 12)
def pfwo():
    a("""
    v_lshlrev_b32 v8, 4, v1
    s_sub_u32 s9, s8, 6
    s_mul_i32 s9, s9, 10
    s_mul_i32 s10, s4, 20
    s_add_u32 s9, s9, s10
    s_mul_i32 s9, s9, 1280
    s_lshr_b32 s10, s7, 2
    s_mul_i32 s10, s10, 640
    s_add_u32 s9, s9, s10
    s_mov_b32 s66, -1
    s_mov_b32 s67, 0xff
    s_mov_b64 exec, s[66:67]
    """)
    for i in range(10):
        a("buffer_load_dwordx4 v[24:27], v8, s[56:59], s9 offen%s\ns_add_u32 s9, s9, 1280" % NT)
    a("s_mov_b64 exec, -1")
if not OPT("nopfwo"):
    if PFAT < 0: pfwo()
    else:
        a("s_cmp_eq_u32 s5, 0\ns_cbranch_scc0 k_pfskip")
        lds_wait0(F_FULL + 4 * PFAT, 248, sleep=8)
        pfwo()
        lds_wait0(F_FULL + 4 * 18, 248, sleep=8)
        a("s_mov_b32 s56, s28\ns_mov_b32 s57, s29")
        pfwo()
        a.label("k_pfskip")
a("s_cmp_eq_u32 s5, 0\ns_cbranch_scc1 k_end")
a("""
s_cmp_eq_u32 s8, 6
s_cbranch_scc1 k_h67Bz
""")
a("s_mov_b32 s66, -1\ns_mov_b32 s67, 0xff\ns_mov_b64 exec, s[66:67]\nv_add_u32 v9, %d, v8\nds_write_b128 v9, v[16:19]\ns_mov_b64 exec, -1" % ZERO)
a.label("k_h67Bz")
a("s_waitcnt vmcnt(%d) lgkmcnt(0)\ns_lshl_b32 s9, s8, 2\nv_add_u32 v9, s9, v0" % (0 if OPT("nopfwo") or PFAT >= 0 else 10))
a("v_mov_b32 v12, 0x7ffffff0\nds_write_b32 v9, v12 offset:%d" % (F_AUX - 24))
def hsetup(wphi=True):
    srd_rest(False)
    a("""
    s_sub_u32 s16, s8, 4
    v_mul_u32_u24 v8, 26, v1
    v_lshrrev_b32 v8, 8, v8
    v_mul_u32_u24 v9, 10, v8
    v_sub_u32 v9, v1, v9
    v_lshlrev_b32 v9, 4, v9
    v_mov_b32 v7, 0x7fffff00
    s_mov_b32 s66, -1
    s_mov_b32 s67, 0x0fffffff
    s_mov_b32 s68, -1
    s_mov_b32 s69, 0xff
    s_mul_i32 s70, s7, 160
    s_lshl_b32 s9, s16, 2
    v_add_u32 v14, s9, v0
    """)
    wo_setup()
    if wphi: wphi_load()
    img_addr("s16", 1)
    lane_parts()
    a("""
    s_add_u32 s22, s6, 48
    s_add_u32 s23, s6, 16
    s_lshl_b32 s23, s23, 2
    s_lshl_b32 s21, s22, 2
    s_add_u32 s21, s21, s16
    s_lshl_b32 s21, s21, 8
    s_add_u32 s21, s21, %d
    s_lshl_b32 s22, s22, 2
    s_add_u32 s22, s22, %d
    s_lshl_b32 s18, s7, 2
    s_add_u32 s18, s18, s16
    s_lshl_b32 s17, s18, 15
    s_add_u32 s17, s17, %d
    s_lshl_b32 s18, s18, 8
    s_add_u32 s18, s18, %d
    s_lshl_b32 s19, s7, 2
    s_add_u32 s19, s19, %d
    s_mul_i32 s20, s16, 80
    s_add_u32 s20, s20, %d
    v_mul_u32_u24 v4, %d, v10
    v_lshl_add_u32 v4, v9, 3, v4
    v_add_u32 v5, %d, v4
    v_add_u32 v4, s20, v4
    s_mul_i32 s9, s16, 48
    v_add_u32 v5, s9, v5
    v_mul_u32_u24 v6, %d, v3
    v_lshl_add_u32 v6, v2, 3, v6
    v_add_u32 v6, s20, v6
    """ % (CNT, DG_O, PART, CNT + 128 * 256, DG_K, IMG, IMG_RS, IMG + IMG_V, IMG_RS))
    def unit_addr(dst, ureg, clamp):
        if clamp: a("v_min_u32 v%d, 104, v%d" % (ureg, ureg))
        a("""
        v_mul_u32_u24 v8, 205, v%d
        v_lshrrev_b32 v8, 10, v8
        v_min_u32 v8, 22, v8
        v_mul_u32_u24 v9, 5, v8
        v_sub_u32 v9, v%d, v9
        v_min_u32 v9, 4, v9
        v_mul_u32_u24 v%d, %d, v8
        v_lshl_add_u32 v%d, v9, 4, v%d
        v_add_u32 v%d, s20, v%d
        """ % (ureg, ureg, dst, IMG_RS, dst, dst, dst, dst))
    a("v_mov_b32 v10, v1"); unit_addr(236, 10, True)
    a("v_add_u32 v10, 64, v1"); unit_addr(237, 10, True)
    for k in range(4):
        a("v_lshrrev_b32 v10, 1, v2\nv_lshl_add_u32 v10, v10, 4, v3\nv_add_u32 v10, %d, v10" % (32 * k))
        unit_addr(70 + k, 10, False)
        a("v_and_b32 v10, 1, v2\nv_lshl_add_u32 v%d, v10, 3, v%d" % (70 + k, 70 + k))
    a("""
    v_and_b32 v8, 1, v3
    v_mov_b32 v9, 0x3f80
    v_mov_b32 v10, 0x3f800000
    v_cmp_eq_u32 vcc, 1, v8
    v_cndmask_b32 v9, v9, v10, vcc
    v_lshrrev_b32 v8, 1, v3
    """)
    for hi in range(2):
        for r in range(4):
            a("v_lshl_add_u32 v10, v2, 2, %d\nv_cmp_eq_u32 vcc, v10, v8\nv_cndmask_b32 v%d, v15, v9, vcc" % (r - 8 * hi, 240 + 4 * hi + r))
    kv_addr(64)

hsetup()
if PFAT >= 0:
    lds_wait0(F_FULL + 4 * PFAT, 248, sleep=8)
    pfwo()
    a("s_mov_b32 s66, -1\ns_mov_b32 s67, 0x0fffffff")
a("s_cmp_eq_u32 s8, 6\ns_cbranch_scc1 k_hB2")
lds_wait0(F_FULL + 56, 248, sleep=8)
a("s_load_dword s9, s[32:33], s19\ns_load_dword s10, s[32:33], s22\ns_load_dword s11, s[32:33], s23\ns_waitcnt lgkmcnt(0)\ns_and_b32 s9, s9, s10\ns_and_b32 s9, s9, s11\ns_cmp_ge_u32 s9, 1\ns_cbranch_scc1 k_hB2")
glb_wait('dbg', "s19", "1", 12, vec=True)
glb_wait('dbg', "s23", "1", 12, vec=True)
glb_wait('dbg', "s22", "1", 12, vec=True)
a.label("k_hB2")
set_l2e()
if AV("hprio", 0): a("s_setprio %d" % AV("hprio", 0))
lds_wait(F_HX, 1, "1", 248, vz="v14")
stamp(1)
for m in range(3): a("ds_read_b128 %s, v13 offset:%d" % (q4(36 + 4 * m), 1024 * m))
a("s_waitcnt lgkmcnt(0)")
pmf(128, 36)
softmax2(128, 36, 148, 248, phi_wr)
a("v_mov_b32 v12, 1\nds_write_b32 v14, v12 offset:%d" % (F_XR + 16))
lds_wait(F_XR, 8, "1", 248)
stamp(3)
KA = 128
for kap in range(4):
    base = 152 + kap * 20
    for ft in range(3):
        for hf in range(2): a("ds_read_b64_tr_b16 %s, v4 offset:%d" % (q2(base + 4 * ft + 2 * hf), (32 * kap + 8 * hf) * IMG_RS + ft * 32))
    for dt in range(2):
        for hf in range(2): a("ds_read_b64_tr_b16 %s, v5 offset:%d" % (q2(base + 12 + 4 * dt + 2 * hf), (32 * kap + 8 * hf) * IMG_RS + dt * 32))
    if kap >= 1:
        a("s_waitcnt lgkmcnt(10)")
        pb = base - 20
        for ft in range(3):
            for dt in range(2):
                d = KA + (ft * 2 + dt) * 4
                smf(d, pb + 4 * ft, pb + 12 + 4 * dt, "0" if kap == 1 else q4(d))
a("s_waitcnt lgkmcnt(0)\nv_mov_b32 v12, 1\nds_write_b32 v14, v12 offset:%d" % F_KVD)
for ft in range(3):
    for dt in range(2):
        d = KA + (ft * 2 + dt) * 4
        smf(d, 212 + 4 * ft, 212 + 12 + 4 * dt, q4(d))
a("s_lshl_b32 s9, s6, 11\ns_add_u32 s9, s9, s17\ns_mov_b32 s100, 0x001f001f\ns_mov_b32 s101, 0x001f001f\nv_lshlrev_b32 v8, 4, v1")
for i in range(12): cvt(36 + i, KA + 2 * i)
for ft, dt in ((0, 0), (1, 0), (0, 1), (1, 1), (2, 1), (2, 0)):
    if (ft, dt) == (0, 1): a("s_mov_b64 exec, s[100:101]")
    if (ft, dt) == (2, 1): a("s_mov_b32 exec_hi, 0")
    if (ft, dt) == (2, 0): a("s_mov_b32 exec_lo, -1")
    a("ds_write_b64 v6, %s offset:%d" % (q2(36 + (ft * 2 + dt) * 2), dt * 16 * IMG_RS + ft * 32))
a("s_mov_b64 exec, -1")
a("ds_read_b128 v[48:51], v236\nds_read_b128 v[52:55], v237\ns_waitcnt lgkmcnt(1)")
a("buffer_store_dwordx4 v[48:51], v8, s[44:47], s9 offen sc1\ns_waitcnt lgkmcnt(0)")
a("buffer_store_dwordx4 v[52:55], v8, s[44:47], s9 offen offset:1024 sc1")
lds_wait(F_HX, 1, "2", 248, vz="v14")
for m in range(3): a("ds_read_b128 %s, v13 offset:%d" % (q4(36 + 4 * m), 1024 * m))
a("v_mov_b32 v12, 1\ns_waitcnt lgkmcnt(0)")
pmf(128, 36)
a("s_mov_b64 exec, 1\ns_waitcnt vmcnt(0)")
stamp(4)
a("buffer_atomic_add v12, v15, s[44:47], s18 offen sc1\ns_mov_b64 exec, -1")
a("s_cmp_eq_u32 s8, 4\ns_cbranch_scc0 k_nowo")
lds_wait(F_FREE, 4, "20", 248)
wo_phase(1, B_WO[1]); wo_phase(2, B_WO[2])
lds_wait(F_KVD, 4, "1", 248)
wo_phase(3, B_WO[3])
wo_done()
a.label("k_nowo")
softmax2(128, PHQ, 148, 248)
glb_wait('ws', "s18", "16", 12)
stamp(5)
a("s_mov_b32 s10, s6")
LB = 16
bufs = [128 + 8 * i for i in range(13)] + [16, 24, 32]
for i in range(16):
    a("s_lshl_b32 s9, s10, 11\ns_add_u32 s9, s9, s17\ns_add_u32 s10, s10, 1\ns_and_b32 s10, s10, 15")
    a("buffer_load_dwordx4 %s, v8, s[44:47], s9 offen sc1" % q4(bufs[i]))
    a("buffer_load_dwordx4 %s, v8, s[44:47], s9 offen offset:1024 sc1" % q4(bufs[i] + 4))
o_addr("s16")
SA = 40
for i in range(16):
    a("s_waitcnt vmcnt(%d)" % (30 - 2 * i))
    for k in range(4):
        smf(SA + 4 * k, 240 + 4 * (k & 1), bufs[i] + 4 * (k >> 1), "0" if i == 0 else q4(SA + 4 * k))
for k in range(4):
    cvt(56 + 2 * k, SA + 4 * k); cvt(57 + 2 * k, SA + 4 * k + 2)
for k in range(4): a("ds_write_b64 v%d, %s" % (70 + k, q2(56 + 2 * k)))
a("v_mov_b32 v12, 1\nds_write_b32 v14, v12 offset:%d" % F_KVR)
stamp(6)
lds_wait(F_KVR, 4, "1", 248)
o_compute(16, 128)
o_store("s13", OPK)
a("v_mov_b32 v12, 1\ns_mov_b64 exec, 1\ns_waitcnt vmcnt(0)\nbuffer_atomic_add v12, v15, s[44:47], s21 offen sc1")
stamp(7)
stamp_store()
a.label("k_end")
a("s_endpgm")

fin = Asm()
hdr = open("cdna_kernels/%s.s.ref" % NAME).read().split("; Override launch")[0]
fin.raw(hdr.rstrip())
fin.raw("; @launch grid=(256,1,1) block=(512,1,1) lds=163840")
fin.raw('.amdgcn_target "amdgcn-amd-amdhsa--gfx950"')
fin.raw(".text")
fin.raw(".set WPHI_ADDR, %d" % WPHI)
fin.raw(".set PF_EXTRA, (k_end - %s - 33792) / 1024" % KN)
section("hs"); hsetup(False)
section("wp"); wphi_load()
for it in secs["entry"].items:
    if it == "@@HSETUP@@": fin.items += secs["hs"].items
    elif it == "@@WPHI@@": fin.items += secs["wp"].items
    else: fin.items.append(it)
fin.raw("k_pf_start:")
for n in ("setup", "A", "help"): fin.items += secs[n].items
fin.raw('.section .rodata,"a"')
fin.raw(""".p2align 6
.amdhsa_kernel %s
  .amdhsa_next_free_vgpr 256
  .amdhsa_next_free_sgpr 102
  .amdhsa_accum_offset 256
  .amdhsa_group_segment_fixed_size 0
  .amdhsa_kernarg_size 80
  .amdhsa_user_sgpr_count 2
  .amdhsa_user_sgpr_kernarg_segment_ptr 1
  .amdhsa_system_sgpr_workgroup_id_x 1
.end_amdhsa_kernel""" % KN)
out = [x for x in sys.argv[1:] if not x.startswith("--")][0]
open(out, "w").write(fin.finish())
```
